```python
import torch

def _softmax(x, axis=-1):
    return torch.softmax(x, dim=axis)
def _gelu(x):
    return torch.nn.functional.gelu(x, approximate="tanh")
def _silu(x):
    return torch.nn.functional.silu(x)
def _sigmoid(x):
    return torch.sigmoid(x)
def _layernorm(x, axis=-1, eps=1e-5):
    m = x.mean(dim=axis, keepdim=True)
    v = x.var(dim=axis, keepdim=True, unbiased=False)
    return (x - m) / torch.sqrt(v + eps)
def _scatter_add(tgt, idx, src, axis=0):
    return tgt.clone().index_add_(axis, idx, src)
def _segment_sum(src, seg, n):
    out = torch.zeros((n,) + src.shape[1:], dtype=src.dtype)
    return out.index_add_(0, seg, src)
def _pad(x, pw):
    flat = tuple(v for pair in reversed(pw) for v in pair)
    return torch.nn.functional.pad(x, flat)

kernel_name = 'sequential_preLN__sliding_block_cached__geglu_ffn__decode'

def setup_inputs():

    _w = (lambda a: (lambda t: t.to(torch.bfloat16) if t.is_floating_point() else t)(torch.as_tensor(a)))
    def _A_setup():
        B, Sq, D = 4, 1, 576
        Hq, Hkv, Sk, Dh = 32, 16, 8192, 128
        assert Hq % Hkv == 0, (Hq, Hkv)
        return {
            "x": _w((lambda *s: torch.randn(*s, dtype=torch.bfloat16) * 0.05)(B, Sq, D)),
            "k_cache": _w((lambda *s: torch.randn(*s, dtype=torch.bfloat16) * 3.2)(B, Hkv, Sk, Dh)),
            "v_cache": _w((lambda *s: torch.randn(*s, dtype=torch.bfloat16) * 0.4)(B, Hkv, Sk, Dh)),
            "wq": _w((lambda *s: torch.randn(*s, dtype=torch.bfloat16) * 3.2)(D, Hq * Dh) * (D ** -0.5)),
            "wo": _w((lambda *s: torch.randn(*s, dtype=torch.bfloat16) * 0.4)(Hq * Dh, D) * ((Hq * Dh) ** -0.5)),
        }
    _A_in = _A_setup()

    def _B_setup():
        B, S, D, F = 4, 1, 576, 4608
        return {
            "x": _w((lambda *s: torch.randn(*s, dtype=torch.bfloat16) * 0.05)(B, S, D)),
            "w_gate": _w((lambda *s: torch.randn(*s, dtype=torch.bfloat16) * 0.05)(D, F)),
            "w_up": _w((lambda *s: torch.randn(*s, dtype=torch.bfloat16) * 0.05)(D, F)),
            "w_down": _w((lambda *s: torch.randn(*s, dtype=torch.bfloat16) * 0.05)(F, D)),
        }
    _B_in = _B_setup()

    return {
        "A_x": _A_in["x"],
        "A_k_cache": _A_in["k_cache"],
        "A_v_cache": _A_in["v_cache"],
        "A_wq": _A_in["wq"],
        "A_wo": _A_in["wo"],
        "B_x": _B_in["x"],
        "B_w_gate": _B_in["w_gate"],
        "B_w_up": _B_in["w_up"],
        "B_w_down": _B_in["w_down"],
    }

def reference(A_x, A_k_cache, A_v_cache, A_wq, A_wo, B_x, B_w_gate, B_w_up, B_w_down):
    def _A_ref(x, k_cache, v_cache, wq, wo):
        B, Sq, D = x.shape
        Hq, Dh = 32, 128
        Hkv, Sk = k_cache.shape[1], k_cache.shape[2]
        W = min(4096, max(256, Sk // 4))
        rep = Hq // Hkv
        q = (lambda x, *d: x.permute(*d))((x @ wq).reshape(B, Sq, Hq, Dh), 0, 2, 1, 3)
        k = (lambda x, n, axis: torch.repeat_interleave(x, n, dim=axis))(k_cache[:, :, Sk - W:, :], rep, axis=1)
        v = (lambda x, n, axis: torch.repeat_interleave(x, n, dim=axis))(v_cache[:, :, Sk - W:, :], rep, axis=1)
        scores = torch.einsum("bhqd,bhkd->bhqk", q, k) * (Dh ** -0.5)
        p = _softmax(scores, axis=-1)
        o = torch.einsum("bhqk,bhkd->bhqd", p, v)
        return (lambda x, *d: x.permute(*d))(o, 0, 2, 1, 3).reshape(B, Sq, Hq * Dh) @ wo

    def _B_ref(x, w_gate, w_up, w_down):
        return (_gelu(x @ w_gate) * (x @ w_up)) @ w_down

    x = A_x
    h = x + _A_ref(_layernorm(x, axis=-1), A_k_cache, A_v_cache, A_wq, A_wo)
    h2 = h + _B_ref(_layernorm(h, axis=-1), B_w_gate, B_w_up, B_w_down)
    return h2
```

```python
import re

TRANS = ("v_exp_f32", "v_log_f32", "v_rcp_f32", "v_rsq_f32", "v_sqrt_f32", "v_sin_f32", "v_cos_f32")

def regs_of(op):
    op = op.strip()
    op = re.sub(r"^-", "", op)
    m = re.match(r"^abs\((.*)\)$", op) or re.match(r"^\|(.*)\|$", op)
    if m: op = m.group(1)
    m = re.match(r"^([vas])\[(\d+):(\d+)\]$", op)
    if m: return {f"{m.group(1)}{i}" for i in range(int(m.group(2)), int(m.group(3)) + 1)}
    if re.match(r"^[vas]\d+$", op): return {op}
    if op == "vcc": return {"vcc"}
    if op in ("vcc_lo", "vcc_hi"): return {"vcc"}
    if op == "m0": return {"m0"}
    if op in ("exec", "exec_lo", "exec_hi"): return {"exec"}
    return set()

class Ins:
    def __init__(self, text):
        self.text = text
        t = text.split(";")[0].strip()
        parts = t.split(None, 1)
        self.op = parts[0]
        rest = parts[1] if len(parts) > 1 else ""
        ops, cur, depth = [], "", 0
        for ch in rest:
            if ch == "[": depth += 1
            if ch == "]": depth -= 1
            if ch == "," and depth == 0:
                ops.append(cur.strip()); cur = ""
            else: cur += ch
        if cur.strip(): ops.append(cur.strip())
        self.mods = ""
        if ops:
            last = ops[-1].split(None, 1)
            ops[-1] = last[0]
            if len(last) > 1: self.mods = last[1]
        self.ops = ops
        op = self.op
        self.is_mfma = op.startswith("v_mfma")
        self.is_valu = op.startswith("v_") and not self.is_mfma
        self.is_vmem = op.startswith("buffer_") or op.startswith("global_")
        self.is_ds = op.startswith("ds_")
        self.is_salu = op.startswith("s_")
        self.is_dpp = "_dpp" in op
        self.is_perml = op.startswith("v_permlane")
        self.is_trans = any(op.startswith(x) for x in TRANS)
        self.is_rdlane = op.startswith("v_readlane") or op.startswith("v_readfirstlane")
        self.is_branch = op.startswith("s_cbranch") or op == "s_branch"
        self.lds_dma = self.is_vmem and re.search(r"\blds\b", self.mods) is not None
        R = [regs_of(o) for o in ops]
        self.wr, self.rd = set(), set()
        self.srcC = set(); self.srcAB = set()
        if self.is_mfma:
            self.wr = R[0]; self.srcAB = R[1] | R[2]; self.srcC = R[3]; self.rd = self.srcAB | self.srcC
        elif self.is_valu:
            if self.is_perml:
                self.wr = R[0] | R[1]; self.rd = R[0] | R[1]
            elif "_co_" in op:
                self.wr = R[0] | R[1]; self.rd = set().union(*R[2:])
            else:
                self.wr = R[0]; self.rd = set().union(*R[1:]) if len(R) > 1 else set()
                if op.startswith(("v_fmac", "v_writelane", "v_dot2c")) or self.is_dpp: self.rd |= R[0]
        elif self.is_vmem:
            if "atomic" in op:
                self.wr = R[0]; self.rd = set().union(*R)
            elif "load" in op and not self.lds_dma:
                self.wr = R[0]; self.rd = set().union(*R[1:])
            else:
                self.rd = set().union(*R)
                if self.lds_dma: self.rd |= {"m0"}
            self.wide_store = ("store" in op) and ("x4" in op or "x3" in op)
            if self.wide_store:
                self.sdata = R[0] if op.startswith("buffer_") else R[1]
        elif self.is_ds:
            if "read" in op or "permute" in op or "swizzle" in op:
                self.wr = R[0]; self.rd = set().union(*R[1:])
            else:
                self.rd = set().union(*R)
        elif self.is_salu:
            if op.startswith(("s_cmp", "s_waitcnt", "s_nop", "s_barrier", "s_branch", "s_cbranch", "s_endpgm", "s_sleep", "s_setprio", "s_bitcmp")):
                self.rd = set().union(*R) if R else set()
            else:
                self.wr = R[0] if R else set(); self.rd = set().union(*R[1:]) if len(R) > 1 else set()
                if op.startswith(("s_addk", "s_mulk")): self.rd |= R[0]
                if "saveexec" in op: self.wr |= {"exec"}
        self.slots = 1
        if op == "s_nop": self.slots = int(ops[0], 0) + 1

def need(p, c):
    n = 0
    vec = lambda s: {r for r in s if r[0] in "va" and r != "vcc"}
    sca = lambda s: {r for r in s if r[0] == "s" or r == "vcc"}
    if p.is_valu:
        pv, ps = vec(p.wr), sca(p.wr)
        if c.is_mfma and pv & c.rd: n = max(n, 2)
        if c.is_valu and c.is_dpp and pv & c.rd: n = max(n, 2)
        if c.is_perml and pv & c.rd: n = max(n, 2)
        if c.is_rdlane and pv & c.rd: n = max(n, 1)
        if p.is_trans and c.is_valu and pv & c.rd: n = max(n, 1)
        if c.is_vmem and ps & c.rd: n = max(n, 5)
        if c.is_valu and ps & c.rd: n = max(n, 4 if ("lane" in c.op) else 2)
    if p.is_mfma:
        assert "16x16" in p.op
        if c.is_mfma:
            if p.wr & c.srcAB: n = max(n, 8)
            if p.wr & c.srcC and p.wr != c.srcC: n = max(n, 6)
            if p.wr & c.wr and p.wr != c.srcC: n = max(n, 6)
        elif (c.is_valu or c.is_vmem or c.is_ds) and p.wr & (c.rd | c.wr): n = max(n, 8)
        if c.is_valu and p.srcC & c.wr: n = max(n, 3)
    if p.is_salu and "m0" in p.wr and (c.lds_dma or (c.is_valu and "m0" in c.rd)): n = max(n, 1)
    if p.is_vmem and getattr(p, "wide_store", False) and p.sdata & c.wr: n = max(n, 2)
    return n

class Asm:
    def __init__(self):
        self.items = []
        self.nlab = 0
    def __call__(self, text):
        for line in text.split("\n"):
            line = line.strip()
            if not line or line.startswith(";"): continue
            if line.endswith(":"): self.items.append(("label", line[:-1]))
            elif line.startswith("."): self.items.append(("raw", line))
            else: self.items.append(Ins(line))
    def label(self, base="L"):
        self.nlab += 1
        return f"{base}_{self.nlab}"
    def finish(self):
        W = 10
        out = []
        def hist(lst):
            d = 0
            for it in reversed(lst):
                if not isinstance(it, Ins): continue
                if it.op in ("s_branch", "s_endpgm"): return
                yield it, d
                d += it.slots
                if d >= W: return
        npad = 0
        for it in self.items:
            if isinstance(it, Ins):
                pad = 0
                for p, d in hist(out):
                    pad = max(pad, need(p, it) - d)
                if pad > 0:
                    out.append(Ins(f"s_nop {pad-1}")); npad += 1
            out.append(it)
        pos = {it[1]: i for i, it in enumerate(out) if not isinstance(it, Ins) and it[0] == "label"}
        for i, it in enumerate(out):
            if isinstance(it, Ins) and it.is_branch:
                tgt = pos[it.ops[0]]
                pre = list(hist(out[:i]))
                d2 = 1
                for c in out[tgt:]:
                    if not isinstance(c, Ins): continue
                    for p, d in pre:
                        if need(p, c) > d + d2:
                            raise RuntimeError(f"hazard across branch {it.text}: {p.text} -> {c.text}")
                    d2 += c.slots
                    if d2 >= W or c.op in ("s_branch", "s_endpgm"): break
        self.npad = npad
        lines = []
        for it in out:
            if isinstance(it, Ins): lines.append("    " + it.text)
            elif it[0] == "label": lines.append(it[1] + ":")
            else: lines.append(it[1])
        return "\n".join(lines)
```

```python
import sys, struct
from asmlib import Asm

KN = "sequential_preLN__sliding_block_cached__geglu_ffn__decode_kernel"
HEADER = open("sequential_preLN__sliding_block_cached__geglu_ffn__decode.s.ref").read().split("; Override launch")[0] \
    if len(sys.argv) and __name__ == "__main__" else ""

def f2u(x): return struct.unpack("<I", struct.pack("<f", x))[0]

WS_Q   = 0x0
WS_EP  = 0x10000
WS_ST  = 0x11000
WS_A   = WS_ST + 2048
WS_B   = WS_A + 131072
WS_C   = WS_B + 36864
WS_END = WS_C + 331776
WS_DIAG = 0x100000
R0, R1 = 0, 73728
IMG = 147456; IMG_T = 272
CMB = 152576
ST  = 156672
HST = 156800
ACT = 157440
ZER = ACT + 512
LDS_BYTES = ZER + 512
OIM = R1
SPIN = 1 << 18

DPP = "row_mask:0xf bank_mask:0xf"

def gen(diag=False, NK1=12, QPOLL=8, NT="nt"):
    a = Asm()
    pend = []
    def stamp(i):
        if not diag: return
        p = 84 + 2 * (len(pend))
        assert p <= 100
        a(f"s_memrealtime s[{p}:{p+1}]"); pend.append((i, p))
    def flush(keep=False):
        if not diag: return
        a("s_waitcnt lgkmcnt(0)")
        for i, p in pend: a(f"v_writelane_b32 v255, s{p}, {i}")
        if not keep: pend.clear()
    def dump():
        if not diag: return
        a("s_mov_b64 exec, -1")
        a("s_lshl_b32 s74, s2, 2\n s_add_u32 s74, s74, s3\n s_lshl_b32 s74, s74, 8")
        a(f"s_add_u32 s74, s74, {WS_DIAG}")
        a("v_lshlrev_b32 v254, 2, v0")
        a("s_mov_b32 s22, 0x200000")
        a("buffer_store_dword v255, v254, s[20:23], s74 offen")
    def srd(d, p, n):
        a(f"s_mov_b32 s{d}, s{p}\n s_mov_b32 s{d+1}, s{p+1}\n s_mov_b32 s{d+2}, {n}\n s_mov_b32 s{d+3}, 0x20000")
    def rowred(regs, op):
        for ctl in ("quad_perm:[1,0,3,2]", "quad_perm:[2,3,0,1]", "row_half_mirror", "row_mirror"):
            for r in regs: a(f"{op}_dpp v{r}, v{r}, v{r} {ctl} {DPP}")
    def xrow(r, t, op):
        for sw in ("v_permlane16_swap_b32", "v_permlane32_swap_b32"):
            a(f"v_mov_b32 v{t}, v{r}\n {sw} v{r}, v{t}\n {op} v{r}, v{r}, v{t}")
    def rnd(r):
        a(f"v_cvt_pk_bf16_f32 v{r}, v{r}, v{r}\n v_and_b32 v{r}, s78, v{r}")
    def chk_chain(acc, regs):
        regs = list(regs)
        a(f"v_max3_u32 v{acc}, v{regs[0]}, v{regs[1]}, v{regs[2]}"); regs = regs[3:]
        while len(regs) >= 2:
            a(f"v_max3_u32 v{acc}, v{regs[0]}, v{regs[1]}, v{acc}"); regs = regs[2:]
        if regs: a(f"v_max_u32 v{acc}, v{regs[0]}, v{acc}")

    a("s_cmp_ge_u32 s2, 256\n s_cbranch_scc1 L_end")
    a("s_load_dwordx16 s[44:59], s[0:1], 0\n s_load_dwordx8 s[60:67], s[0:1], 64")
    stamp(0)
    a("v_lshrrev_b32 v1, 6, v0\n v_and_b32 v0, 63, v0")
    if diag: a("v_mov_b32 v255, 0")
    a("v_readfirstlane_b32 s3, v1")
    a("s_and_b32 s4, s2, 7\n s_lshr_b32 s5, s2, 3")
    a("s_lshr_b32 s76, s5, 4\n s_lshl_b32 s74, s4, 1\n s_add_u32 s76, s76, s74")
    a("s_and_b32 s77, s5, 15")
    a(f"s_mov_b32 s78, 0xffff0000\n s_mov_b32 s79, {f2u(128 ** -0.5):#x}\n s_mov_b32 s80, {f2u(1.4426950408889634):#x}")
    a("s_movk_i32 s69, 0x7fff")
    a("s_lshl_b32 s70, s2, 2\n s_add_u32 s70, s70, s3\n s_mul_i32 s70, s70, 0x9E3779B1\n s_lshr_b32 s70, s70, 27\n s_lshl_b32 s70, s70, 10")
    a("s_mul_i32 s75, s3, 9216\n s_movk_i32 s74, 1152\n s_mov_b32 s71, 36864")
    a("s_cmp_lt_u32 s5, 8\n s_cbranch_scc1 L_dq\n s_cmp_lt_u32 s5, 17\n s_cbranch_scc1 L_dw\n s_cmp_lt_u32 s5, 26\n s_cbranch_scc1 L_df")
    a("s_mov_b32 s6, 3\n s_sub_u32 s7, s5, 26\n s_lshl_b32 s7, s7, 3\n s_add_u32 s7, s7, s4\n s_mov_b32 s72, 0\n s_mov_b32 s73, 0\n s_branch L_dd")
    a("L_dq:")
    a("s_mov_b32 s6, 0\n s_lshl_b32 s7, s4, 3\n s_add_u32 s7, s7, s5\n s_movk_i32 s74, 8192\n s_mov_b32 s71, 262144\n s_mov_b32 s72, 262144")
    a("s_lshl_b32 s73, s7, 7\n s_lshl_b32 s75, s3, 16\n s_branch L_dd")
    a("L_dw:")
    a("s_mov_b32 s6, 1\n s_sub_u32 s7, s5, 8\n s_mov_b32 s72, 36864\n s_mul_i32 s73, s4, 589824\n s_lshl_b32 s82, s7, 7\n s_add_u32 s73, s73, s82\n s_branch L_dd")
    a("L_df:")
    a(f"s_mov_b32 s6, 2\n s_mul_i32 s7, s4, 9\n s_add_u32 s7, s7, s5\n s_sub_u32 s7, s7, 17\n s_mov_b32 s72, {(128 - 36864) & 0xffffffff:#x}\n s_mul_i32 s73, s7, 73728")
    a("L_dd:")
    a("s_add_u32 s73, s73, s75")
    a("v_lshlrev_b32 v2, 4, v0")
    a("v_bfe_u32 v92, v0, 2, 2\n v_lshrrev_b32 v93, 4, v0\n v_and_b32 v94, 3, v0")
    a("v_lshlrev_b32 v1, 8, v92\n v_lshl_add_u32 v1, v93, 6, v1\n v_lshl_add_u32 v1, v94, 4, v1")
    a("s_and_b32 s82, s3, 1\n s_lshl_b32 s82, s82, 2")
    a("v_lshrrev_b32 v96, 3, v0\n v_and_b32 v95, 2, v96\n v_or_b32 v95, s82, v95\n v_and_b32 v97, 7, v0\n v_xor_b32 v95, v95, v97\n v_lshlrev_b32 v95, 4, v95")
    a("v_mad_u32_u24 v3, v96, s74, v95")
    a("s_movk_i32 s82, 9216\n v_mad_u32_u24 v6, v96, s82, v95")
    a("v_lshrrev_b32 v97, 1, v92\n v_and_b32 v98, 1, v93\n v_lshl_or_b32 v97, v98, 1, v97\n v_xor_b32 v97, s3, v97")
    a("v_lshl_add_u32 v4, v93, 3, v92\n v_lshlrev_b32 v4, 7, v4\n v_lshl_add_u32 v4, v97, 5, v4\n v_lshl_add_u32 v4, v94, 3, v4\n v_add_u32 v5, 36864, v4")
    a("s_lshr_b32 s82, s77, 2\n s_lshl_b32 s82, s82, 4\n s_add_u32 s82, s82, s76\n s_lshl_b32 s82, s82, 21")
    a(f"s_and_b32 s83, s77, 3\n s_lshl_b32 s83, s83, 2\n s_add_u32 s83, s83, s3\n s_lshl_b32 s83, s83, 15\n s_add_u32 s82, s82, s83\n s_add_u32 s82, s82, {6144*256}")
    a("s_lshl_b32 s83, s3, 10\n s_mov_b32 m0, s83")
    a("s_waitcnt lgkmcnt(0)")
    a(f"s_load_dword s54, s[66:67], {WS_EP}")
    a("s_add_u32 s8, s46, s82\n s_addc_u32 s9, s47, 0\n s_mov_b32 s10, 32768\n s_mov_b32 s11, 0x20000")
    a("s_add_u32 s12, s48, s82\n s_addc_u32 s13, s49, 0\n s_mov_b32 s14, 32768\n s_mov_b32 s15, 0x20000")
    a("s_cmp_eq_u32 s6, 0\n s_cselect_b64 s[16:17], s[50:51], s[52:53]\n s_cmp_eq_u32 s6, 2\n s_cselect_b64 s[16:17], s[60:61], s[16:17]")
    a("s_mov_b32 s18, 4718592\n s_cselect_b32 s18, 5308416, s18\n s_mov_b32 s19, 0x20000")
    srd(20, 66, WS_END); srd(24, 44, 4608); srd(28, 56, 5308416); srd(32, 58, 5308416); srd(36, 62, 4608); srd(40, 64, 256)

    a("s_cmp_eq_u32 s6, 3\n s_cbranch_scc1 L_rclr\n s_cmp_eq_u32 s6, 1\n s_cbranch_scc1 L_dma\n s_cmp_eq_u32 s6, 2\n s_cbranch_scc1 L_fx")
    a("v_cmp_gt_u32 vcc, 36, v0\n v_mov_b32 v97, 0x10000\n v_cndmask_b32 v97, v97, v2, vcc\n s_mul_i32 s82, s3, 1152")
    a("buffer_load_dwordx4 v[188:191], v97, s[24:27], s82 offen\n buffer_load_dwordx4 v[192:195], v97, s[24:27], s82 offen offset:576")
    a("s_branch L_dma")
    a("L_rclr:")
    a("v_mov_b32 v188, -1\n v_mov_b32 v189, -1\n v_mov_b32 v190, -1\n v_mov_b32 v191, -1")
    a(f"s_lshl_b32 s82, s7, 2\n s_add_u32 s82, s82, s3\n s_mul_i32 s82, s82, 3072\n s_add_u32 s82, s82, {WS_ST}")
    for i in range(3): a(f"buffer_store_dwordx4 v[188:191], v2, s[20:23], s82 offen offset:{1024*i} sc1")
    a("s_branch L_kld")
    a("L_fx:")
    a("v_bfe_u32 v97, v0, 1, 2\n v_mul_u32_u24 v97, 1152, v97")
    a("v_bfe_u32 v98, v0, 5, 1\n v_lshl_add_u32 v97, v98, 6, v97\n v_bfe_u32 v98, v0, 3, 1\n v_lshl_add_u32 v97, v98, 5, v97")
    a("v_and_b32 v98, 1, v0\n v_lshl_add_u32 v97, v98, 4, v97\n v_bfe_u32 v98, v0, 4, 1\n v_lshl_add_u32 v97, v98, 3, v97")
    a("s_lshl_b32 s82, s3, 7")
    a("buffer_load_dwordx2 v[188:189], v97, s[24:27], s82 offen\n buffer_load_dwordx2 v[190:191], v97, s[24:27], s82 offen offset:512")
    a("buffer_load_dwordx2 v[192:193], v97, s[24:27], 0 offen offset:1024")
    a("L_dma:")
    for n in range(18):
        if n == 16: a("s_cmp_eq_u32 s6, 1\n s_cbranch_scc1 L_kld")
        a(f"buffer_load_dwordx4 v3, s[16:19], s73 offen {NT} lds")
        if n < 17: a(f"s_addk_i32 m0, 0x1000\n s_add_u32 s73, s73, s{71 + (n & 1)}")
    a("L_kld:")
    a("s_mov_b32 s68, s70")
    def kvload(kind, i):
        if kind == "k": a(f"buffer_load_dwordx4 a[{4*i}:{4*i+3}], v1, s[8:11], s68 offen {NT}")
        else:           a(f"buffer_load_dwordx4 a[{128+4*i}:{131+4*i}], v2, s[12:15], s68 offen {NT}")
        a("s_addk_i32 s68, 0x400\n s_and_b32 s68, s68, s69")
    for i in range(NK1): kvload("k", i)

    a("s_cmp_eq_u32 s6, 0\n s_cbranch_scc0 L_early")
    a(f"s_waitcnt vmcnt({18 + NK1})")
    for i in range(8):
        a(f"v_lshlrev_b32 v{172+2*i}, 16, v{188+i}\n v_and_b32 v{173+2*i}, s78, v{188+i}")
    a("v_add_f32 v196, v172, v173")
    for i in range(2, 16): a(f"v_add_f32 v196, v196, v{172+i}")
    rowred([196], "v_add_f32"); xrow(196, 197, "v_add_f32")
    a(f"v_mul_f32 v196, {f2u(1/576):#x}, v196")
    a("v_sub_f32 v198, v172, v196\n v_mul_f32 v197, v198, v198")
    for i in range(1, 16): a(f"v_sub_f32 v198, v{172+i}, v196\n v_fmac_f32 v197, v198, v198")
    a("v_cmp_gt_u32 vcc, 36, v0\n v_cndmask_b32 v197, 0, v197, vcc")
    rowred([197], "v_add_f32"); xrow(197, 198, "v_add_f32")
    a(f"v_mul_f32 v197, {f2u(1/576):#x}, v197")
    rnd(196); rnd(197)
    a(f"v_add_f32 v197, {f2u(1e-5):#x}, v197"); rnd(197)
    a("v_sqrt_f32 v197, v197"); rnd(197)
    a("v_rcp_f32 v197, v197")
    for i in range(8):
        lo, hi = 172 + 2*i, 173 + 2*i
        a(f"v_sub_f32 v{lo}, v{lo}, v196\n v_sub_f32 v{hi}, v{hi}, v196\n v_cvt_pk_bf16_f32 v198, v{lo}, v{hi}")
        a(f"v_lshlrev_b32 v{lo}, 16, v198\n v_and_b32 v{hi}, s78, v198\n v_mul_f32 v{lo}, v{lo}, v197\n v_mul_f32 v{hi}, v{hi}, v197")
        a(f"v_cvt_pk_bf16_f32 v{188+i}, v{lo}, v{hi}")
    a(f"v_lshrrev_b32 v198, 2, v0\n v_mul_u32_u24 v198, {IMG_T}, v198\n v_lshl_add_u32 v198, v94, 6, v198")
    a(f"s_lshl_b32 s82, s3, 4\n s_add_u32 s82, s82, {IMG}\n v_add_u32 v198, s82, v198")
    a("s_mov_b64 exec, vcc")
    a(f"ds_write_b128 v198, v[188:191]\n ds_write_b128 v198, v[192:195] offset:{9*IMG_T}")
    a("s_mov_b64 exec, -1")
    a("L_early:")
    a(f"s_waitcnt vmcnt({NK1}) lgkmcnt(0)\n s_barrier\n s_add_u32 s54, s54, 1")
    stamp(1)
    a("s_cmp_eq_u32 s6, 3\n s_cbranch_scc0 L_etr")
    a("s_add_u32 s82, s7, 64\n v_mov_b32 v97, 1\n v_mov_b32 v98, 0\n s_cmp_eq_u32 s3, 0\n s_cbranch_scc0 L_k2")
    a("s_mov_b64 exec, 1\n buffer_store_byte v97, v98, s[40:43], s82 offen sc1\n s_mov_b64 exec, -1\n s_branch L_k2")
    a("L_etr:")
    def trread(dst, base_lo, base_hi, t, extra=0):
        b, off = (base_lo, t * 4096) if t < 9 else (base_hi, (t - 9) * 4096)
        k, n = dst
        a(f"ds_read_b64_tr_b16 {k}[{n}:{n+1}], v{b} offset:{off}\n ds_read_b64_tr_b16 {k}[{n+2}:{n+3}], v{b} offset:{off+512}")
    for t in range(18): trread(("v", 100 + 4*t), 4, 5, t)
    a("s_cmp_eq_u32 s6, 0\n s_cbranch_scc0 L_k2")
    a(f"v_lshl_add_u32 v198, v93, 2, v94\n v_lshlrev_b32 v198, 4, v198\n v_add_u32 v198, {IMG}, v198")
    for t in range(18): a(f"ds_read_b128 v[{20+4*t}:{23+4*t}], v198 offset:{t*IMG_T}")
    a("s_waitcnt lgkmcnt(0)")
    for t in range(18):
        a(f"v_mfma_f32_16x16x32_bf16 v[16:19], v[{100+4*t}:{103+4*t}], v[{20+4*t}:{23+4*t}], {'0' if t == 0 else 'v[16:19]'}")
    a("v_lshlrev_b32 v198, 14, v94\n v_lshl_add_u32 v198, v93, 4, v198")
    a("s_lshl_b32 s82, s7, 8\n s_lshl_b32 s83, s3, 6\n s_add_u32 s82, s82, s83")
    a("v_cvt_pk_bf16_f32 v16, v16, v17\n v_cvt_pk_bf16_f32 v18, v18, v19\n v_mov_b32 v17, s54\n v_mov_b32 v19, s54")
    a("s_mov_b32 exec_lo, 0x000f000f\n s_mov_b32 exec_hi, 0x000f000f")
    a("buffer_store_dwordx4 v[16:19], v198, s[20:23], s82 offen sc1")
    a("s_mov_b64 exec, -1")
    stamp(11)
    a("L_k2:")
    for i in range(NK1, 32): kvload("k", i)
    for i in range(QPOLL): kvload("v", i)

    a("v_bfe_u32 v62, v0, 2, 1\n v_lshlrev_b32 v62, 9, v62\n v_lshl_add_u32 v62, v93, 7, v62\n v_lshl_add_u32 v62, v94, 5, v62")
    a("v_min_u32 v63, 11, v0\n v_lshlrev_b32 v63, 2, v63")
    a("s_lshr_b32 s82, s77, 2\n s_lshl_b32 s82, s82, 14\n s_lshl_b32 s83, s76, 10\n s_add_u32 s82, s82, s83")
    def qpass():
        a("buffer_load_dword v60, v63, s[40:43], 0 offen offset:64 sc1")
        a("buffer_load_dwordx4 v[52:55], v62, s[20:23], s82 offen sc1\n buffer_load_dwordx4 v[56:59], v62, s[20:23], s82 offen offset:16 sc1")
    stamp(2)
    qpass()
    nv = QPOLL
    for i in range(10): kvload("v", nv); nv += 1
    a("v_and_b32 v97, 1, v0\n v_cmp_eq_u32 vcc, 1, v97\n v_mov_b32 v98, 0xffff\n v_mov_b32 v99, s78\n v_cndmask_b32 v98, v98, v99, vcc")
    a("v_bfe_u32 v97, v0, 3, 1\n v_bfe_u32 v99, v0, 1, 1\n v_lshl_or_b32 v97, v97, 1, v99")
    for d in range(4): a(f"v_cmp_eq_u32 vcc, {d}, v97\n v_cndmask_b32 v{12+d}, 0, v98, vcc")
    a("v_mov_b32 v7, 0xff800000\n s_mov_b32 s81, 0")
    a("s_waitcnt vmcnt(10)\n s_branch L_qchk")
    a("L_qpoll:")
    qpass()
    a(f"s_add_u32 s81, s81, 1\n s_cmp_gt_u32 s81, {SPIN}\n s_waitcnt vmcnt(0)\n s_cbranch_scc1 L_qgo")
    a("L_qchk:")
    a("v_xor_b32 v60, 0x01010101, v60")
    for r in (53, 55, 57, 59): a(f"v_xor_b32 v{r}, s54, v{r}")
    a("v_or3_b32 v60, v60, v53, v55\n v_or3_b32 v60, v60, v57, v59\n v_cmp_ne_u32 vcc, 0, v60\n s_cbranch_vccnz L_qpoll")
    a("L_qgo:")
    a("v_mov_b32 v8, v52\n v_mov_b32 v9, v54\n v_mov_b32 v10, v56\n v_mov_b32 v11, v58")
    stamp(3)
    def qk(gi):
        for q in range(4):
            d = 52 + 16 * (gi & 1) + 4 * q; k = 16 * gi + 4 * q
            a(f"v_mfma_f32_16x16x32_bf16 v[{d}:{d+3}], a[{k}:{k+3}], v[8:11], 0")
    qk(0)
    for gi in range(8):
        if gi < 7: qk(gi + 1)
        D = 52 + 16 * (gi & 1); T = 20 + 4 * gi
        for u in range(4):
            for q in range(4):
                if u == 0: a(f"v_mov_b32_dpp v{T+q}, v{D+4*q} quad_perm:[0,0,0,0] {DPP}")
                else:      a(f"v_add_f32_dpp v{T+q}, v{D+4*q+u}, v{T+q} quad_perm:[{u},{u},{u},{u}] {DPP}")
        a(f"v_max3_f32 v7, v{T}, v{T+1}, v7\n v_max3_f32 v7, v{T+2}, v{T+3}, v7")
        for rep in range(2):
            a(f"v_cvt_pk_bf16_f32 v97, v{T}, v{T+1}\n v_cvt_pk_bf16_f32 v98, v{T+2}, v{T+3}")
            a(f"v_lshlrev_b32 v{T}, 16, v97\n v_and_b32 v{T+1}, s78, v97\n v_lshlrev_b32 v{T+2}, 16, v98\n v_and_b32 v{T+3}, s78, v98")
            if rep == 0:
                for q in range(4): a(f"v_mul_f32 v{T+q}, s79, v{T+q}")
        if gi & 1: kvload("v", nv); nv += 1
    xrow(7, 97, "v_max_f32")
    rnd(7); a("v_mul_f32 v7, s79, v7"); rnd(7)
    a("v_mul_f32 v52, s80, v7")
    for i in range(32): a(f"v_fma_f32 v{20+i}, v{20+i}, s80, -v52")
    kvload("v", nv); nv += 1
    for i in range(32):
        a(f"v_exp_f32 v{20+i}, v{20+i}")
        if i == 2: a("v_add_f32 v53, v20, v21")
        if i > 2:  a(f"v_add_f32 v53, v53, v{19+i}")
    a("v_add_f32 v53, v53, v51")
    kvload("v", nv); nv += 1
    xrow(53, 97, "v_add_f32")
    a(f"v_bfe_u32 v97, v0, 2, 1\n v_lshlrev_b32 v97, 5, v97\n s_lshl_b32 s82, s3, 3\n s_add_u32 s82, s82, {ST}\n v_add_u32 v97, s82, v97")
    a("s_mov_b64 exec, 0x11\n ds_write_b64 v97, v[52:53]\n s_mov_b64 exec, -1")
    stamp(4); flush()
    def pbuild(i):
        P = 84 + 4 * (i & 1)
        a(f"v_cvt_pk_bf16_f32 v99, v{20+i}, v{20+i}")
        for d in range(4): a(f"v_and_b32 v{P+d}, v99, v{12+d}")
    def pv(i):
        P = 84 + 4 * (i & 1)
        a(f"v_mfma_f32_16x16x32_bf16 v[16:19], v[{P}:{P+3}], a[{128+4*i}:{131+4*i}], {'0' if i == 0 else 'v[16:19]'}")
    LAG = 11
    done = nv - LAG
    a(f"s_waitcnt vmcnt({LAG})")
    pbuild(0)
    for i in range(done):
        pbuild(i + 1); pv(i)
    a("s_waitcnt lgkmcnt(0)\n s_barrier")
    a(f"v_and_b32 v97, 1, v93\n v_lshlrev_b32 v97, 5, v97\n v_add_u32 v98, s82, v97\n v_add_u32 v97, {ST}, v97")
    a("ds_read_b128 v[56:59], v97\n ds_read_b128 v[60:63], v97 offset:16\n ds_read_b32 v64, v98")
    kvload("v", nv); nv += 1
    a("s_waitcnt lgkmcnt(0)")
    a("v_max3_f32 v65, v56, v58, v60\n v_max_f32 v65, v65, v62")
    for r in (56, 58, 60, 62, 64): a(f"v_sub_f32 v{r}, v{r}, v65")
    for r in (56, 58, 60, 62, 64): a(f"v_exp_f32 v{r}, v{r}")
    a("v_mul_f32 v66, v56, v57\n v_fmac_f32 v66, v58, v59\n v_fmac_f32 v66, v60, v61\n v_fmac_f32 v66, v62, v63")
    a("v_rcp_f32 v67, v66\n v_log_f32 v66, v66")
    a("v_mul_f32 v7, v64, v67")
    a("v_add_f32 v66, v66, v65\n v_min_u32 v66, -2, v66")
    a("s_cmp_eq_u32 s3, 0\n s_cbranch_scc0 L_nolse")
    a(f"s_lshl_b32 s82, s4, 8\n s_lshl_b32 s83, s77, 4\n s_add_u32 s82, s82, s83\n s_and_b32 s83, s76, 1\n s_lshl_b32 s83, s83, 3\n s_add_u32 s82, s82, s83\n s_add_u32 s82, s82, {WS_ST}")
    a("v_lshlrev_b32 v97, 2, v93\n s_mov_b64 exec, 0x10001\n buffer_store_dword v66, v97, s[20:23], s82 offen sc1\n s_mov_b64 exec, -1")
    a("L_nolse:")
    a(f"s_waitcnt vmcnt({LAG})"); pv(done); done += 1
    while nv < 32:
        kvload("v", nv); nv += 1
        pbuild(done); a(f"s_waitcnt vmcnt({LAG})"); pv(done); done += 1
    a(f"s_lshl_b32 s82, s76, 13\n s_lshl_b32 s83, s77, 8\n s_add_u32 s82, s82, s83\n s_add_u32 s57, s82, {WS_A}")
    a("v_and_b32 v97, 15, v0\n v_lshlrev_b32 v97, 4, v97\n v_lshl_add_u32 v97, v93, 12, v97")
    a(f"s_lshl_b32 s82, s3, 10\n s_add_u32 s82, s82, {CMB}\n v_add_u32 v98, s82, v2")
    a("s_cmp_eq_u32 s6, 2\n s_cbranch_scc1 L_ftail")
    for i in range(done, 32):
        pbuild(i); a(f"s_waitcnt vmcnt({31 - i})"); pv(i)
    a("s_branch L_comb")
    a("L_ftail:")
    a("s_lshl_b32 s73, s7, 7\n s_mul_i32 s82, s3, 73728\n s_add_u32 s73, s73, s82\n s_mov_b32 s58, s73\n s_lshl_b32 s82, s3, 10\n s_mov_b32 m0, s82")
    def late(n):
        s = 28 if n < 18 else 32
        a(f"buffer_load_dwordx4 v6, s[{s}:{s+3}], s73 offen {NT} lds")
        a("s_addk_i32 m0, 0x1000")
        if n == 17: a("s_mov_b32 s73, s58")
        else:       a("s_add_u32 s73, s73, 294912")
    nl = 0
    for i in range(done, 32):
        late(nl); nl += 1
        pbuild(i); a(f"s_waitcnt vmcnt({31 - i + nl})"); pv(i)
    a("L_comb:")
    stamp(5)
    for i in range(4): a(f"v_mul_f32 v{16+i}, v{16+i}, v7")
    a("ds_write_b128 v98, v[16:19]\n s_waitcnt lgkmcnt(0)\n s_barrier")
    a("s_cmp_eq_u32 s3, 0\n s_cbranch_scc0 L_pubd")
    for w in range(1, 4): a(f"ds_read_b128 v[{52+4*w}:{55+4*w}], v98 offset:{1024*w}")
    a("s_waitcnt lgkmcnt(0)")
    for w in range(1, 4):
        a(f"v_pk_add_f32 v[16:17], v[16:17], v[{52+4*w}:{53+4*w}]\n v_pk_add_f32 v[18:19], v[18:19], v[{54+4*w}:{55+4*w}]")
    a("v_cvt_pk_bf16_f32 v16, v16, v17\n v_cvt_pk_bf16_f32 v17, v18, v19\n v_min_u32 v16, -2, v16\n v_min_u32 v17, -2, v17")
    a("v_permlane32_swap_b32 v16, v18\n v_permlane32_swap_b32 v17, v19")
    a("s_mov_b32 exec_hi, 0\n buffer_store_dwordx4 v[16:19], v97, s[20:23], s57 offen sc1\n s_mov_b64 exec, -1")
    a("L_pubd:")
    stamp(6)
    base_pend = list(pend)
    a("s_cmp_eq_u32 s6, 2\n s_cbranch_scc1 L_F\n s_cmp_eq_u32 s6, 3\n s_cbranch_scc1 L_R\n s_cmp_eq_u32 s6, 1\n s_cbranch_scc0 L_fin")

    a(f"v_and_b32 v97, 15, v0\n v_lshlrev_b32 v98, 4, v97\n s_lshl_b32 s82, s4, 8\n s_add_u32 s82, s82, {WS_ST}\n s_mov_b32 s81, 0")
    a(f"s_lshl_b32 s83, s4, 2\n s_add_u32 s83, s83, s3\n s_lshl_b32 s83, s83, 12\n s_add_u32 s83, s83, {WS_A}")
    a("L_wst:")
    a("buffer_load_dwordx4 v[20:23], v98, s[20:23], s82 offen sc1")
    a(f"s_add_u32 s81, s81, 1\n s_cmp_gt_u32 s81, {SPIN}\n s_cbranch_scc1 L_wst2")
    a("s_waitcnt vmcnt(0)"); chk_chain(99, range(20, 24))
    a("v_cmp_eq_u32 vcc, -1, v99\n s_cbranch_vccnz L_wst")
    a("L_wst2:")
    a("s_waitcnt vmcnt(0)")
    for i in range(4): a(f"buffer_load_dwordx4 v[{172+4*i}:{175+4*i}], v2, s[20:23], s83 offen offset:{1024*i} sc1")
    for hh in range(4): a(f"v_max_f32_dpp v{24+hh}, v{20+hh}, v{20+hh} quad_perm:[1,0,3,2] {DPP}")
    for hh in range(4): a(f"v_max_f32_dpp v{24+hh}, v{24+hh}, v{24+hh} quad_perm:[2,3,0,1] {DPP}")
    for hh in range(4): a(f"v_sub_f32 v{20+hh}, v{20+hh}, v{24+hh}")
    for hh in range(4): a(f"v_exp_f32 v{20+hh}, v{20+hh}")
    for hh in range(4): a(f"v_add_f32_dpp v{24+hh}, v{20+hh}, v{20+hh} quad_perm:[1,0,3,2] {DPP}")
    for hh in range(4): a(f"v_add_f32_dpp v{24+hh}, v{24+hh}, v{24+hh} quad_perm:[2,3,0,1] {DPP}")
    for hh in range(4): a(f"v_rcp_f32 v{24+hh}, v{24+hh}")
    for hh in range(4): a(f"v_mul_f32 v{20+hh}, v{20+hh}, v{24+hh}")
    a(f"v_and_b32 v28, 7, v0\n v_xor_b32 v28, v28, v93\n v_lshlrev_b32 v28, 4, v28\n v_lshl_add_u32 v28, v97, 8, v28")
    a(f"s_lshl_b32 s82, s3, 12\n s_add_u32 s82, s82, {OIM}\n v_add_u32 v28, s82, v28\n v_xor_b32 v29, 64, v28")
    a(f"v_xor_b32 v30, v97, v93\n v_lshlrev_b32 v30, 4, v30\n v_lshl_add_u32 v30, v93, 8, v30\n v_add_u32 v30, {OIM}, v30\n v_xor_b32 v31, 64, v30")
    a("v_lshlrev_b32 v32, 5, v92\n v_lshl_add_u32 v32, v93, 3, v32")
    a(f"s_lshl_b32 s82, s7, 3\n s_add_u32 s82, s82, s4\n s_lshl_b32 s82, s82, 2\n s_add_u32 s82, s82, s3\n s_lshl_b32 s82, s82, 7\n s_add_u32 s82, s82, {WS_B}")
    a("s_mov_b32 s81, 0\n s_branch L_wchk")
    a("L_wa:")
    for i in range(4): a(f"buffer_load_dwordx4 v[{172+4*i}:{175+4*i}], v2, s[20:23], s83 offen offset:{1024*i} sc1")
    a(f"s_add_u32 s81, s81, 1\n s_cmp_gt_u32 s81, {SPIN}\n s_cbranch_scc1 L_wgo")
    a("L_wchk:")
    a("s_waitcnt vmcnt(0)"); chk_chain(99, range(172, 188))
    a("v_cmp_eq_u32 vcc, -1, v99\n s_cbranch_vccnz L_wa")
    a("L_wgo:")
    a("s_waitcnt vmcnt(0)")
    stamp(7)
    for i in range(4): a(f"ds_write_b128 v{28 + (i & 1)}, v[{172+4*i}:{175+4*i}] offset:{128 * (i >> 1)}")
    a("s_waitcnt lgkmcnt(0)\n s_barrier")
    for tt in range(16): a(f"ds_read_b128 v[{188+4*tt}:{191+4*tt}], v{30 + (tt & 1)} offset:{1024*tt}")
    for tt in range(16):
        hh, t = tt >> 2, tt & 3
        a(f"s_waitcnt lgkmcnt({15 - tt})")
        a(f"v_mfma_f32_16x16x32_bf16 v[{36+4*hh}:{39+4*hh}], v[{100+4*tt}:{103+4*tt}], v[{188+4*tt}:{191+4*tt}], {'0' if t == 0 else f'v[{36+4*hh}:{39+4*hh}]'}")
    for hh in range(4):
        for i in range(4):
            a(f"v_mul_f32 v{52+i}, v{36+i}, v20" if hh == 0 else f"v_fmac_f32 v{52+i}, v{36+4*hh+i}, v{20+hh}")
    for ctl in ("quad_perm:[1,0,3,2]", "quad_perm:[2,3,0,1]"):
        for i in range(4): a(f"v_add_f32_dpp v{52+i}, v{52+i}, v{52+i} {ctl} {DPP}")
    a("v_cvt_pk_bf16_f32 v52, v52, v53\n v_cvt_pk_bf16_f32 v53, v54, v55\n v_min_u32 v52, -2, v52\n v_min_u32 v53, -2, v53")
    a("s_mov_b32 exec_lo, 0x11111111\n s_mov_b32 exec_hi, 0x11111111")
    a("buffer_store_dwordx2 v[52:53], v32, s[20:23], s82 offen sc1")
    stamp(8); flush(); dump()
    a("s_endpgm")

    pend[:] = base_pend
    a("L_F:")
    for n in range(nl, 36): late(n)
    for i in range(6): a(f"v_lshlrev_b32 v{172+2*i}, 16, v{188+i}\n v_and_b32 v{173+2*i}, s78, v{188+i}")
    a("v_mov_b32 v20, 0x3f803f80\n v_mov_b32 v21, v20\n v_mov_b32 v22, v20\n v_mov_b32 v23, v20")
    a(f"v_mul_u32_u24 v97, {IMG_T}, v0\n v_add_u32 v97, {IMG + 256}, v97\n s_mov_b64 exec, 0x3ffff\n ds_write_b128 v97, v[20:23]\n s_mov_b64 exec, -1")
    a("v_mov_b32 v24, 0\n v_mov_b32 v25, 0\n v_mov_b32 v26, 0\n v_mov_b32 v27, 0")
    a(f"v_mov_b32 v97, {ZER}\n ds_write_b128 v97, v[24:27]\n ds_write_b128 v97, v[24:27] offset:256")
    a("v_and_b32 v97, 1, v0\n v_cmp_eq_u32 vcc, 1, v97\n v_mov_b32 v98, 0x3f80\n v_mov_b32 v99, 0x3f800000\n v_cndmask_b32 v98, v98, v99, vcc")
    a("v_bfe_u32 v97, v0, 3, 1\n v_bfe_u32 v99, v0, 4, 1\n v_cmp_eq_u32 vcc, v97, v99\n v_cndmask_b32 v98, 0, v98, vcc\n v_bfe_u32 v97, v0, 1, 2")
    for d in range(4): a(f"v_cmp_eq_u32 vcc, {d}, v97\n v_cndmask_b32 v{8+d}, 0, v98, vcc")
    a(f"v_bfe_u32 v28, v0, 5, 1\n v_mul_u32_u24 v28, {IMG_T}, v28\n v_bfe_u32 v98, v0, 3, 1\n v_lshl_add_u32 v28, v98, 7, v28")
    a("v_and_b32 v98, 1, v0\n v_lshl_add_u32 v28, v98, 6, v28\n v_lshl_add_u32 v28, v97, 4, v28\n v_bfe_u32 v98, v0, 4, 1\n v_lshl_add_u32 v28, v98, 3, v28")
    a(f"s_mul_i32 s82, s3, {2*IMG_T}\n s_add_u32 s82, s82, {IMG}\n v_add_u32 v28, s82, v28")
    a(f"v_lshlrev_b32 v29, 7, v97\n v_lshl_add_u32 v29, v93, 3, v29\n s_lshl_b32 s82, s3, 5\n s_add_u32 s82, s82, {HST}\n v_add_u32 v29, s82, v29")
    a(f"v_lshl_add_u32 v30, v93, 2, v92\n v_lshlrev_b32 v30, 4, v30\n v_mov_b32 v98, 256\n v_cmp_eq_u32 vcc, 1, v94\n v_cndmask_b32 v30, v30, v98, vcc\n v_add_u32 v30, {IMG}, v30")
    a(f"v_lshlrev_b32 v31, 3, v0\n v_add_u32 v31, {HST}, v31")
    a("v_bfe_u32 v32, v0, 3, 1\n v_lshlrev_b32 v32, 6, v32\n v_lshl_add_u32 v32, v93, 4, v32\n v_and_b32 v98, 7, v0\n v_lshl_add_u32 v32, v98, 1, v32")
    a(f"s_lshl_b32 s82, s3, 7\n s_add_u32 s82, s82, {ACT}\n v_add_u32 v32, s82, v32")
    a(f"v_lshl_add_u32 v98, v93, 2, v94\n v_lshlrev_b32 v98, 4, v98\n v_add_u32 v98, {ACT}, v98\n v_mov_b32 v99, {ZER}")
    for e in range(4): a(f"v_cmp_eq_u32 vcc, {e}, v92\n v_cndmask_b32 v{33+e}, v99, v98, vcc")
    a(f"v_mul_u32_u24 v37, {2*IMG_T}, v92\n v_bfe_u32 v98, v0, 5, 1\n v_lshl_add_u32 v37, v98, 6, v37\n v_lshl_add_u32 v37, v94, 4, v37\n v_bfe_u32 v98, v0, 4, 1\n v_lshl_add_u32 v37, v98, 3, v37")
    a(f"s_lshr_b32 s82, s3, 1\n s_mul_i32 s82, s82, {IMG_T}\n s_and_b32 s83, s3, 1\n s_lshl_b32 s83, s83, 7\n s_add_u32 s82, s82, s83\n s_add_u32 s82, s82, {IMG}\n v_add_u32 v37, s82, v37")
    a("v_lshrrev_b32 v38, 3, v0\n v_mul_u32_u24 v38, 9216, v38\n v_and_b32 v98, 7, v0\n v_lshl_add_u32 v38, v98, 4, v38")
    a(f"v_lshlrev_b32 v39, 5, v94\n v_lshl_add_u32 v39, v93, 3, v39\n v_add_u32 v39, {8*9216}, v39")
    a(f"s_mul_i32 s58, s3, {9*9216}\n s_lshl_b32 s82, s7, 7\n s_add_u32 s58, s58, s82\n s_add_u32 s58, s58, {WS_C}")
    a(f"s_lshl_b32 s82, s3, 12\n s_add_u32 s82, s82, {WS_B}\n s_add_u32 s83, s82, 16384\n s_mov_b32 s59, {WS_B + 32768}")
    a(f"v_add_u32 v40, {R1}, v4\n v_add_u32 v41, {R1}, v5")
    a("s_waitcnt vmcnt(18) lgkmcnt(0)\n s_barrier")
    for t in range(18): trread(("a", 4*t), 4, 5, t)
    a("s_waitcnt vmcnt(0)\n s_barrier")
    stamp(7)
    def bpass():
        for blk, so in ((0, "s82"), (1, "s83")):
            for p in range(4): a(f"buffer_load_dwordx4 v[{188+16*blk+4*p}:{191+16*blk+4*p}], v2, s[20:23], {so} offen offset:{1024*p} sc1")
        lab = a.label("L_fb")
        a(f"s_cmp_eq_u32 s3, 0\n s_cbranch_scc0 {lab}")
        for p in range(4): a(f"buffer_load_dwordx4 v[{220+4*p}:{223+4*p}], v2, s[20:23], s59 offen offset:{1024*p} sc1")
        a(f"{lab}:")
    for i in range(16): a(f"v_mov_b32 v{220+i}, 0")
    a("s_cmp_eq_u32 s3, 0\n s_cbranch_scc1 L_fx8")
    for i in range(4): a(f"v_mov_b32 v{180+i}, 0")
    a("L_fx8:")
    bpass()
    for t in range(18): trread(("a", 72 + 4*t), 40, 41, t)
    a("s_mov_b32 s81, 0\n s_branch L_fchk")
    a("L_fa:")
    bpass()
    a(f"s_add_u32 s81, s81, 1\n s_cmp_gt_u32 s81, {SPIN}\n s_cbranch_scc1 L_fgo")
    a("L_fchk:")
    a("s_waitcnt vmcnt(0)"); chk_chain(99, range(188, 236))
    a("v_cmp_eq_u32 vcc, -1, v99\n s_cbranch_vccnz L_fa")
    a("L_fgo:")
    a("s_waitcnt vmcnt(0)")
    stamp(8)
    for p in range(4):
        for blk in range(3):
            a(f"v_mfma_f32_16x16x32_bf16 v[{172+4*blk}:{175+4*blk}], v[8:11], v[{188+16*blk+4*p}:{191+16*blk+4*p}], v[{172+4*blk}:{175+4*blk}]")
    for blk in range(3):
        d = 172 + 4 * blk
        a(f"v_cvt_pk_bf16_f32 v{44+2*blk}, v{d}, v{d+1}\n v_cvt_pk_bf16_f32 v{45+2*blk}, v{d+2}, v{d+3}")
        if blk < 2: a(f"ds_write_b64 v28, v[{44+2*blk}:{45+2*blk}] offset:{8*IMG_T*blk}")
    a(f"s_cmp_eq_u32 s3, 0\n s_cbranch_scc0 L_fw8\n ds_write_b64 v28, v[48:49] offset:{16*IMG_T}")
    a("L_fw8:")
    a("v_add_f32 v42, v172, v173\n v_mul_f32 v43, v172, v172")
    for i in range(1, 12):
        if i >= 2: a(f"v_add_f32 v42, v42, v{172+i}")
        a(f"v_fmac_f32 v43, v{172+i}, v{172+i}")
    for ctl in ("quad_perm:[1,0,3,2]", "row_ror:8"):
        for r in (42, 43): a(f"v_add_f32_dpp v{r}, v{r}, v{r} {ctl} {DPP}")
    a("ds_write_b64 v29, v[42:43]\n s_waitcnt lgkmcnt(0)\n s_barrier")
    a("ds_read_b64 v[42:43], v31")
    HF = 184
    def hread(t): a(f"ds_read_b128 v[{HF+4*(t%15)}:{HF+3+4*(t%15)}], v30 offset:{t*IMG_T}")
    for t in range(12): hread(t)
    side = []
    for ctl in ("quad_perm:[1,0,3,2]", "quad_perm:[2,3,0,1]", "row_half_mirror", "row_mirror"):
        side.append([f"v_add_f32_dpp v{r}, v{r}, v{r} {ctl} {DPP}" for r in (42, 43)])
    side.append([f"v_mul_f32 v42, {f2u(1/576):#x}, v42", f"v_mul_f32 v43, {f2u(1/576):#x}, v43"])
    side.append(["v_fma_f32 v43, -v42, v42, v43", f"v_add_f32 v43, {f2u(1e-5):#x}, v43"])
    side.append(["v_rsq_f32 v43, v43"])
    for t in range(18):
        h = HF + 4 * (t % 15)
        a(f"s_waitcnt lgkmcnt({min(11, 17 - t)})")
        a(f"v_mfma_f32_16x16x32_bf16 v[52:55], v[{h}:{h+3}], a[{4*t}:{4*t+3}], {'0' if t == 0 else 'v[52:55]'}")
        a(f"v_mfma_f32_16x16x32_bf16 v[56:59], v[{h}:{h+3}], a[{72+4*t}:{75+4*t}], {'0' if t == 0 else 'v[56:59]'}")
        if t + 12 < 18: hread(t + 12)
        if t >= 6 and side:
            for s in side.pop(0): a(s)
    for i in range(12): a(f"v_mov_b32 v{60+i}, 0")
    a("s_cmp_eq_u32 s7, 0\n s_cbranch_scc0 L_fnr")
    for k in range(3): a(f"ds_read_b64 v[{44+2*k}:{45+2*k}], v37 offset:{8*IMG_T*k}")
    a("s_waitcnt lgkmcnt(0)")
    for i in range(6): a(f"v_lshlrev_b32 v{60+2*i}, 16, v{44+i}\n v_and_b32 v{61+2*i}, s78, v{44+i}")
    a("L_fnr:")
    a("v_fma_f32 v52, -v42, v53, v52\n v_fma_f32 v56, -v42, v57, v56\n v_mul_f32 v52, v52, v43\n v_mul_f32 v56, v56, v43")
    c1 = -2 * 0.7978845608028654 * 1.4426950408889634
    a(f"v_mul_f32 v53, v52, v52\n v_mov_b32 v54, {f2u(c1):#x}\n v_fmamk_f32 v53, v53, {f2u(c1 * 0.044715):#x}, v54\n v_mul_f32 v53, v53, v52")
    a("v_exp_f32 v53, v53\n v_mul_f32 v52, v52, v56\n v_add_f32 v53, 1.0, v53\n v_rcp_f32 v53, v53\n v_mul_f32 v52, v52, v53")
    a("v_cvt_pk_bf16_f32 v52, v52, v52\n ds_write_b16 v32, v52\n s_waitcnt lgkmcnt(0)\n s_barrier")
    stamp(9)
    for e in range(4):
        for t in range(2): a(f"ds_read_b128 v[{184+8*e+4*t}:{187+8*e+4*t}], v{33+e} offset:{256*t}")
    if diag: a("s_waitcnt lgkmcnt(0)")
    for e in range(4):
        for t in range(2):
            if not diag: a(f"s_waitcnt lgkmcnt({7 - 2*e - t})")
            for acc in range(3):
                s9 = 4 * acc + e
                if s9 > 8: continue
                w = 100 + 4 * (2 * s9 + t)
                a(f"v_mfma_f32_16x16x32_bf16 v[{60+4*acc}:{63+4*acc}], v[{w}:{w+3}], v[{184+8*e+4*t}:{187+8*e+4*t}], v[{60+4*acc}:{63+4*acc}]")
    a("v_cvt_pk_bf16_f32 v48, v68, v69\n v_cvt_pk_bf16_f32 v49, v70, v71\n v_min_u32 v48, -2, v48\n v_min_u32 v49, -2, v49")
    for i in range(4): a(f"v_cvt_pk_bf16_f32 v{44+i}, v{60+2*i}, v{61+2*i}")
    for i in range(4): a(f"v_min_u32 v{44+i}, -2, v{44+i}")
    a("buffer_store_dwordx4 v[44:47], v38, s[20:23], s58 offen sc1")
    a("s_mov_b32 exec_lo, 0x000f000f\n s_mov_b32 exec_hi, 0x000f000f")
    a("buffer_store_dwordx2 v[48:49], v39, s[20:23], s58 offen sc1")
    stamp(10); flush(); dump()
    a("s_endpgm")

    pend[:] = base_pend
    a("L_R:")
    a("s_cmp_eq_u32 s3, 0\n s_cbranch_scc0 L_fin\n s_cmp_lt_u32 s7, 36\n s_cbranch_scc0 L_fin")
    a("v_and_b32 v97, 1, v0\n v_cmp_eq_u32 vcc, 1, v97\n v_mov_b32 v98, 0x3f80\n v_mov_b32 v99, 0x3f800000\n v_cndmask_b32 v98, v98, v99, vcc\n v_bfe_u32 v97, v0, 1, 3")
    for d in range(4): a(f"v_cmp_eq_u32 vcc, {d}, v97\n v_cndmask_b32 v{8+d}, 0, v98, vcc")
    a("s_mul_i32 s82, s7, 7282\n s_lshr_b32 s82, s82, 16\n s_mul_i32 s83, s82, 9\n s_sub_u32 s83, s7, s83")
    a("s_lshl_b32 s58, s82, 5\n s_cmp_eq_u32 s83, 8\n s_cbranch_scc1 L_r8")
    a("v_mul_u32_u24 v28, 1152, v94\n v_bfe_u32 v98, v0, 2, 1\n v_lshl_add_u32 v28, v98, 7, v28\n v_lshl_add_u32 v28, v93, 9, v28")
    a("s_and_b32 s82, s83, 1\n s_lshl_b32 s82, s82, 8\n s_add_u32 s58, s58, s82\n s_lshr_b32 s82, s83, 1\n s_lshl_b32 s82, s82, 3\n s_add_u32 s58, s58, s82\n s_branch L_r9")
    a("L_r8:")
    a("v_bfe_u32 v28, v0, 1, 2\n v_mul_u32_u24 v28, 1152, v28\n v_and_b32 v98, 1, v0\n v_lshl_add_u32 v28, v98, 4, v28\n v_lshl_add_u32 v28, v93, 3, v28\n s_add_u32 s58, s58, 1024")
    a("L_r9:")
    a(f"s_mul_i32 s82, s7, 9216\n s_add_u32 s82, s82, {WS_C}\n s_add_u32 s83, s82, 4096\n s_add_u32 s59, s82, 8192\n s_mov_b32 s81, 0")
    a("L_ra:")
    for i in range(9): a(f"buffer_load_dwordx4 v[{172+4*i}:{175+4*i}], v2, s[20:23], {('s82','s83','s59')[i>>2]} offen offset:{1024*(i&3)} sc1")
    a(f"s_add_u32 s81, s81, 1\n s_cmp_gt_u32 s81, {SPIN}\n s_cbranch_scc1 L_rgo")
    a("s_waitcnt vmcnt(0)"); chk_chain(99, range(172, 208))
    a("v_cmp_eq_u32 vcc, -1, v99\n s_cbranch_vccnz L_ra")
    a("L_rgo:")
    a("s_waitcnt vmcnt(0)")
    stamp(7)
    for i in range(9): a(f"v_mfma_f32_16x16x32_bf16 v[52:55], v[8:11], v[{172+4*i}:{175+4*i}], {'0' if i == 0 else 'v[52:55]'}")
    for i in range(4): a(f"v_add_f32_dpp v{52+i}, v{52+i}, v{52+i} row_ror:8 {DPP}")
    a("v_cvt_pk_bf16_f32 v52, v52, v53\n v_cvt_pk_bf16_f32 v53, v54, v55")
    a("s_mov_b64 exec, 0x00ff00ff\n buffer_store_dwordx2 v[52:53], v28, s[36:39], s58 offen")
    a(f"s_cmp_eq_u32 s7, 0\n s_cbranch_scc0 L_rend\n v_mov_b32 v54, s54\n v_mov_b32 v55, {WS_EP}\n s_mov_b64 exec, 1\n buffer_store_dword v54, v55, s[20:23], 0 offen sc1")
    a("L_rend:")
    stamp(8); flush(); dump()
    a("s_endpgm")
    pend[:] = base_pend
    a("L_fin:")
    flush(); dump()
    a("L_end:")
    body = a.finish()
    return f"""{HEADER}; @launch grid=(256,1,1) block=(256,1,1) lds={LDS_BYTES}
.amdgcn_target "amdgcn-amd-amdhsa--gfx950"
.text
.globl {KN}
.p2align 8
.type {KN},@function
{KN}:
{body}
    s_endpgm
.section .rodata,"a"
.p2align 6
.amdhsa_kernel {KN}
  .amdhsa_next_free_vgpr 512
  .amdhsa_next_free_sgpr 102
  .amdhsa_accum_offset 256
  .amdhsa_group_segment_fixed_size 0
  .amdhsa_kernarg_size 96
  .amdhsa_user_sgpr_count 2
  .amdhsa_user_sgpr_kernarg_segment_ptr 1
  .amdhsa_system_sgpr_workgroup_id_x 1
.end_amdhsa_kernel
"""

if __name__ == "__main__":
    out = sys.argv[1]
    kw = {}
    for x in sys.argv[2:]:
        k, v = x.split("=")
        kw[k] = int(v) if v.lstrip("-").isdigit() else v
    open(out, "w").write(gen(**kw))
```

```python
import sys, struct
from asmlib import Asm

KN = "sequential_preLN__sliding_block_cached__geglu_ffn__decode_kernel"
HEADER = open("sequential_preLN__sliding_block_cached__geglu_ffn__decode.s.ref").read().split("; Override launch")[0] \
    if len(sys.argv) and __name__ == "__main__" else ""

def f2u(x): return struct.unpack("<I", struct.pack("<f", x))[0]

WS_Q   = 0x0
WS_EP  = 0x10000
WS_ST  = 0x11000
WS_A   = WS_ST + 2048
WS_B   = WS_A + 131072
WS_C   = WS_B + 36864
WS_END = WS_C + 331776
WS_DIAG = 0x100000
R0, R1 = 0, 73728
IMG = 147456; IMG_T = 272
CMB = 152576
ST  = 156672
HST = 156800
ACT = 157440
ZER = ACT + 512
LDS_BYTES = ZER + 512
OIM = R1
SPIN = 1 << 18

DPP = "row_mask:0xf bank_mask:0xf"

def gen(diag=False, NK1=12, QPOLL=4, NT="nt", probe=-1):
    a = Asm()
    pend = []
    if NT == "none": NT = ""
    def stamp(i):
        if probe >= 0:
            if i == 0: a("s_memrealtime s[84:85]")
            if i == probe: a("s_memrealtime s[86:87]")
        if not diag: return
        p = 84 + 2 * (len(pend))
        assert p <= 100
        a(f"s_memrealtime s[{p}:{p+1}]"); pend.append((i, p))
    def flush(keep=False):
        if not diag: return
        a("s_waitcnt lgkmcnt(0)")
        for i, p in pend: a(f"v_writelane_b32 v255, s{p}, {i}")
        if not keep: pend.clear()
    def dump():
        if not diag: return
        a("s_mov_b64 exec, -1")
        a("s_lshl_b32 s74, s2, 2\n s_add_u32 s74, s74, s3\n s_lshl_b32 s74, s74, 8")
        a(f"s_add_u32 s74, s74, {WS_DIAG}")
        a("v_lshlrev_b32 v254, 2, v0")
        a("s_mov_b32 s22, 0x200000")
        a("buffer_store_dword v255, v254, s[20:23], s74 offen")
    def srd(d, p, n):
        a(f"s_mov_b32 s{d}, s{p}\n s_mov_b32 s{d+1}, s{p+1}\n s_mov_b32 s{d+2}, {n}\n s_mov_b32 s{d+3}, 0x20000")
    def rowred(regs, op):
        for ctl in ("quad_perm:[1,0,3,2]", "quad_perm:[2,3,0,1]", "row_half_mirror", "row_mirror"):
            for r in regs: a(f"{op}_dpp v{r}, v{r}, v{r} {ctl} {DPP}")
    def xrow(r, t, op):
        for sw in ("v_permlane16_swap_b32", "v_permlane32_swap_b32"):
            a(f"v_mov_b32 v{t}, v{r}\n {sw} v{r}, v{t}\n {op} v{r}, v{r}, v{t}")
    def rnd(r):
        a(f"v_cvt_pk_bf16_f32 v{r}, v{r}, v{r}\n v_and_b32 v{r}, s78, v{r}")
    def chk_chain(acc, regs):
        regs = list(regs)
        a(f"v_max3_u32 v{acc}, v{regs[0]}, v{regs[1]}, v{regs[2]}"); regs = regs[3:]
        while len(regs) >= 2:
            a(f"v_max3_u32 v{acc}, v{regs[0]}, v{regs[1]}, v{acc}"); regs = regs[2:]
        if regs: a(f"v_max_u32 v{acc}, v{regs[0]}, v{acc}")

    a("s_cmp_ge_u32 s2, 256\n s_cbranch_scc1 L_end")
    a("s_load_dwordx16 s[44:59], s[0:1], 0\n s_load_dwordx8 s[60:67], s[0:1], 64")
    if diag:
        for r in range(86, 102, 2): a(f"s_mov_b64 s[{r}:{r+1}], 0")
    stamp(0)
    a("v_lshrrev_b32 v1, 6, v0\n v_and_b32 v0, 63, v0")
    if diag: a("v_mov_b32 v255, 0")
    a("v_readfirstlane_b32 s3, v1")
    a("s_and_b32 s4, s2, 7\n s_lshr_b32 s5, s2, 3")
    a("s_lshr_b32 s76, s5, 4\n s_lshl_b32 s74, s4, 1\n s_add_u32 s76, s76, s74")
    a("s_and_b32 s77, s5, 15")
    a(f"s_mov_b32 s78, 0xffff0000\n s_mov_b32 s79, {f2u(128 ** -0.5):#x}\n s_mov_b32 s80, {f2u(1.4426950408889634):#x}")
    a("s_movk_i32 s69, 0x7fff")
    a("s_lshl_b32 s70, s2, 2\n s_add_u32 s70, s70, s3\n s_mul_i32 s70, s70, 0x9E3779B1\n s_lshr_b32 s70, s70, 27\n s_lshl_b32 s70, s70, 10")
    a("s_mul_i32 s75, s3, 9216\n s_movk_i32 s74, 1152\n s_mov_b32 s71, 36864")
    a("s_cmp_lt_u32 s5, 8\n s_cbranch_scc1 L_dq\n s_cmp_lt_u32 s5, 17\n s_cbranch_scc1 L_dw\n s_cmp_lt_u32 s5, 26\n s_cbranch_scc1 L_df")
    a("s_mov_b32 s6, 3\n s_sub_u32 s7, s5, 26\n s_lshl_b32 s7, s7, 3\n s_add_u32 s7, s7, s4\n s_mov_b32 s72, 0\n s_mov_b32 s73, 0\n s_branch L_dd")
    a("L_dq:")
    a("s_mov_b32 s6, 0\n s_lshl_b32 s7, s4, 3\n s_add_u32 s7, s7, s5\n s_movk_i32 s74, 8192\n s_mov_b32 s71, 262144\n s_mov_b32 s72, 262144")
    a("s_lshl_b32 s73, s7, 7\n s_lshl_b32 s75, s3, 16\n s_branch L_dd")
    a("L_dw:")
    a("s_mov_b32 s6, 1\n s_sub_u32 s7, s5, 8\n s_mov_b32 s72, 36864\n s_mul_i32 s73, s4, 589824\n s_lshl_b32 s82, s7, 7\n s_add_u32 s73, s73, s82\n s_branch L_dd")
    a("L_df:")
    a(f"s_mov_b32 s6, 2\n s_mul_i32 s7, s4, 9\n s_add_u32 s7, s7, s5\n s_sub_u32 s7, s7, 17\n s_mov_b32 s72, {(128 - 36864) & 0xffffffff:#x}\n s_mul_i32 s73, s7, 73728")
    a("L_dd:")
    a("s_add_u32 s73, s73, s75")
    a("v_lshlrev_b32 v2, 4, v0")
    a("v_bfe_u32 v92, v0, 2, 2\n v_lshrrev_b32 v93, 4, v0\n v_and_b32 v94, 3, v0")
    a("v_lshlrev_b32 v1, 8, v92\n v_lshl_add_u32 v1, v93, 6, v1\n v_lshl_add_u32 v1, v94, 4, v1")
    a("s_and_b32 s82, s3, 1\n s_lshl_b32 s82, s82, 2")
    a("v_lshrrev_b32 v96, 3, v0\n v_and_b32 v95, 2, v96\n v_or_b32 v95, s82, v95\n v_and_b32 v97, 7, v0\n v_xor_b32 v95, v95, v97\n v_lshlrev_b32 v95, 4, v95")
    a("v_mad_u32_u24 v3, v96, s74, v95")
    a("s_movk_i32 s82, 9216\n v_mad_u32_u24 v6, v96, s82, v95")
    a("v_lshrrev_b32 v97, 1, v92\n v_and_b32 v98, 1, v93\n v_lshl_or_b32 v97, v98, 1, v97\n v_xor_b32 v97, s3, v97")
    a("v_lshl_add_u32 v4, v93, 3, v92\n v_lshlrev_b32 v4, 7, v4\n v_lshl_add_u32 v4, v97, 5, v4\n v_lshl_add_u32 v4, v94, 3, v4\n v_add_u32 v5, 36864, v4")
    a("s_lshr_b32 s82, s77, 2\n s_lshl_b32 s82, s82, 4\n s_add_u32 s82, s82, s76\n s_lshl_b32 s82, s82, 21")
    a(f"s_and_b32 s83, s77, 3\n s_lshl_b32 s83, s83, 2\n s_add_u32 s83, s83, s3\n s_lshl_b32 s83, s83, 15\n s_add_u32 s82, s82, s83\n s_add_u32 s82, s82, {6144*256}")
    a("s_lshl_b32 s83, s3, 10\n s_mov_b32 m0, s83")
    a("s_waitcnt lgkmcnt(0)")
    a(f"s_load_dword s54, s[66:67], {WS_EP}")
    a("s_add_u32 s8, s46, s82\n s_addc_u32 s9, s47, 0\n s_mov_b32 s10, 32768\n s_mov_b32 s11, 0x20000")
    a("s_add_u32 s12, s48, s82\n s_addc_u32 s13, s49, 0\n s_mov_b32 s14, 32768\n s_mov_b32 s15, 0x20000")
    a("s_cmp_eq_u32 s6, 0\n s_cselect_b64 s[16:17], s[50:51], s[52:53]\n s_cmp_eq_u32 s6, 2\n s_cselect_b64 s[16:17], s[60:61], s[16:17]")
    a("s_mov_b32 s18, 4718592\n s_cselect_b32 s18, 5308416, s18\n s_mov_b32 s19, 0x20000")
    srd(20, 66, WS_END); srd(24, 44, 4608); srd(28, 56, 5308416); srd(32, 58, 5308416); srd(36, 62, 4608); srd(40, 64, 256)

    a("s_cmp_eq_u32 s6, 3\n s_cbranch_scc1 L_rclr\n s_cmp_eq_u32 s6, 1\n s_cbranch_scc1 L_dma\n s_cmp_eq_u32 s6, 2\n s_cbranch_scc1 L_fx")
    a("v_cmp_gt_u32 vcc, 36, v0\n v_mov_b32 v97, 0x10000\n v_cndmask_b32 v97, v97, v2, vcc\n s_mul_i32 s82, s3, 1152")
    a("buffer_load_dwordx4 v[188:191], v97, s[24:27], s82 offen\n buffer_load_dwordx4 v[192:195], v97, s[24:27], s82 offen offset:576")
    a("s_branch L_dma")
    a("L_rclr:")
    a("v_mov_b32 v188, -1\n v_mov_b32 v189, -1\n v_mov_b32 v190, -1\n v_mov_b32 v191, -1")
    a(f"s_lshl_b32 s82, s7, 2\n s_add_u32 s82, s82, s3\n s_mul_i32 s82, s82, 3072\n s_add_u32 s82, s82, {WS_ST}")
    for i in range(3): a(f"buffer_store_dwordx4 v[188:191], v2, s[20:23], s82 offen offset:{1024*i} sc1")
    a("s_branch L_kld")
    a("L_fx:")
    a("v_bfe_u32 v97, v0, 1, 2\n v_mul_u32_u24 v97, 1152, v97")
    a("v_bfe_u32 v98, v0, 5, 1\n v_lshl_add_u32 v97, v98, 6, v97\n v_bfe_u32 v98, v0, 3, 1\n v_lshl_add_u32 v97, v98, 5, v97")
    a("v_and_b32 v98, 1, v0\n v_lshl_add_u32 v97, v98, 4, v97\n v_bfe_u32 v98, v0, 4, 1\n v_lshl_add_u32 v97, v98, 3, v97")
    a("s_lshl_b32 s82, s3, 7")
    a("buffer_load_dwordx2 v[188:189], v97, s[24:27], s82 offen\n buffer_load_dwordx2 v[190:191], v97, s[24:27], s82 offen offset:512")
    a("buffer_load_dwordx2 v[192:193], v97, s[24:27], 0 offen offset:1024")
    a("L_dma:")
    for n in range(18):
        if n == 16: a("s_cmp_eq_u32 s6, 1\n s_cbranch_scc1 L_kld")
        a(f"buffer_load_dwordx4 v3, s[16:19], s73 offen {NT} lds")
        if n < 17: a(f"s_addk_i32 m0, 0x1000\n s_add_u32 s73, s73, s{71 + (n & 1)}")
    a("L_kld:")
    a("s_mov_b32 s68, s70")
    def kvload(kind, i):
        if kind == "k": a(f"buffer_load_dwordx4 a[{4*i}:{4*i+3}], v1, s[8:11], s68 offen {NT}")
        else:           a(f"buffer_load_dwordx4 a[{128+4*i}:{131+4*i}], v2, s[12:15], s68 offen {NT}")
        a("s_addk_i32 s68, 0x400\n s_and_b32 s68, s68, s69")
    for i in range(NK1): kvload("k", i)

    a("s_cmp_eq_u32 s6, 0\n s_cbranch_scc0 L_early")
    a(f"s_waitcnt vmcnt({18 + NK1})")
    for i in range(8):
        a(f"v_lshlrev_b32 v{172+2*i}, 16, v{188+i}\n v_and_b32 v{173+2*i}, s78, v{188+i}")
    a("v_add_f32 v196, v172, v173")
    for i in range(2, 16): a(f"v_add_f32 v196, v196, v{172+i}")
    rowred([196], "v_add_f32"); xrow(196, 197, "v_add_f32")
    a(f"v_mul_f32 v196, {f2u(1/576):#x}, v196")
    a("v_sub_f32 v198, v172, v196\n v_mul_f32 v197, v198, v198")
    for i in range(1, 16): a(f"v_sub_f32 v198, v{172+i}, v196\n v_fmac_f32 v197, v198, v198")
    a("v_cmp_gt_u32 vcc, 36, v0\n v_cndmask_b32 v197, 0, v197, vcc")
    rowred([197], "v_add_f32"); xrow(197, 198, "v_add_f32")
    a(f"v_mul_f32 v197, {f2u(1/576):#x}, v197")
    rnd(196); rnd(197)
    a(f"v_add_f32 v197, {f2u(1e-5):#x}, v197"); rnd(197)
    a("v_sqrt_f32 v197, v197"); rnd(197)
    a("v_rcp_f32 v197, v197")
    for i in range(8):
        lo, hi = 172 + 2*i, 173 + 2*i
        a(f"v_sub_f32 v{lo}, v{lo}, v196\n v_sub_f32 v{hi}, v{hi}, v196\n v_cvt_pk_bf16_f32 v198, v{lo}, v{hi}")
        a(f"v_lshlrev_b32 v{lo}, 16, v198\n v_and_b32 v{hi}, s78, v198\n v_mul_f32 v{lo}, v{lo}, v197\n v_mul_f32 v{hi}, v{hi}, v197")
        a(f"v_cvt_pk_bf16_f32 v{188+i}, v{lo}, v{hi}")
    a(f"v_lshrrev_b32 v198, 2, v0\n v_mul_u32_u24 v198, {IMG_T}, v198\n v_lshl_add_u32 v198, v94, 6, v198")
    a(f"s_lshl_b32 s82, s3, 4\n s_add_u32 s82, s82, {IMG}\n v_add_u32 v198, s82, v198")
    a("s_mov_b64 exec, vcc")
    a(f"ds_write_b128 v198, v[188:191]\n ds_write_b128 v198, v[192:195] offset:{9*IMG_T}")
    a("s_mov_b64 exec, -1")
    a("L_early:")
    a(f"s_waitcnt vmcnt({NK1}) lgkmcnt(0)\n s_barrier\n s_add_u32 s54, s54, 1")
    stamp(1)
    a("s_cmp_eq_u32 s6, 3\n s_cbranch_scc0 L_etr")
    a("s_add_u32 s82, s7, 64\n v_mov_b32 v97, 1\n v_mov_b32 v98, 0\n s_cmp_eq_u32 s3, 0\n s_cbranch_scc0 L_k2")
    a("s_mov_b64 exec, 1\n buffer_store_byte v97, v98, s[40:43], s82 offen sc1\n s_mov_b64 exec, -1\n s_branch L_k2")
    a("L_etr:")
    def trread(dst, base_lo, base_hi, t, extra=0):
        b, off = (base_lo, t * 4096) if t < 9 else (base_hi, (t - 9) * 4096)
        k, n = dst
        a(f"ds_read_b64_tr_b16 {k}[{n}:{n+1}], v{b} offset:{off}\n ds_read_b64_tr_b16 {k}[{n+2}:{n+3}], v{b} offset:{off+512}")
    for t in range(18): trread(("v", 100 + 4*t), 4, 5, t)
    a("s_cmp_eq_u32 s6, 0\n s_cbranch_scc0 L_k2")
    a(f"v_lshl_add_u32 v198, v93, 2, v94\n v_lshlrev_b32 v198, 4, v198\n v_add_u32 v198, {IMG}, v198")
    for t in range(18): a(f"ds_read_b128 v[{20+4*t}:{23+4*t}], v198 offset:{t*IMG_T}")
    a("s_waitcnt lgkmcnt(0)")
    for t in range(18):
        a(f"v_mfma_f32_16x16x32_bf16 v[16:19], v[{100+4*t}:{103+4*t}], v[{20+4*t}:{23+4*t}], {'0' if t == 0 else 'v[16:19]'}")
    a("v_lshlrev_b32 v198, 14, v94\n v_lshl_add_u32 v198, v93, 4, v198")
    a("s_lshl_b32 s82, s7, 8\n s_lshl_b32 s83, s3, 6\n s_add_u32 s82, s82, s83")
    a("v_cvt_pk_bf16_f32 v16, v16, v17\n v_cvt_pk_bf16_f32 v18, v18, v19\n v_mov_b32 v17, s54\n v_mov_b32 v19, s54")
    a("s_mov_b32 exec_lo, 0x000f000f\n s_mov_b32 exec_hi, 0x000f000f")
    a("buffer_store_dwordx4 v[16:19], v198, s[20:23], s82 offen sc1")
    a("s_mov_b64 exec, -1")
    stamp(11)
    a("L_k2:")
    for i in range(NK1, 32): kvload("k", i)
    for i in range(QPOLL): kvload("v", i)

    a("v_bfe_u32 v62, v0, 2, 1\n v_lshlrev_b32 v62, 9, v62\n v_lshl_add_u32 v62, v93, 7, v62\n v_lshl_add_u32 v62, v94, 5, v62")
    a("v_min_u32 v63, 11, v0\n v_lshlrev_b32 v63, 2, v63")
    a("s_lshr_b32 s82, s77, 2\n s_lshl_b32 s82, s82, 14\n s_lshl_b32 s83, s76, 10\n s_add_u32 s82, s82, s83")
    def qpass():
        a("buffer_load_dword v60, v63, s[40:43], 0 offen offset:64 sc1")
        a("buffer_load_dwordx4 v[52:55], v62, s[20:23], s82 offen sc1\n buffer_load_dwordx4 v[56:59], v62, s[20:23], s82 offen offset:16 sc1")
    stamp(2)
    qpass()
    nv = QPOLL
    for i in range(10): kvload("v", nv); nv += 1
    a("v_and_b32 v97, 1, v0\n v_cmp_eq_u32 vcc, 1, v97\n v_mov_b32 v98, 0xffff\n v_mov_b32 v99, s78\n v_cndmask_b32 v98, v98, v99, vcc")
    a("v_bfe_u32 v97, v0, 3, 1\n v_bfe_u32 v99, v0, 1, 1\n v_lshl_or_b32 v97, v97, 1, v99")
    for d in range(4): a(f"v_cmp_eq_u32 vcc, {d}, v97\n v_cndmask_b32 v{12+d}, 0, v98, vcc")
    a("v_mov_b32 v7, 0xff800000\n s_mov_b32 s81, 0")
    a("s_waitcnt vmcnt(10)\n s_branch L_qchk")
    a("L_qpoll:")
    qpass()
    a(f"s_add_u32 s81, s81, 1\n s_cmp_gt_u32 s81, {SPIN}\n s_waitcnt vmcnt(0)\n s_cbranch_scc1 L_qgo")
    a("L_qchk:")
    a("v_xor_b32 v60, 0x01010101, v60")
    for r in (53, 55, 57, 59): a(f"v_xor_b32 v{r}, s54, v{r}")
    a("v_or3_b32 v60, v60, v53, v55\n v_or3_b32 v60, v60, v57, v59\n v_cmp_ne_u32 vcc, 0, v60\n s_cbranch_vccnz L_qpoll")
    a("L_qgo:")
    a("v_mov_b32 v8, v52\n v_mov_b32 v9, v54\n v_mov_b32 v10, v56\n v_mov_b32 v11, v58")
    stamp(3)
    def qk(gi):
        for q in range(4):
            d = 52 + 16 * (gi & 1) + 4 * q; k = 16 * gi + 4 * q
            a(f"v_mfma_f32_16x16x32_bf16 v[{d}:{d+3}], a[{k}:{k+3}], v[8:11], 0")
    qk(0)
    for gi in range(8):
        if gi < 7: qk(gi + 1)
        D = 52 + 16 * (gi & 1); T = 20 + 4 * gi
        for u in range(4):
            for q in range(4):
                if u == 0: a(f"v_mov_b32_dpp v{T+q}, v{D+4*q} quad_perm:[0,0,0,0] {DPP}")
                else:      a(f"v_add_f32_dpp v{T+q}, v{D+4*q+u}, v{T+q} quad_perm:[{u},{u},{u},{u}] {DPP}")
        a(f"v_max3_f32 v7, v{T}, v{T+1}, v7\n v_max3_f32 v7, v{T+2}, v{T+3}, v7")
        for rep in range(2):
            a(f"v_cvt_pk_bf16_f32 v97, v{T}, v{T+1}\n v_cvt_pk_bf16_f32 v98, v{T+2}, v{T+3}")
            a(f"v_lshlrev_b32 v{T}, 16, v97\n v_and_b32 v{T+1}, s78, v97\n v_lshlrev_b32 v{T+2}, 16, v98\n v_and_b32 v{T+3}, s78, v98")
            if rep == 0:
                for q in range(4): a(f"v_mul_f32 v{T+q}, s79, v{T+q}")
        if gi & 1: kvload("v", nv); nv += 1
    xrow(7, 97, "v_max_f32")
    rnd(7); a("v_mul_f32 v7, s79, v7"); rnd(7)
    a("v_mul_f32 v52, s80, v7")
    for i in range(32): a(f"v_fma_f32 v{20+i}, v{20+i}, s80, -v52")
    kvload("v", nv); nv += 1
    for i in range(32):
        a(f"v_exp_f32 v{20+i}, v{20+i}")
        if i == 2: a("v_add_f32 v53, v20, v21")
        if i > 2:  a(f"v_add_f32 v53, v53, v{19+i}")
    a("v_add_f32 v53, v53, v51")
    kvload("v", nv); nv += 1
    xrow(53, 97, "v_add_f32")
    a(f"v_bfe_u32 v97, v0, 2, 1\n v_lshlrev_b32 v97, 5, v97\n s_lshl_b32 s82, s3, 3\n s_add_u32 s82, s82, {ST}\n v_add_u32 v97, s82, v97")
    a("s_mov_b64 exec, 0x11\n ds_write_b64 v97, v[52:53]\n s_mov_b64 exec, -1")
    stamp(4); flush()
    def pbuild(i):
        P = 84 + 4 * (i & 1)
        a(f"v_cvt_pk_bf16_f32 v99, v{20+i}, v{20+i}")
        for d in range(4): a(f"v_and_b32 v{P+d}, v99, v{12+d}")
    def pv(i):
        P = 84 + 4 * (i & 1)
        a(f"v_mfma_f32_16x16x32_bf16 v[16:19], v[{P}:{P+3}], a[{128+4*i}:{131+4*i}], {'0' if i == 0 else 'v[16:19]'}")
    LAG = 11
    done = nv - LAG
    a(f"s_waitcnt vmcnt({LAG})")
    pbuild(0)
    for i in range(done):
        pbuild(i + 1); pv(i)
    a("s_waitcnt lgkmcnt(0)\n s_barrier")
    a(f"v_and_b32 v97, 1, v93\n v_lshlrev_b32 v97, 5, v97\n v_add_u32 v98, s82, v97\n v_add_u32 v97, {ST}, v97")
    a("ds_read_b128 v[56:59], v97\n ds_read_b128 v[60:63], v97 offset:16\n ds_read_b32 v64, v98")
    kvload("v", nv); nv += 1
    a("s_waitcnt lgkmcnt(0)")
    a("v_max3_f32 v65, v56, v58, v60\n v_max_f32 v65, v65, v62")
    for r in (56, 58, 60, 62, 64): a(f"v_sub_f32 v{r}, v{r}, v65")
    for r in (56, 58, 60, 62, 64): a(f"v_exp_f32 v{r}, v{r}")
    a("v_mul_f32 v66, v56, v57\n v_fmac_f32 v66, v58, v59\n v_fmac_f32 v66, v60, v61\n v_fmac_f32 v66, v62, v63")
    a("v_rcp_f32 v67, v66\n v_log_f32 v66, v66")
    a("v_mul_f32 v7, v64, v67")
    a("v_add_f32 v66, v66, v65\n v_min_u32 v66, -2, v66")
    a("s_cmp_eq_u32 s3, 0\n s_cbranch_scc0 L_nolse")
    a(f"s_lshl_b32 s82, s4, 8\n s_lshl_b32 s83, s77, 4\n s_add_u32 s82, s82, s83\n s_and_b32 s83, s76, 1\n s_lshl_b32 s83, s83, 3\n s_add_u32 s82, s82, s83\n s_add_u32 s82, s82, {WS_ST}")
    a("v_lshlrev_b32 v97, 2, v93\n s_mov_b64 exec, 0x10001\n buffer_store_dword v66, v97, s[20:23], s82 offen sc1\n s_mov_b64 exec, -1")
    a("L_nolse:")
    a(f"s_waitcnt vmcnt({LAG})"); pv(done); done += 1
    while nv < 32:
        kvload("v", nv); nv += 1
        pbuild(done); a(f"s_waitcnt vmcnt({LAG})"); pv(done); done += 1
    a(f"s_lshl_b32 s82, s76, 13\n s_lshl_b32 s83, s77, 8\n s_add_u32 s82, s82, s83\n s_add_u32 s57, s82, {WS_A}")
    a("v_and_b32 v97, 15, v0\n v_lshlrev_b32 v97, 4, v97\n v_lshl_add_u32 v97, v93, 12, v97")
    a(f"s_lshl_b32 s82, s3, 10\n s_add_u32 s82, s82, {CMB}\n v_add_u32 v98, s82, v2")
    a("s_cmp_eq_u32 s6, 2\n s_cbranch_scc1 L_ftail")
    for i in range(done, 32):
        pbuild(i); a(f"s_waitcnt vmcnt({31 - i})"); pv(i)
    a("s_branch L_comb")
    a("L_ftail:")
    a("s_lshl_b32 s73, s7, 7\n s_mul_i32 s82, s3, 73728\n s_add_u32 s73, s73, s82\n s_mov_b32 s58, s73\n s_lshl_b32 s82, s3, 10\n s_mov_b32 m0, s82")
    def late(n):
        s = 28 if n < 18 else 32
        a(f"buffer_load_dwordx4 v6, s[{s}:{s+3}], s73 offen {NT} lds")
        a("s_addk_i32 m0, 0x1000")
        if n == 17: a("s_mov_b32 s73, s58")
        else:       a("s_add_u32 s73, s73, 294912")
    nl = 0
    for i in range(done, 32):
        late(nl); nl += 1
        pbuild(i); a(f"s_waitcnt vmcnt({31 - i + nl})"); pv(i)
    a("L_comb:")
    stamp(5)
    for i in range(4): a(f"v_mul_f32 v{16+i}, v{16+i}, v7")
    a("ds_write_b128 v98, v[16:19]\n s_waitcnt lgkmcnt(0)\n s_barrier")
    a("s_cmp_eq_u32 s3, 0\n s_cbranch_scc0 L_pubd")
    for w in range(1, 4): a(f"ds_read_b128 v[{52+4*w}:{55+4*w}], v98 offset:{1024*w}")
    a("s_waitcnt lgkmcnt(0)")
    for w in range(1, 4):
        a(f"v_pk_add_f32 v[16:17], v[16:17], v[{52+4*w}:{53+4*w}]\n v_pk_add_f32 v[18:19], v[18:19], v[{54+4*w}:{55+4*w}]")
    a("v_cvt_pk_bf16_f32 v16, v16, v17\n v_cvt_pk_bf16_f32 v17, v18, v19\n v_min_u32 v16, -2, v16\n v_min_u32 v17, -2, v17")
    a("v_permlane32_swap_b32 v16, v18\n v_permlane32_swap_b32 v17, v19")
    a("s_mov_b32 exec_hi, 0\n buffer_store_dwordx4 v[16:19], v97, s[20:23], s57 offen sc1\n s_mov_b64 exec, -1")
    a("L_pubd:")
    stamp(6)
    base_pend = list(pend)
    a("s_cmp_eq_u32 s6, 2\n s_cbranch_scc1 L_F\n s_cmp_eq_u32 s6, 3\n s_cbranch_scc1 L_R\n s_cmp_eq_u32 s6, 1\n s_cbranch_scc0 L_fin")

    a(f"v_and_b32 v97, 15, v0\n v_lshlrev_b32 v98, 4, v97\n s_lshl_b32 s82, s4, 8\n s_add_u32 s82, s82, {WS_ST}\n s_mov_b32 s81, 0")
    a(f"s_lshl_b32 s83, s4, 2\n s_add_u32 s83, s83, s3\n s_lshl_b32 s83, s83, 12\n s_add_u32 s83, s83, {WS_A}")
    a("L_wst:")
    a("buffer_load_dwordx4 v[20:23], v98, s[20:23], s82 offen sc1")
    a(f"s_add_u32 s81, s81, 1\n s_cmp_gt_u32 s81, {SPIN}\n s_cbranch_scc1 L_wst2")
    a("s_waitcnt vmcnt(0)"); chk_chain(99, range(20, 24))
    a("v_cmp_eq_u32 vcc, -1, v99\n s_cbranch_vccnz L_wst")
    a("L_wst2:")
    a("s_waitcnt vmcnt(0)")
    for i in range(4): a(f"buffer_load_dwordx4 v[{172+4*i}:{175+4*i}], v2, s[20:23], s83 offen offset:{1024*i} sc1")
    for hh in range(4): a(f"v_max_f32_dpp v{24+hh}, v{20+hh}, v{20+hh} quad_perm:[1,0,3,2] {DPP}")
    for hh in range(4): a(f"v_max_f32_dpp v{24+hh}, v{24+hh}, v{24+hh} quad_perm:[2,3,0,1] {DPP}")
    for hh in range(4): a(f"v_sub_f32 v{20+hh}, v{20+hh}, v{24+hh}")
    for hh in range(4): a(f"v_exp_f32 v{20+hh}, v{20+hh}")
    for hh in range(4): a(f"v_add_f32_dpp v{24+hh}, v{20+hh}, v{20+hh} quad_perm:[1,0,3,2] {DPP}")
    for hh in range(4): a(f"v_add_f32_dpp v{24+hh}, v{24+hh}, v{24+hh} quad_perm:[2,3,0,1] {DPP}")
    for hh in range(4): a(f"v_rcp_f32 v{24+hh}, v{24+hh}")
    for hh in range(4): a(f"v_mul_f32 v{20+hh}, v{20+hh}, v{24+hh}")
    a(f"v_and_b32 v28, 7, v0\n v_xor_b32 v28, v28, v93\n v_lshlrev_b32 v28, 4, v28\n v_lshl_add_u32 v28, v97, 8, v28")
    a(f"s_lshl_b32 s82, s3, 12\n s_add_u32 s82, s82, {OIM}\n v_add_u32 v28, s82, v28\n v_xor_b32 v29, 64, v28")
    a(f"v_xor_b32 v30, v97, v93\n v_lshlrev_b32 v30, 4, v30\n v_lshl_add_u32 v30, v93, 8, v30\n v_add_u32 v30, {OIM}, v30\n v_xor_b32 v31, 64, v30")
    a("v_lshlrev_b32 v32, 5, v92\n v_lshl_add_u32 v32, v93, 3, v32")
    a(f"s_lshl_b32 s82, s7, 3\n s_add_u32 s82, s82, s4\n s_lshl_b32 s82, s82, 2\n s_add_u32 s82, s82, s3\n s_lshl_b32 s82, s82, 7\n s_add_u32 s82, s82, {WS_B}")
    a("s_mov_b32 s81, 0\n s_branch L_wchk")
    a("L_wa:")
    for i in range(4): a(f"buffer_load_dwordx4 v[{172+4*i}:{175+4*i}], v2, s[20:23], s83 offen offset:{1024*i} sc1")
    a(f"s_add_u32 s81, s81, 1\n s_cmp_gt_u32 s81, {SPIN}\n s_cbranch_scc1 L_wgo")
    a("L_wchk:")
    a("s_waitcnt vmcnt(0)"); chk_chain(99, range(172, 188))
    a("v_cmp_eq_u32 vcc, -1, v99\n s_cbranch_vccnz L_wa")
    a("L_wgo:")
    a("s_waitcnt vmcnt(0)")
    stamp(7)
    for i in range(4): a(f"ds_write_b128 v{28 + (i & 1)}, v[{172+4*i}:{175+4*i}] offset:{128 * (i >> 1)}")
    a("s_waitcnt lgkmcnt(0)\n s_barrier")
    for tt in range(16): a(f"ds_read_b128 v[{188+4*tt}:{191+4*tt}], v{30 + (tt & 1)} offset:{1024*tt}")
    for tt in range(16):
        hh, t = tt >> 2, tt & 3
        a(f"s_waitcnt lgkmcnt({15 - tt})")
        a(f"v_mfma_f32_16x16x32_bf16 v[{36+4*hh}:{39+4*hh}], v[{100+4*tt}:{103+4*tt}], v[{188+4*tt}:{191+4*tt}], {'0' if t == 0 else f'v[{36+4*hh}:{39+4*hh}]'}")
    for hh in range(4):
        for i in range(4):
            a(f"v_mul_f32 v{52+i}, v{36+i}, v20" if hh == 0 else f"v_fmac_f32 v{52+i}, v{36+4*hh+i}, v{20+hh}")
    for ctl in ("quad_perm:[1,0,3,2]", "quad_perm:[2,3,0,1]"):
        for i in range(4): a(f"v_add_f32_dpp v{52+i}, v{52+i}, v{52+i} {ctl} {DPP}")
    a("v_cvt_pk_bf16_f32 v52, v52, v53\n v_cvt_pk_bf16_f32 v53, v54, v55\n v_min_u32 v52, -2, v52\n v_min_u32 v53, -2, v53")
    a("s_mov_b32 exec_lo, 0x11111111\n s_mov_b32 exec_hi, 0x11111111")
    a("buffer_store_dwordx2 v[52:53], v32, s[20:23], s82 offen sc1")
    stamp(8); flush(); dump()
    a("s_endpgm")

    pend[:] = base_pend
    a("L_F:")
    for n in range(nl, 36): late(n)
    for i in range(6): a(f"v_lshlrev_b32 v{172+2*i}, 16, v{188+i}\n v_and_b32 v{173+2*i}, s78, v{188+i}")
    a("v_mov_b32 v20, 0x3f803f80\n v_mov_b32 v21, v20\n v_mov_b32 v22, v20\n v_mov_b32 v23, v20")
    a(f"v_mul_u32_u24 v97, {IMG_T}, v0\n v_add_u32 v97, {IMG + 256}, v97\n s_mov_b64 exec, 0x3ffff\n ds_write_b128 v97, v[20:23]\n s_mov_b64 exec, -1")
    a("v_mov_b32 v24, 0\n v_mov_b32 v25, 0\n v_mov_b32 v26, 0\n v_mov_b32 v27, 0")
    a(f"v_mov_b32 v97, {ZER}\n ds_write_b128 v97, v[24:27]\n ds_write_b128 v97, v[24:27] offset:256")
    a("v_and_b32 v97, 1, v0\n v_cmp_eq_u32 vcc, 1, v97\n v_mov_b32 v98, 0x3f80\n v_mov_b32 v99, 0x3f800000\n v_cndmask_b32 v98, v98, v99, vcc")
    a("v_bfe_u32 v97, v0, 3, 1\n v_bfe_u32 v99, v0, 4, 1\n v_cmp_eq_u32 vcc, v97, v99\n v_cndmask_b32 v98, 0, v98, vcc\n v_bfe_u32 v97, v0, 1, 2")
    for d in range(4): a(f"v_cmp_eq_u32 vcc, {d}, v97\n v_cndmask_b32 v{8+d}, 0, v98, vcc")
    a(f"v_bfe_u32 v28, v0, 5, 1\n v_mul_u32_u24 v28, {IMG_T}, v28\n v_bfe_u32 v98, v0, 3, 1\n v_lshl_add_u32 v28, v98, 7, v28")
    a("v_and_b32 v98, 1, v0\n v_lshl_add_u32 v28, v98, 6, v28\n v_lshl_add_u32 v28, v97, 4, v28\n v_bfe_u32 v98, v0, 4, 1\n v_lshl_add_u32 v28, v98, 3, v28")
    a(f"s_mul_i32 s82, s3, {2*IMG_T}\n s_add_u32 s82, s82, {IMG}\n v_add_u32 v28, s82, v28")
    a(f"v_lshlrev_b32 v29, 7, v97\n v_lshl_add_u32 v29, v93, 3, v29\n s_lshl_b32 s82, s3, 5\n s_add_u32 s82, s82, {HST}\n v_add_u32 v29, s82, v29")
    a(f"v_lshl_add_u32 v30, v93, 2, v92\n v_lshlrev_b32 v30, 4, v30\n v_mov_b32 v98, 256\n v_cmp_eq_u32 vcc, 1, v94\n v_cndmask_b32 v30, v30, v98, vcc\n v_add_u32 v30, {IMG}, v30")
    a(f"v_lshlrev_b32 v31, 3, v0\n v_add_u32 v31, {HST}, v31")
    a("v_bfe_u32 v32, v0, 3, 1\n v_lshlrev_b32 v32, 6, v32\n v_lshl_add_u32 v32, v93, 4, v32\n v_and_b32 v98, 7, v0\n v_lshl_add_u32 v32, v98, 1, v32")
    a(f"s_lshl_b32 s82, s3, 7\n s_add_u32 s82, s82, {ACT}\n v_add_u32 v32, s82, v32")
    a(f"v_lshl_add_u32 v98, v93, 2, v94\n v_lshlrev_b32 v98, 4, v98\n v_add_u32 v98, {ACT}, v98\n v_mov_b32 v99, {ZER}")
    for e in range(4): a(f"v_cmp_eq_u32 vcc, {e}, v92\n v_cndmask_b32 v{33+e}, v99, v98, vcc")
    a(f"v_mul_u32_u24 v37, {2*IMG_T}, v92\n v_bfe_u32 v98, v0, 5, 1\n v_lshl_add_u32 v37, v98, 6, v37\n v_lshl_add_u32 v37, v94, 4, v37\n v_bfe_u32 v98, v0, 4, 1\n v_lshl_add_u32 v37, v98, 3, v37")
    a(f"s_lshr_b32 s82, s3, 1\n s_mul_i32 s82, s82, {IMG_T}\n s_and_b32 s83, s3, 1\n s_lshl_b32 s83, s83, 7\n s_add_u32 s82, s82, s83\n s_add_u32 s82, s82, {IMG}\n v_add_u32 v37, s82, v37")
    a("v_lshrrev_b32 v38, 3, v0\n v_mul_u32_u24 v38, 9216, v38\n v_and_b32 v98, 7, v0\n v_lshl_add_u32 v38, v98, 4, v38")
    a(f"v_lshlrev_b32 v39, 5, v94\n v_lshl_add_u32 v39, v93, 3, v39\n v_add_u32 v39, {8*9216}, v39")
    a(f"s_mul_i32 s58, s3, {9*9216}\n s_lshl_b32 s82, s7, 7\n s_add_u32 s58, s58, s82\n s_add_u32 s58, s58, {WS_C}")
    a(f"s_lshl_b32 s82, s3, 12\n s_add_u32 s82, s82, {WS_B}\n s_add_u32 s83, s82, 16384\n s_mov_b32 s59, {WS_B + 32768}")
    a(f"v_add_u32 v40, {R1}, v4\n v_add_u32 v41, {R1}, v5")
    a("s_waitcnt vmcnt(18) lgkmcnt(0)\n s_barrier")
    for t in range(18): trread(("a", 4*t), 4, 5, t)
    a("s_waitcnt vmcnt(0)\n s_barrier")
    stamp(7)
    def bpass():
        for blk, so in ((0, "s82"), (1, "s83")):
            for p in range(4): a(f"buffer_load_dwordx4 v[{188+16*blk+4*p}:{191+16*blk+4*p}], v2, s[20:23], {so} offen offset:{1024*p} sc1")
        lab = a.label("L_fb")
        a(f"s_cmp_eq_u32 s3, 0\n s_cbranch_scc0 {lab}")
        for p in range(4): a(f"buffer_load_dwordx4 v[{220+4*p}:{223+4*p}], v2, s[20:23], s59 offen offset:{1024*p} sc1")
        a(f"{lab}:")
    for i in range(16): a(f"v_mov_b32 v{220+i}, 0")
    a("s_cmp_eq_u32 s3, 0\n s_cbranch_scc1 L_fx8")
    for i in range(4): a(f"v_mov_b32 v{180+i}, 0")
    a("L_fx8:")
    bpass()
    for t in range(18): trread(("a", 72 + 4*t), 40, 41, t)
    a("s_mov_b32 s81, 0\n s_branch L_fchk")
    a("L_fa:")
    bpass()
    a(f"s_add_u32 s81, s81, 1\n s_cmp_gt_u32 s81, {SPIN}\n s_cbranch_scc1 L_fgo")
    a("L_fchk:")
    a("s_waitcnt vmcnt(0)"); chk_chain(99, range(188, 236))
    a("v_cmp_eq_u32 vcc, -1, v99\n s_cbranch_vccnz L_fa")
    a("L_fgo:")
    a("s_waitcnt vmcnt(0)")
    stamp(8)
    for p in range(4):
        for blk in range(3):
            a(f"v_mfma_f32_16x16x32_bf16 v[{172+4*blk}:{175+4*blk}], v[8:11], v[{188+16*blk+4*p}:{191+16*blk+4*p}], v[{172+4*blk}:{175+4*blk}]")
    for blk in range(3):
        d = 172 + 4 * blk
        a(f"v_cvt_pk_bf16_f32 v{44+2*blk}, v{d}, v{d+1}\n v_cvt_pk_bf16_f32 v{45+2*blk}, v{d+2}, v{d+3}")
        if blk < 2: a(f"ds_write_b64 v28, v[{44+2*blk}:{45+2*blk}] offset:{8*IMG_T*blk}")
    a(f"s_cmp_eq_u32 s3, 0\n s_cbranch_scc0 L_fw8\n ds_write_b64 v28, v[48:49] offset:{16*IMG_T}")
    a("L_fw8:")
    a("v_add_f32 v42, v172, v173\n v_mul_f32 v43, v172, v172")
    for i in range(1, 12):
        if i >= 2: a(f"v_add_f32 v42, v42, v{172+i}")
        a(f"v_fmac_f32 v43, v{172+i}, v{172+i}")
    for ctl in ("quad_perm:[1,0,3,2]", "row_ror:8"):
        for r in (42, 43): a(f"v_add_f32_dpp v{r}, v{r}, v{r} {ctl} {DPP}")
    a("ds_write_b64 v29, v[42:43]\n s_waitcnt lgkmcnt(0)\n s_barrier")
    a("ds_read_b64 v[42:43], v31")
    HF = 184
    def hread(t): a(f"ds_read_b128 v[{HF+4*(t%15)}:{HF+3+4*(t%15)}], v30 offset:{t*IMG_T}")
    for t in range(12): hread(t)
    side = []
    for ctl in ("quad_perm:[1,0,3,2]", "quad_perm:[2,3,0,1]", "row_half_mirror", "row_mirror"):
        side.append([f"v_add_f32_dpp v{r}, v{r}, v{r} {ctl} {DPP}" for r in (42, 43)])
    side.append([f"v_mul_f32 v42, {f2u(1/576):#x}, v42", f"v_mul_f32 v43, {f2u(1/576):#x}, v43"])
    side.append(["v_fma_f32 v43, -v42, v42, v43", f"v_add_f32 v43, {f2u(1e-5):#x}, v43"])
    side.append(["v_rsq_f32 v43, v43"])
    for t in range(18):
        h = HF + 4 * (t % 15)
        a(f"s_waitcnt lgkmcnt({min(11, 17 - t)})")
        a(f"v_mfma_f32_16x16x32_bf16 v[52:55], v[{h}:{h+3}], a[{4*t}:{4*t+3}], {'0' if t == 0 else 'v[52:55]'}")
        a(f"v_mfma_f32_16x16x32_bf16 v[56:59], v[{h}:{h+3}], a[{72+4*t}:{75+4*t}], {'0' if t == 0 else 'v[56:59]'}")
        if t + 12 < 18: hread(t + 12)
        if t >= 6 and side:
            for s in side.pop(0): a(s)
    for i in range(12): a(f"v_mov_b32 v{60+i}, 0")
    a("s_cmp_eq_u32 s7, 0\n s_cbranch_scc0 L_fnr")
    for k in range(3): a(f"ds_read_b64 v[{44+2*k}:{45+2*k}], v37 offset:{8*IMG_T*k}")
    a("s_waitcnt lgkmcnt(0)")
    for i in range(6): a(f"v_lshlrev_b32 v{60+2*i}, 16, v{44+i}\n v_and_b32 v{61+2*i}, s78, v{44+i}")
    a("L_fnr:")
    a("v_fma_f32 v52, -v42, v53, v52\n v_fma_f32 v56, -v42, v57, v56\n v_mul_f32 v52, v52, v43\n v_mul_f32 v56, v56, v43")
    c1 = -2 * 0.7978845608028654 * 1.4426950408889634
    a(f"v_mul_f32 v53, v52, v52\n v_mov_b32 v54, {f2u(c1):#x}\n v_fmamk_f32 v53, v53, {f2u(c1 * 0.044715):#x}, v54\n v_mul_f32 v53, v53, v52")
    a("v_exp_f32 v53, v53\n v_mul_f32 v52, v52, v56\n v_add_f32 v53, 1.0, v53\n v_rcp_f32 v53, v53\n v_mul_f32 v52, v52, v53")
    a("v_cvt_pk_bf16_f32 v52, v52, v52\n ds_write_b16 v32, v52\n s_waitcnt lgkmcnt(0)\n s_barrier")
    stamp(9)
    for e in range(4):
        for t in range(2): a(f"ds_read_b128 v[{184+8*e+4*t}:{187+8*e+4*t}], v{33+e} offset:{256*t}")
    if diag: a("s_waitcnt lgkmcnt(0)")
    for e in range(4):
        for t in range(2):
            if not diag: a(f"s_waitcnt lgkmcnt({7 - 2*e - t})")
            for acc in range(3):
                s9 = 4 * acc + e
                if s9 > 8: continue
                w = 100 + 4 * (2 * s9 + t)
                a(f"v_mfma_f32_16x16x32_bf16 v[{60+4*acc}:{63+4*acc}], v[{w}:{w+3}], v[{184+8*e+4*t}:{187+8*e+4*t}], v[{60+4*acc}:{63+4*acc}]")
    a("v_cvt_pk_bf16_f32 v48, v68, v69\n v_cvt_pk_bf16_f32 v49, v70, v71\n v_min_u32 v48, -2, v48\n v_min_u32 v49, -2, v49")
    for i in range(4): a(f"v_cvt_pk_bf16_f32 v{44+i}, v{60+2*i}, v{61+2*i}")
    for i in range(4): a(f"v_min_u32 v{44+i}, -2, v{44+i}")
    a("buffer_store_dwordx4 v[44:47], v38, s[20:23], s58 offen sc1")
    a("s_mov_b32 exec_lo, 0x000f000f\n s_mov_b32 exec_hi, 0x000f000f")
    a("buffer_store_dwordx2 v[48:49], v39, s[20:23], s58 offen sc1")
    stamp(10); flush(); dump()
    a("s_endpgm")

    pend[:] = base_pend
    a("L_R:")
    a("s_cmp_eq_u32 s3, 0\n s_cbranch_scc0 L_fin\n s_cmp_lt_u32 s7, 36\n s_cbranch_scc0 L_fin")
    a("v_and_b32 v97, 1, v0\n v_cmp_eq_u32 vcc, 1, v97\n v_mov_b32 v98, 0x3f80\n v_mov_b32 v99, 0x3f800000\n v_cndmask_b32 v98, v98, v99, vcc\n v_bfe_u32 v97, v0, 1, 3")
    for d in range(4): a(f"v_cmp_eq_u32 vcc, {d}, v97\n v_cndmask_b32 v{8+d}, 0, v98, vcc")
    a("s_mul_i32 s82, s7, 7282\n s_lshr_b32 s82, s82, 16\n s_mul_i32 s83, s82, 9\n s_sub_u32 s83, s7, s83")
    a("s_lshl_b32 s58, s82, 5\n s_cmp_eq_u32 s83, 8\n s_cbranch_scc1 L_r8")
    a("v_mul_u32_u24 v28, 1152, v94\n v_bfe_u32 v98, v0, 2, 1\n v_lshl_add_u32 v28, v98, 7, v28\n v_lshl_add_u32 v28, v93, 9, v28")
    a("s_and_b32 s82, s83, 1\n s_lshl_b32 s82, s82, 8\n s_add_u32 s58, s58, s82\n s_lshr_b32 s82, s83, 1\n s_lshl_b32 s82, s82, 3\n s_add_u32 s58, s58, s82\n s_branch L_r9")
    a("L_r8:")
    a("v_bfe_u32 v28, v0, 1, 2\n v_mul_u32_u24 v28, 1152, v28\n v_and_b32 v98, 1, v0\n v_lshl_add_u32 v28, v98, 4, v28\n v_lshl_add_u32 v28, v93, 3, v28\n s_add_u32 s58, s58, 1024")
    a("L_r9:")
    a(f"s_mul_i32 s82, s7, 9216\n s_add_u32 s82, s82, {WS_C}\n s_add_u32 s83, s82, 4096\n s_add_u32 s59, s82, 8192\n s_mov_b32 s81, 0")
    a("L_ra:")
    for i in range(9): a(f"buffer_load_dwordx4 v[{172+4*i}:{175+4*i}], v2, s[20:23], {('s82','s83','s59')[i>>2]} offen offset:{1024*(i&3)} sc1")
    a(f"s_add_u32 s81, s81, 1\n s_cmp_gt_u32 s81, {SPIN}\n s_cbranch_scc1 L_rgo")
    a("s_waitcnt vmcnt(0)"); chk_chain(99, range(172, 208))
    a("v_cmp_eq_u32 vcc, -1, v99\n s_cbranch_vccnz L_ra")
    a("L_rgo:")
    a("s_waitcnt vmcnt(0)")
    stamp(7)
    for i in range(9): a(f"v_mfma_f32_16x16x32_bf16 v[52:55], v[8:11], v[{172+4*i}:{175+4*i}], {'0' if i == 0 else 'v[52:55]'}")
    for i in range(4): a(f"v_add_f32_dpp v{52+i}, v{52+i}, v{52+i} row_ror:8 {DPP}")
    a("v_cvt_pk_bf16_f32 v52, v52, v53\n v_cvt_pk_bf16_f32 v53, v54, v55")
    a("s_mov_b64 exec, 0x00ff00ff\n buffer_store_dwordx2 v[52:53], v28, s[36:39], s58 offen")
    a(f"s_cmp_eq_u32 s7, 0\n s_cbranch_scc0 L_rend\n v_mov_b32 v54, s54\n v_mov_b32 v55, {WS_EP}\n s_mov_b64 exec, 1\n buffer_store_dword v54, v55, s[20:23], 0 offen sc1")
    a("L_rend:")
    if probe >= 0:
        if probe == 99: a("s_memrealtime s[86:87]")
        a("s_memrealtime s[88:89]\n s_waitcnt lgkmcnt(0)\n s_sub_u32 s86, s86, s84")
        a("L_probe:")
        a("s_memrealtime s[90:91]\n s_waitcnt lgkmcnt(0)\n s_sub_u32 s90, s90, s88\n s_cmp_lt_u32 s90, s86\n s_cbranch_scc1 L_probe")
    stamp(8); flush(); dump()
    a("s_endpgm")
    pend[:] = base_pend
    a("L_fin:")
    flush(); dump()
    a("L_end:")
    body = a.finish()
    return f"""{HEADER}; @launch grid=(256,1,1) block=(256,1,1) lds={LDS_BYTES}
.amdgcn_target "amdgcn-amd-amdhsa--gfx950"
.text
.globl {KN}
.p2align 8
.type {KN},@function
{KN}:
{body}
    s_endpgm
.section .rodata,"a"
.p2align 6
.amdhsa_kernel {KN}
  .amdhsa_next_free_vgpr 512
  .amdhsa_next_free_sgpr 102
  .amdhsa_accum_offset 256
  .amdhsa_group_segment_fixed_size 0
  .amdhsa_kernarg_size 96
  .amdhsa_user_sgpr_count 2
  .amdhsa_user_sgpr_kernarg_segment_ptr 1
  .amdhsa_system_sgpr_workgroup_id_x 1
.end_amdhsa_kernel
"""

if __name__ == "__main__":
    out = sys.argv[1]
    kw = {}
    for x in sys.argv[2:]:
        k, v = x.split("=")
        kw[k] = int(v) if v.lstrip("-").isdigit() else v
    open(out, "w").write(gen(**kw))
```

```python
import sys, struct
from asmlib import Asm

KN = "sequential_preLN__sliding_block_cached__geglu_ffn__decode_kernel"
HEADER = open("sequential_preLN__sliding_block_cached__geglu_ffn__decode.s.ref").read().split("; Override launch")[0] \
    if len(sys.argv) and __name__ == "__main__" else ""

def f2u(x): return struct.unpack("<I", struct.pack("<f", x))[0]

WS_Q   = 0x0
WS_EP  = 0x10000
WS_ST  = 0x11000
WS_A   = WS_ST + 2048
WS_B   = WS_A + 131072
WS_C   = WS_B + 36864
WS_END = WS_C + 331776
WS_DIAG = 0x100000
R0, R1 = 0, 73728
IMG = 147456; IMG_T = 272
CMB = 152576
ST  = 156672
HST = 156800
ACT = 157440
ZER = ACT + 512
LDS_BYTES = ZER + 512
OIM = R1
SPIN = 1 << 18

DPP = "row_mask:0xf bank_mask:0xf"

def gen(diag=False, WIN=0, QPOLL=4, NT="nt", probe=-1, PFQ=1, PFL=1, PFC=1, TLB=1, PNT="nt", N1=296, BAR2=1, DENSE=1):
    a = Asm()
    pend = []
    NK1 = WIN if WIN else 12
    QL = WIN if WIN else 10
    LAG = WIN if WIN else 11
    def thr():
        if WIN: a(f"s_waitcnt vmcnt({WIN-1})")
    if NT == "none": NT = ""
    if PNT == "none": PNT = ""
    def stamp(i):
        if probe >= 0:
            if i == 0: a("s_memrealtime s[84:85]")
            if i == probe: a("s_memrealtime s[86:87]")
        if not diag: return
        p = 84 + 2 * (len(pend))
        assert p <= 100
        a(f"s_memrealtime s[{p}:{p+1}]"); pend.append((i, p))
    def flush(keep=False):
        if not diag: return
        a("s_waitcnt lgkmcnt(0)")
        for i, p in pend: a(f"v_writelane_b32 v255, s{p}, {i}")
        if not keep: pend.clear()
    def dump():
        if not diag: return
        a("s_mov_b64 exec, -1")
        a("s_lshl_b32 s74, s2, 2\n s_add_u32 s74, s74, s3\n s_lshl_b32 s74, s74, 8")
        a(f"s_add_u32 s74, s74, {WS_DIAG}")
        a("v_lshlrev_b32 v254, 2, v0")
        a("s_mov_b32 s22, 0x200000")
        a("buffer_store_dword v255, v254, s[20:23], s74 offen")
    def srd(d, p, n):
        a(f"s_mov_b32 s{d}, s{p}\n s_mov_b32 s{d+1}, s{p+1}\n s_mov_b32 s{d+2}, {n}\n s_mov_b32 s{d+3}, 0x20000")
    def rowred(regs, op):
        for ctl in ("quad_perm:[1,0,3,2]", "quad_perm:[2,3,0,1]", "row_half_mirror", "row_mirror"):
            for r in regs: a(f"{op}_dpp v{r}, v{r}, v{r} {ctl} {DPP}")
    def xrow(r, t, op):
        for sw in ("v_permlane16_swap_b32", "v_permlane32_swap_b32"):
            a(f"v_mov_b32 v{t}, v{r}\n {sw} v{r}, v{t}\n {op} v{r}, v{r}, v{t}")
    def rnd(r):
        a(f"v_cvt_pk_bf16_f32 v{r}, v{r}, v{r}\n v_and_b32 v{r}, s78, v{r}")
    def chk_chain(acc, regs):
        regs = list(regs)
        a(f"v_max3_u32 v{acc}, v{regs[0]}, v{regs[1]}, v{regs[2]}"); regs = regs[3:]
        while len(regs) >= 2:
            a(f"v_max3_u32 v{acc}, v{regs[0]}, v{regs[1]}, v{acc}"); regs = regs[2:]
        if regs: a(f"v_max_u32 v{acc}, v{regs[0]}, v{acc}")

    a("s_cmp_ge_u32 s2, 256\n s_cbranch_scc1 L_end")
    a("s_load_dwordx16 s[44:59], s[0:1], 0\n s_load_dwordx8 s[60:67], s[0:1], 64")
    if diag:
        for r in range(86, 102, 2): a(f"s_mov_b64 s[{r}:{r+1}], 0")
    stamp(0)
    a("v_lshrrev_b32 v1, 6, v0\n v_and_b32 v0, 63, v0")
    if diag: a("v_mov_b32 v255, 0")
    a("v_readfirstlane_b32 s3, v1")
    a("s_and_b32 s4, s2, 7\n s_lshr_b32 s5, s2, 3")
    a("s_lshr_b32 s76, s5, 4\n s_lshl_b32 s74, s4, 1\n s_add_u32 s76, s76, s74")
    a("s_and_b32 s77, s5, 15")
    a(f"s_mov_b32 s78, 0xffff0000\n s_mov_b32 s79, {f2u(128 ** -0.5):#x}\n s_mov_b32 s80, {f2u(1.4426950408889634):#x}")
    a("s_movk_i32 s69, 0x7fff")
    a("s_lshl_b32 s70, s2, 2\n s_add_u32 s70, s70, s3\n s_mul_i32 s70, s70, 0x9E3779B1\n s_lshr_b32 s70, s70, 27\n s_lshl_b32 s70, s70, 10")
    a("s_mul_i32 s75, s3, 9216\n s_movk_i32 s74, 1152\n s_mov_b32 s71, 36864")
    a("s_cmp_lt_u32 s5, 8\n s_cbranch_scc1 L_dq\n s_cmp_lt_u32 s5, 17\n s_cbranch_scc1 L_dw\n s_cmp_lt_u32 s5, 26\n s_cbranch_scc1 L_df")
    a("s_mov_b32 s6, 3\n s_sub_u32 s7, s5, 26\n s_lshl_b32 s7, s7, 3\n s_add_u32 s7, s7, s4\n s_mov_b32 s72, 0\n s_mov_b32 s73, 0\n s_branch L_dd")
    a("L_dq:")
    a("s_mov_b32 s6, 0\n s_lshl_b32 s7, s4, 3\n s_add_u32 s7, s7, s5\n s_movk_i32 s74, 8192\n s_mov_b32 s71, 262144\n s_mov_b32 s72, 262144")
    a("s_lshl_b32 s73, s7, 7\n s_lshl_b32 s75, s3, 16\n s_branch L_dd")
    a("L_dw:")
    a("s_mov_b32 s6, 1\n s_sub_u32 s7, s5, 8\n s_mov_b32 s72, 36864\n s_mul_i32 s73, s4, 589824\n s_lshl_b32 s82, s7, 7\n s_add_u32 s73, s73, s82\n s_branch L_dd")
    a("L_df:")
    a(f"s_mov_b32 s6, 2\n s_mul_i32 s7, s4, 9\n s_add_u32 s7, s7, s5\n s_sub_u32 s7, s7, 17\n s_mov_b32 s72, {(128 - 36864) & 0xffffffff:#x}\n s_mul_i32 s73, s7, 73728")
    a("L_dd:")
    a("s_add_u32 s73, s73, s75")
    a("v_lshlrev_b32 v2, 4, v0")
    a("v_bfe_u32 v92, v0, 2, 2\n v_lshrrev_b32 v93, 4, v0\n v_and_b32 v94, 3, v0")
    a("v_lshlrev_b32 v1, 8, v92\n v_lshl_add_u32 v1, v93, 6, v1\n v_lshl_add_u32 v1, v94, 4, v1")
    a("s_and_b32 s82, s3, 1\n s_lshl_b32 s82, s82, 2")
    a("v_lshrrev_b32 v96, 3, v0\n v_and_b32 v95, 2, v96\n v_or_b32 v95, s82, v95\n v_and_b32 v97, 7, v0\n v_xor_b32 v95, v95, v97\n v_lshlrev_b32 v95, 4, v95")
    a("v_mad_u32_u24 v3, v96, s74, v95")
    a("s_movk_i32 s82, 9216\n v_mad_u32_u24 v6, v96, s82, v95")
    a("v_lshrrev_b32 v97, 1, v92\n v_and_b32 v98, 1, v93\n v_lshl_or_b32 v97, v98, 1, v97\n v_xor_b32 v97, s3, v97")
    a("v_lshl_add_u32 v4, v93, 3, v92\n v_lshlrev_b32 v4, 7, v4\n v_lshl_add_u32 v4, v97, 5, v4\n v_lshl_add_u32 v4, v94, 3, v4\n v_add_u32 v5, 36864, v4")
    a("s_lshr_b32 s82, s77, 2\n s_lshl_b32 s82, s82, 4\n s_add_u32 s82, s82, s76\n s_lshl_b32 s82, s82, 21")
    a(f"s_and_b32 s83, s77, 3\n s_lshl_b32 s83, s83, 2\n s_add_u32 s83, s83, s3\n s_lshl_b32 s83, s83, 15\n s_add_u32 s82, s82, s83\n s_add_u32 s82, s82, {6144*256}")
    a("s_lshl_b32 s83, s3, 10\n s_mov_b32 m0, s83")
    a("s_waitcnt lgkmcnt(0)")
    a(f"s_load_dword s54, s[66:67], {WS_EP}")
    a("s_add_u32 s8, s46, s82\n s_addc_u32 s9, s47, 0\n s_mov_b32 s10, 32768\n s_mov_b32 s11, 0x20000")
    a("s_add_u32 s12, s48, s82\n s_addc_u32 s13, s49, 0\n s_mov_b32 s14, 32768\n s_mov_b32 s15, 0x20000")
    a("s_cmp_eq_u32 s6, 1\n s_cselect_b64 s[16:17], s[52:53], s[50:51]\n s_cmp_eq_u32 s6, 2\n s_cselect_b64 s[16:17], s[60:61], s[16:17]")
    a("s_mov_b32 s18, 4718592\n s_cselect_b32 s18, 5308416, s18\n s_mov_b32 s19, 0x20000")
    srd(20, 66, WS_END); srd(24, 44, 4608); srd(28, 56, 5308416); srd(32, 58, 5308416); srd(36, 62, 4608); srd(40, 64, 256)

    if TLB:
        a("s_cmp_eq_u32 s3, 3\n s_cbranch_scc0 L_notlb\n v_lshlrev_b32 v97, 21, v0\n s_mov_b64 exec, 1")
        a(f"buffer_load_dword v200, v97, s[12:15], s70 offen {NT}\n buffer_load_dword v201, v97, s[20:23], 0 offen sc1\n buffer_load_dword v202, v97, s[40:43], 0 offen sc1")
        a("buffer_load_dword v203, v97, s[36:39], 0 offen sc1\n s_mov_b64 exec, 7")
        a(f"buffer_load_dword v204, v97, s[28:31], 0 offen {NT}\n buffer_load_dword v205, v97, s[32:35], 0 offen {NT}\n s_mov_b64 exec, -1")
        a("L_notlb:")
    a("s_cmp_eq_u32 s6, 3\n s_cbranch_scc1 L_rclr\n s_cmp_eq_u32 s6, 1\n s_cbranch_scc1 L_dma\n s_cmp_eq_u32 s6, 2\n s_cbranch_scc1 L_fx")
    a("v_cmp_gt_u32 vcc, 36, v0\n v_mov_b32 v97, 0x10000\n v_cndmask_b32 v97, v97, v2, vcc\n s_mul_i32 s82, s3, 1152")
    a("buffer_load_dwordx4 v[188:191], v97, s[24:27], s82 offen\n buffer_load_dwordx4 v[192:195], v97, s[24:27], s82 offen offset:576")
    a("s_branch L_dma")
    a("L_rclr:")
    a("v_mov_b32 v188, -1\n v_mov_b32 v189, -1\n v_mov_b32 v190, -1\n v_mov_b32 v191, -1")
    a(f"s_lshl_b32 s82, s7, 2\n s_add_u32 s82, s82, s3\n s_mul_i32 s82, s82, 3072\n s_add_u32 s82, s82, {WS_ST}")
    if PFC:
        a("s_cmp_eq_u32 s5, 26\n s_cbranch_scc0 L_nopfc\n s_cmp_lt_u32 s3, 2\n s_cbranch_scc0 L_nopfc")
        a("s_getpc_b64 s[44:45]\n v_lshlrev_b32 v97, 7, v0\n s_lshl_b32 s83, s3, 13\n v_add_u32 v97, s83, v97\n v_min_u32 v97, CODE_REST, v97")
        a("L_pc:")
        a("global_load_dword v206, v97, s[44:45]")
        a("L_nopfc:")
    for i in range(3): a(f"buffer_store_dwordx4 v[188:191], v2, s[20:23], s82 offen offset:{1024*i} sc1")
    if PFQ:
        a("v_and_b32 v97, 7, v0\n v_lshlrev_b32 v97, 7, v97\n v_lshl_add_u32 v97, v96, 13, v97")
        a(f"s_sub_u32 s82, s5, 26\n s_lshl_b32 s82, s82, 2\n s_add_u32 s82, s82, s3\n s_lshl_b32 s82, s82, 16\n s_lshl_b32 s83, s4, 10\n s_add_u32 s82, s82, s83\n s_add_u32 s82, s82, {192*8192}")
        a(f"buffer_load_dword v207, v97, s[16:19], s82 offen {PNT}\n s_add_u32 s82, s82, {192*8192}\n buffer_load_dword v208, v97, s[16:19], s82 offen {PNT}")
    a("s_branch L_kld")
    a("L_fx:")
    a("v_bfe_u32 v97, v0, 1, 2\n v_mul_u32_u24 v97, 1152, v97")
    a("v_bfe_u32 v98, v0, 5, 1\n v_lshl_add_u32 v97, v98, 6, v97\n v_bfe_u32 v98, v0, 3, 1\n v_lshl_add_u32 v97, v98, 5, v97")
    a("v_and_b32 v98, 1, v0\n v_lshl_add_u32 v97, v98, 4, v97\n v_bfe_u32 v98, v0, 4, 1\n v_lshl_add_u32 v97, v98, 3, v97")
    a("s_lshl_b32 s82, s3, 7")
    a("buffer_load_dwordx2 v[188:189], v97, s[24:27], s82 offen\n buffer_load_dwordx2 v[190:191], v97, s[24:27], s82 offen offset:512")
    a("buffer_load_dwordx2 v[192:193], v97, s[24:27], 0 offen offset:1024")
    a("L_dma:")
    for n in range(18):
        if n == 16: a("s_cmp_eq_u32 s6, 1\n s_cbranch_scc1 L_kld")
        if n >= WIN: thr()
        a(f"buffer_load_dwordx4 v3, s[16:19], s73 offen {NT} lds")
        if n < 17: a(f"s_addk_i32 m0, 0x1000\n s_add_u32 s73, s73, s{71 + (n & 1)}")
    a("L_kld:")
    a("s_mov_b32 s68, s70")
    def kvload(kind, i):
        thr()
        if kind == "k": a(f"buffer_load_dwordx4 a[{4*i}:{4*i+3}], v1, s[8:11], s68 offen {NT}")
        else:           a(f"buffer_load_dwordx4 a[{128+4*i}:{131+4*i}], v2, s[12:15], s68 offen {NT}")
        a("s_addk_i32 s68, 0x400\n s_and_b32 s68, s68, s69")
    for i in range(NK1): kvload("k", i)

    a("s_cmp_eq_u32 s6, 0\n s_cbranch_scc0 L_early")
    a(f"s_waitcnt vmcnt({18 + NK1})")
    for i in range(8):
        a(f"v_lshlrev_b32 v{172+2*i}, 16, v{188+i}\n v_and_b32 v{173+2*i}, s78, v{188+i}")
    a("v_add_f32 v196, v172, v173")
    for i in range(2, 16): a(f"v_add_f32 v196, v196, v{172+i}")
    rowred([196], "v_add_f32"); xrow(196, 197, "v_add_f32")
    a(f"v_mul_f32 v196, {f2u(1/576):#x}, v196")
    a("v_sub_f32 v198, v172, v196\n v_mul_f32 v197, v198, v198")
    for i in range(1, 16): a(f"v_sub_f32 v198, v{172+i}, v196\n v_fmac_f32 v197, v198, v198")
    a("v_cmp_gt_u32 vcc, 36, v0\n v_cndmask_b32 v197, 0, v197, vcc")
    rowred([197], "v_add_f32"); xrow(197, 198, "v_add_f32")
    a(f"v_mul_f32 v197, {f2u(1/576):#x}, v197")
    rnd(196); rnd(197)
    a(f"v_add_f32 v197, {f2u(1e-5):#x}, v197"); rnd(197)
    a("v_sqrt_f32 v197, v197"); rnd(197)
    a("v_rcp_f32 v197, v197")
    for i in range(8):
        lo, hi = 172 + 2*i, 173 + 2*i
        a(f"v_sub_f32 v{lo}, v{lo}, v196\n v_sub_f32 v{hi}, v{hi}, v196\n v_cvt_pk_bf16_f32 v198, v{lo}, v{hi}")
        a(f"v_lshlrev_b32 v{lo}, 16, v198\n v_and_b32 v{hi}, s78, v198\n v_mul_f32 v{lo}, v{lo}, v197\n v_mul_f32 v{hi}, v{hi}, v197")
        a(f"v_cvt_pk_bf16_f32 v{188+i}, v{lo}, v{hi}")
    a(f"v_lshrrev_b32 v198, 2, v0\n v_mul_u32_u24 v198, {IMG_T}, v198\n v_lshl_add_u32 v198, v94, 6, v198")
    a(f"s_lshl_b32 s82, s3, 4\n s_add_u32 s82, s82, {IMG}\n v_add_u32 v198, s82, v198")
    a("s_mov_b64 exec, vcc")
    a(f"ds_write_b128 v198, v[188:191]\n ds_write_b128 v198, v[192:195] offset:{9*IMG_T}")
    a("s_mov_b64 exec, -1")
    a("L_early:")
    a(f"s_waitcnt vmcnt({NK1}) lgkmcnt(0)\n s_barrier\n s_add_u32 s54, s54, 1")
    stamp(1)
    a("s_cmp_eq_u32 s6, 3\n s_cbranch_scc0 L_etr")
    a("s_add_u32 s82, s7, 64\n v_mov_b32 v97, 1\n v_mov_b32 v98, 0\n s_cmp_eq_u32 s3, 0\n s_cbranch_scc0 L_k2")
    a("s_mov_b64 exec, 1\n buffer_store_byte v97, v98, s[40:43], s82 offen sc1\n s_mov_b64 exec, -1\n s_branch L_k2")
    a("L_etr:")
    def trread(dst, base_lo, base_hi, t, extra=0):
        b, off = (base_lo, t * 4096) if t < 9 else (base_hi, (t - 9) * 4096)
        k, n = dst
        a(f"ds_read_b64_tr_b16 {k}[{n}:{n+1}], v{b} offset:{off}\n ds_read_b64_tr_b16 {k}[{n+2}:{n+3}], v{b} offset:{off+512}")
    for t in range(18): trread(("v", 100 + 4*t), 4, 5, t)
    a("s_cmp_eq_u32 s6, 0\n s_cbranch_scc0 L_k2")
    a(f"v_lshl_add_u32 v198, v93, 2, v94\n v_lshlrev_b32 v198, 4, v198\n v_add_u32 v198, {IMG}, v198")
    for t in range(18): a(f"ds_read_b128 v[{20+4*t}:{23+4*t}], v198 offset:{t*IMG_T}")
    a("s_waitcnt lgkmcnt(0)")
    for t in range(18):
        a(f"v_mfma_f32_16x16x32_bf16 v[16:19], v[{100+4*t}:{103+4*t}], v[{20+4*t}:{23+4*t}], {'0' if t == 0 else 'v[16:19]'}")
    a("v_lshlrev_b32 v198, 14, v94\n v_lshl_add_u32 v198, v93, 4, v198")
    a("s_lshl_b32 s82, s7, 8\n s_lshl_b32 s83, s3, 6\n s_add_u32 s82, s82, s83")
    a("v_cvt_pk_bf16_f32 v16, v16, v17\n v_cvt_pk_bf16_f32 v18, v18, v19\n v_mov_b32 v17, s54\n v_mov_b32 v19, s54")
    a("s_mov_b32 exec_lo, 0x000f000f\n s_mov_b32 exec_hi, 0x000f000f")
    a("buffer_store_dwordx4 v[16:19], v198, s[20:23], s82 offen sc1")
    a("s_mov_b64 exec, -1")
    stamp(11)
    a("L_k2:")
    for i in range(NK1, 32): kvload("k", i)
    for i in range(QPOLL): kvload("v", i)

    a("v_bfe_u32 v62, v0, 2, 1\n v_lshlrev_b32 v62, 9, v62\n v_lshl_add_u32 v62, v93, 7, v62\n v_lshl_add_u32 v62, v94, 5, v62")
    a("v_min_u32 v63, 11, v0\n v_lshlrev_b32 v63, 2, v63")
    a("s_lshr_b32 s82, s77, 2\n s_lshl_b32 s82, s82, 14\n s_lshl_b32 s83, s76, 10\n s_add_u32 s82, s82, s83")
    def qpass():
        a("buffer_load_dword v60, v63, s[40:43], 0 offen offset:64 sc1")
        a("buffer_load_dwordx4 v[52:55], v62, s[20:23], s82 offen sc1\n buffer_load_dwordx4 v[56:59], v62, s[20:23], s82 offen offset:16 sc1")
    stamp(2)
    qpass()
    nv = QPOLL
    for i in range(QL): kvload("v", nv); nv += 1
    a("v_and_b32 v97, 1, v0\n v_cmp_eq_u32 vcc, 1, v97\n v_mov_b32 v98, 0xffff\n v_mov_b32 v99, s78\n v_cndmask_b32 v98, v98, v99, vcc")
    a("v_bfe_u32 v97, v0, 3, 1\n v_bfe_u32 v99, v0, 1, 1\n v_lshl_or_b32 v97, v97, 1, v99")
    for d in range(4): a(f"v_cmp_eq_u32 vcc, {d}, v97\n v_cndmask_b32 v{12+d}, 0, v98, vcc")
    a("v_mov_b32 v7, 0xff800000\n s_mov_b32 s81, 0")
    a(f"s_waitcnt vmcnt({QL})\n s_branch L_qchk")
    a("L_qpoll:")
    qpass()
    a(f"s_add_u32 s81, s81, 1\n s_cmp_gt_u32 s81, {SPIN}\n s_waitcnt vmcnt(0)\n s_cbranch_scc1 L_qgo")
    a("L_qchk:")
    a("v_xor_b32 v60, 0x01010101, v60")
    for r in (53, 55, 57, 59): a(f"v_xor_b32 v{r}, s54, v{r}")
    a("v_or3_b32 v60, v60, v53, v55\n v_or3_b32 v60, v60, v57, v59\n v_cmp_ne_u32 vcc, 0, v60\n s_cbranch_vccnz L_qpoll")
    a("L_qgo:")
    a("v_mov_b32 v8, v52\n v_mov_b32 v9, v54\n v_mov_b32 v10, v56\n v_mov_b32 v11, v58")
    stamp(3)
    def qk(gi):
        for q in range(4):
            d = 52 + 16 * (gi & 1) + 4 * q; k = 16 * gi + 4 * q
            a(f"v_mfma_f32_16x16x32_bf16 v[{d}:{d+3}], a[{k}:{k+3}], v[8:11], 0")
    qk(0)
    for gi in range(8):
        if gi < 7: qk(gi + 1)
        D = 52 + 16 * (gi & 1); T = 20 + 4 * gi
        for u in range(4):
            for q in range(4):
                if u == 0: a(f"v_mov_b32_dpp v{T+q}, v{D+4*q} quad_perm:[0,0,0,0] {DPP}")
                else:      a(f"v_add_f32_dpp v{T+q}, v{D+4*q+u}, v{T+q} quad_perm:[{u},{u},{u},{u}] {DPP}")
        a(f"v_max3_f32 v7, v{T}, v{T+1}, v7\n v_max3_f32 v7, v{T+2}, v{T+3}, v7")
        for rep in range(2):
            a(f"v_cvt_pk_bf16_f32 v97, v{T}, v{T+1}\n v_cvt_pk_bf16_f32 v98, v{T+2}, v{T+3}")
            a(f"v_lshlrev_b32 v{T}, 16, v97\n v_and_b32 v{T+1}, s78, v97\n v_lshlrev_b32 v{T+2}, 16, v98\n v_and_b32 v{T+3}, s78, v98")
            if rep == 0:
                for q in range(4): a(f"v_mul_f32 v{T+q}, s79, v{T+q}")
        if (gi & 1) or DENSE: kvload("v", nv); nv += 1
    xrow(7, 97, "v_max_f32")
    rnd(7); a("v_mul_f32 v7, s79, v7"); rnd(7)
    a("v_mul_f32 v52, s80, v7")
    for i in range(32): a(f"v_fma_f32 v{20+i}, v{20+i}, s80, -v52")
    kvload("v", nv); nv += 1
    for i in range(32):
        a(f"v_exp_f32 v{20+i}, v{20+i}")
        if i == 2: a("v_add_f32 v53, v20, v21")
        if i > 2:  a(f"v_add_f32 v53, v53, v{19+i}")
        if DENSE and i == 15: kvload("v", nv); nv += 1
    a("v_add_f32 v53, v53, v51")
    kvload("v", nv); nv += 1
    xrow(53, 97, "v_add_f32")
    a(f"v_bfe_u32 v97, v0, 2, 1\n v_lshlrev_b32 v97, 5, v97\n s_lshl_b32 s82, s3, 3\n s_add_u32 s82, s82, {ST}\n v_add_u32 v97, s82, v97")
    a("s_mov_b64 exec, 0x11\n ds_write_b64 v97, v[52:53]\n s_mov_b64 exec, -1")
    stamp(4); flush()
    def pbuild(i):
        P = 84 + 4 * (i & 1)
        a(f"v_cvt_pk_bf16_f32 v99, v{20+i}, v{20+i}")
        for d in range(4): a(f"v_and_b32 v{P+d}, v99, v{12+d}")
    def pv(i):
        P = 84 + 4 * (i & 1)
        a(f"v_mfma_f32_16x16x32_bf16 v[16:19], v[{P}:{P+3}], a[{128+4*i}:{131+4*i}], {'0' if i == 0 else 'v[16:19]'}")
    done = nv - LAG
    a(f"s_waitcnt vmcnt({LAG})")
    pbuild(0)
    for i in range(done):
        pbuild(i + 1); pv(i)
    a("s_waitcnt lgkmcnt(0)\n s_barrier")
    a(f"v_and_b32 v97, 1, v93\n v_lshlrev_b32 v97, 5, v97\n v_add_u32 v98, s82, v97\n v_add_u32 v97, {ST}, v97")
    a("ds_read_b128 v[56:59], v97\n ds_read_b128 v[60:63], v97 offset:16\n ds_read_b32 v64, v98")
    kvload("v", nv); nv += 1
    a("s_waitcnt lgkmcnt(0)")
    a("v_max3_f32 v65, v56, v58, v60\n v_max_f32 v65, v65, v62")
    for r in (56, 58, 60, 62, 64): a(f"v_sub_f32 v{r}, v{r}, v65")
    for r in (56, 58, 60, 62, 64): a(f"v_exp_f32 v{r}, v{r}")
    a("v_mul_f32 v66, v56, v57\n v_fmac_f32 v66, v58, v59\n v_fmac_f32 v66, v60, v61\n v_fmac_f32 v66, v62, v63")
    a("v_rcp_f32 v67, v66\n v_log_f32 v66, v66")
    a("v_mul_f32 v7, v64, v67")
    a("v_add_f32 v66, v66, v65\n v_min_u32 v66, -2, v66")
    a("s_cmp_eq_u32 s3, 0\n s_cbranch_scc0 L_nolse")
    a(f"s_lshl_b32 s82, s4, 8\n s_lshl_b32 s83, s77, 4\n s_add_u32 s82, s82, s83\n s_and_b32 s83, s76, 1\n s_lshl_b32 s83, s83, 3\n s_add_u32 s82, s82, s83\n s_add_u32 s82, s82, {WS_ST}")
    a("v_lshlrev_b32 v97, 2, v93\n s_mov_b64 exec, 0x10001\n buffer_store_dword v66, v97, s[20:23], s82 offen sc1\n s_mov_b64 exec, -1")
    a("L_nolse:")
    a(f"s_waitcnt vmcnt({LAG})"); pv(done); done += 1
    while nv < 32:
        kvload("v", nv); nv += 1
        pbuild(done); a(f"s_waitcnt vmcnt({LAG})"); pv(done); done += 1
    a(f"s_lshl_b32 s82, s76, 13\n s_lshl_b32 s83, s77, 8\n s_add_u32 s82, s82, s83\n s_add_u32 s57, s82, {WS_A}")
    a("v_and_b32 v97, 15, v0\n v_lshlrev_b32 v97, 4, v97\n v_lshl_add_u32 v97, v93, 12, v97")
    a(f"s_lshl_b32 s82, s3, 10\n s_add_u32 s82, s82, {CMB}\n v_add_u32 v98, s82, v2")
    a("s_cmp_eq_u32 s6, 2\n s_cbranch_scc1 L_ftail")
    NG = (576 - N1) // 7
    assert NG * 7 == 576 - N1
    def touch(i):
        a(f"s_cmp_lt_u32 s58, {NG}\n s_cselect_b64 s[16:17], s[28:29], s[32:33]\n s_cselect_b32 s82, s18, 0")
        a(f"s_mul_i32 s83, s58, {7*9216}\n s_add_u32 s82, s82, s83\n s_add_u32 s82, s82, s59")
        a(f"buffer_load_dword v{200+i}, v68, s[16:19], s82 offen {PNT}\n s_add_u32 s58, s58, 56")
    if PFL:
        a("s_cmp_eq_u32 s6, 1\n s_cbranch_scc1 L_nopf")
        a("v_mul_u32_u24 v68, 7282, v0\n v_lshrrev_b32 v68, 16, v68\n v_mul_u32_u24 v69, 9, v68\n v_sub_u32 v69, v0, v69\n v_min_u32 v68, 6, v68")
        a("v_mul_u32_u24 v68, 9216, v68\n v_lshl_add_u32 v68, v69, 7, v68")
        a("s_sub_u32 s58, s5, 18\n s_cmp_eq_u32 s6, 0\n s_cselect_b32 s58, s5, s58\n s_lshl_b32 s58, s58, 2\n s_add_u32 s58, s58, s3\n s_mul_i32 s59, s4, 1152\n s_mov_b32 s18, 5308416")
        a(f"s_sub_u32 s59, s59, {NG*7*9216}")
        touch(0)
        for i in range(done, 32):
            pbuild(i); a(f"s_waitcnt vmcnt({32 - i})"); pv(i)
        a("s_branch L_comb")
        a("L_nopf:")
    for i in range(done, 32):
        pbuild(i); a(f"s_waitcnt vmcnt({31 - i})"); pv(i)
    a("s_branch L_comb")
    a("L_ftail:")
    a("s_lshl_b32 s73, s7, 7\n s_mul_i32 s82, s3, 73728\n s_add_u32 s73, s73, s82\n s_mov_b32 s58, s73\n s_lshl_b32 s82, s3, 10\n s_mov_b32 m0, s82")
    def late(n):
        s = 28 if n < 18 else 32
        a(f"buffer_load_dwordx4 v6, s[{s}:{s+3}], s73 offen {NT} lds")
        a("s_addk_i32 m0, 0x1000")
        if n == 17: a("s_mov_b32 s73, s58")
        else:       a("s_add_u32 s73, s73, 294912")
    nl = 0
    for i in range(done, 32):
        late(nl); nl += 1
        pbuild(i); a(f"s_waitcnt vmcnt({31 - i + nl})"); pv(i)
    a("L_comb:")
    stamp(5)
    for i in range(4): a(f"v_mul_f32 v{16+i}, v{16+i}, v7")
    a("ds_write_b128 v98, v[16:19]\n s_waitcnt lgkmcnt(0)\n s_barrier")
    a("s_cmp_eq_u32 s3, 0\n s_cbranch_scc0 L_pubd")
    for w in range(1, 4): a(f"ds_read_b128 v[{52+4*w}:{55+4*w}], v98 offset:{1024*w}")
    a("s_waitcnt lgkmcnt(0)")
    for w in range(1, 4):
        a(f"v_pk_add_f32 v[16:17], v[16:17], v[{52+4*w}:{53+4*w}]\n v_pk_add_f32 v[18:19], v[18:19], v[{54+4*w}:{55+4*w}]")
    a("v_cvt_pk_bf16_f32 v16, v16, v17\n v_cvt_pk_bf16_f32 v17, v18, v19\n v_min_u32 v16, -2, v16\n v_min_u32 v17, -2, v17")
    a("v_permlane32_swap_b32 v16, v18\n v_permlane32_swap_b32 v17, v19")
    a("s_mov_b32 exec_hi, 0\n buffer_store_dwordx4 v[16:19], v97, s[20:23], s57 offen sc1\n s_mov_b64 exec, -1")
    a("L_pubd:")
    stamp(6)
    base_pend = list(pend)
    a("s_cmp_eq_u32 s6, 1\n s_cbranch_scc1 L_W")
    if BAR2: a("s_barrier")
    a("s_cmp_eq_u32 s6, 2\n s_cbranch_scc1 L_F")
    if PFL: touch(1); touch(2)
    a("s_cmp_eq_u32 s6, 3\n s_cbranch_scc1 L_R\n s_branch L_fin")
    a("L_W:")

    a(f"v_and_b32 v97, 15, v0\n v_lshlrev_b32 v98, 4, v97\n s_lshl_b32 s82, s4, 8\n s_add_u32 s82, s82, {WS_ST}\n s_mov_b32 s81, 0")
    a(f"s_lshl_b32 s83, s4, 2\n s_add_u32 s83, s83, s3\n s_lshl_b32 s83, s83, 12\n s_add_u32 s83, s83, {WS_A}")
    a("L_wst:")
    a("buffer_load_dwordx4 v[20:23], v98, s[20:23], s82 offen sc1")
    a(f"s_add_u32 s81, s81, 1\n s_cmp_gt_u32 s81, {SPIN}\n s_cbranch_scc1 L_wst2")
    a("s_waitcnt vmcnt(0)"); chk_chain(99, range(20, 24))
    a("v_cmp_eq_u32 vcc, -1, v99\n s_cbranch_vccnz L_wst")
    a("L_wst2:")
    a("s_waitcnt vmcnt(0)")
    for i in range(4): a(f"buffer_load_dwordx4 v[{172+4*i}:{175+4*i}], v2, s[20:23], s83 offen offset:{1024*i} sc1")
    for hh in range(4): a(f"v_max_f32_dpp v{24+hh}, v{20+hh}, v{20+hh} quad_perm:[1,0,3,2] {DPP}")
    for hh in range(4): a(f"v_max_f32_dpp v{24+hh}, v{24+hh}, v{24+hh} quad_perm:[2,3,0,1] {DPP}")
    for hh in range(4): a(f"v_sub_f32 v{20+hh}, v{20+hh}, v{24+hh}")
    for hh in range(4): a(f"v_exp_f32 v{20+hh}, v{20+hh}")
    for hh in range(4): a(f"v_add_f32_dpp v{24+hh}, v{20+hh}, v{20+hh} quad_perm:[1,0,3,2] {DPP}")
    for hh in range(4): a(f"v_add_f32_dpp v{24+hh}, v{24+hh}, v{24+hh} quad_perm:[2,3,0,1] {DPP}")
    for hh in range(4): a(f"v_rcp_f32 v{24+hh}, v{24+hh}")
    for hh in range(4): a(f"v_mul_f32 v{20+hh}, v{20+hh}, v{24+hh}")
    a(f"v_and_b32 v28, 7, v0\n v_xor_b32 v28, v28, v93\n v_lshlrev_b32 v28, 4, v28\n v_lshl_add_u32 v28, v97, 8, v28")
    a(f"s_lshl_b32 s82, s3, 12\n s_add_u32 s82, s82, {OIM}\n v_add_u32 v28, s82, v28\n v_xor_b32 v29, 64, v28")
    a(f"v_xor_b32 v30, v97, v93\n v_lshlrev_b32 v30, 4, v30\n v_lshl_add_u32 v30, v93, 8, v30\n v_add_u32 v30, {OIM}, v30\n v_xor_b32 v31, 64, v30")
    a("v_lshlrev_b32 v32, 5, v92\n v_lshl_add_u32 v32, v93, 3, v32")
    a(f"s_lshl_b32 s82, s7, 3\n s_add_u32 s82, s82, s4\n s_lshl_b32 s82, s82, 2\n s_add_u32 s82, s82, s3\n s_lshl_b32 s82, s82, 7\n s_add_u32 s82, s82, {WS_B}")
    a("s_mov_b32 s81, 0\n s_branch L_wchk")
    a("L_wa:")
    for i in range(4): a(f"buffer_load_dwordx4 v[{172+4*i}:{175+4*i}], v2, s[20:23], s83 offen offset:{1024*i} sc1")
    a(f"s_add_u32 s81, s81, 1\n s_cmp_gt_u32 s81, {SPIN}\n s_cbranch_scc1 L_wgo")
    a("L_wchk:")
    a("s_waitcnt vmcnt(0)"); chk_chain(99, range(172, 188))
    a("v_cmp_eq_u32 vcc, -1, v99\n s_cbranch_vccnz L_wa")
    a("L_wgo:")
    a("s_waitcnt vmcnt(0)")
    stamp(7)
    for i in range(4): a(f"ds_write_b128 v{28 + (i & 1)}, v[{172+4*i}:{175+4*i}] offset:{128 * (i >> 1)}")
    a("s_waitcnt lgkmcnt(0)\n s_barrier")
    for tt in range(16): a(f"ds_read_b128 v[{188+4*tt}:{191+4*tt}], v{30 + (tt & 1)} offset:{1024*tt}")
    for tt in range(16):
        hh, t = tt >> 2, tt & 3
        a(f"s_waitcnt lgkmcnt({15 - tt})")
        a(f"v_mfma_f32_16x16x32_bf16 v[{36+4*hh}:{39+4*hh}], v[{100+4*tt}:{103+4*tt}], v[{188+4*tt}:{191+4*tt}], {'0' if t == 0 else f'v[{36+4*hh}:{39+4*hh}]'}")
    for hh in range(4):
        for i in range(4):
            a(f"v_mul_f32 v{52+i}, v{36+i}, v20" if hh == 0 else f"v_fmac_f32 v{52+i}, v{36+4*hh+i}, v{20+hh}")
    for ctl in ("quad_perm:[1,0,3,2]", "quad_perm:[2,3,0,1]"):
        for i in range(4): a(f"v_add_f32_dpp v{52+i}, v{52+i}, v{52+i} {ctl} {DPP}")
    a("v_cvt_pk_bf16_f32 v52, v52, v53\n v_cvt_pk_bf16_f32 v53, v54, v55\n v_min_u32 v52, -2, v52\n v_min_u32 v53, -2, v53")
    a("s_mov_b32 exec_lo, 0x11111111\n s_mov_b32 exec_hi, 0x11111111")
    a("buffer_store_dwordx2 v[52:53], v32, s[20:23], s82 offen sc1")
    stamp(8); flush(); dump()
    a("s_endpgm")

    pend[:] = base_pend
    a("L_F:")
    for n in range(nl, 36): late(n)
    for i in range(6): a(f"v_lshlrev_b32 v{172+2*i}, 16, v{188+i}\n v_and_b32 v{173+2*i}, s78, v{188+i}")
    a("v_mov_b32 v20, 0x3f803f80\n v_mov_b32 v21, v20\n v_mov_b32 v22, v20\n v_mov_b32 v23, v20")
    a(f"v_mul_u32_u24 v97, {IMG_T}, v0\n v_add_u32 v97, {IMG + 256}, v97\n s_mov_b64 exec, 0x3ffff\n ds_write_b128 v97, v[20:23]\n s_mov_b64 exec, -1")
    a("v_mov_b32 v24, 0\n v_mov_b32 v25, 0\n v_mov_b32 v26, 0\n v_mov_b32 v27, 0")
    a(f"v_mov_b32 v97, {ZER}\n ds_write_b128 v97, v[24:27]\n ds_write_b128 v97, v[24:27] offset:256")
    a("v_and_b32 v97, 1, v0\n v_cmp_eq_u32 vcc, 1, v97\n v_mov_b32 v98, 0x3f80\n v_mov_b32 v99, 0x3f800000\n v_cndmask_b32 v98, v98, v99, vcc")
    a("v_bfe_u32 v97, v0, 3, 1\n v_bfe_u32 v99, v0, 4, 1\n v_cmp_eq_u32 vcc, v97, v99\n v_cndmask_b32 v98, 0, v98, vcc\n v_bfe_u32 v97, v0, 1, 2")
    for d in range(4): a(f"v_cmp_eq_u32 vcc, {d}, v97\n v_cndmask_b32 v{8+d}, 0, v98, vcc")
    a(f"v_bfe_u32 v28, v0, 5, 1\n v_mul_u32_u24 v28, {IMG_T}, v28\n v_bfe_u32 v98, v0, 3, 1\n v_lshl_add_u32 v28, v98, 7, v28")
    a("v_and_b32 v98, 1, v0\n v_lshl_add_u32 v28, v98, 6, v28\n v_lshl_add_u32 v28, v97, 4, v28\n v_bfe_u32 v98, v0, 4, 1\n v_lshl_add_u32 v28, v98, 3, v28")
    a(f"s_mul_i32 s82, s3, {2*IMG_T}\n s_add_u32 s82, s82, {IMG}\n v_add_u32 v28, s82, v28")
    a(f"v_lshlrev_b32 v29, 7, v97\n v_lshl_add_u32 v29, v93, 3, v29\n s_lshl_b32 s82, s3, 5\n s_add_u32 s82, s82, {HST}\n v_add_u32 v29, s82, v29")
    a(f"v_lshl_add_u32 v30, v93, 2, v92\n v_lshlrev_b32 v30, 4, v30\n v_mov_b32 v98, 256\n v_cmp_eq_u32 vcc, 1, v94\n v_cndmask_b32 v30, v30, v98, vcc\n v_add_u32 v30, {IMG}, v30")
    a(f"v_lshlrev_b32 v31, 3, v0\n v_add_u32 v31, {HST}, v31")
    a("v_bfe_u32 v32, v0, 3, 1\n v_lshlrev_b32 v32, 6, v32\n v_lshl_add_u32 v32, v93, 4, v32\n v_and_b32 v98, 7, v0\n v_lshl_add_u32 v32, v98, 1, v32")
    a(f"s_lshl_b32 s82, s3, 7\n s_add_u32 s82, s82, {ACT}\n v_add_u32 v32, s82, v32")
    a(f"v_lshl_add_u32 v98, v93, 2, v94\n v_lshlrev_b32 v98, 4, v98\n v_add_u32 v98, {ACT}, v98\n v_mov_b32 v99, {ZER}")
    for e in range(4): a(f"v_cmp_eq_u32 vcc, {e}, v92\n v_cndmask_b32 v{33+e}, v99, v98, vcc")
    a(f"v_mul_u32_u24 v37, {2*IMG_T}, v92\n v_bfe_u32 v98, v0, 5, 1\n v_lshl_add_u32 v37, v98, 6, v37\n v_lshl_add_u32 v37, v94, 4, v37\n v_bfe_u32 v98, v0, 4, 1\n v_lshl_add_u32 v37, v98, 3, v37")
    a(f"s_lshr_b32 s82, s3, 1\n s_mul_i32 s82, s82, {IMG_T}\n s_and_b32 s83, s3, 1\n s_lshl_b32 s83, s83, 7\n s_add_u32 s82, s82, s83\n s_add_u32 s82, s82, {IMG}\n v_add_u32 v37, s82, v37")
    a("v_lshrrev_b32 v38, 3, v0\n v_mul_u32_u24 v38, 9216, v38\n v_and_b32 v98, 7, v0\n v_lshl_add_u32 v38, v98, 4, v38")
    a(f"v_lshlrev_b32 v39, 5, v94\n v_lshl_add_u32 v39, v93, 3, v39\n v_add_u32 v39, {8*9216}, v39")
    a(f"s_mul_i32 s58, s3, {9*9216}\n s_lshl_b32 s82, s7, 7\n s_add_u32 s58, s58, s82\n s_add_u32 s58, s58, {WS_C}")
    a(f"s_lshl_b32 s82, s3, 12\n s_add_u32 s82, s82, {WS_B}\n s_add_u32 s83, s82, 16384\n s_mov_b32 s59, {WS_B + 32768}")
    a(f"v_add_u32 v40, {R1}, v4\n v_add_u32 v41, {R1}, v5")
    a("s_waitcnt vmcnt(18) lgkmcnt(0)\n s_barrier")
    for t in range(18): trread(("a", 4*t), 4, 5, t)
    a("s_waitcnt vmcnt(0)\n s_barrier")
    stamp(7)
    def bpass():
        for blk, so in ((0, "s82"), (1, "s83")):
            for p in range(4): a(f"buffer_load_dwordx4 v[{188+16*blk+4*p}:{191+16*blk+4*p}], v2, s[20:23], {so} offen offset:{1024*p} sc1")
        lab = a.label("L_fb")
        a(f"s_cmp_eq_u32 s3, 0\n s_cbranch_scc0 {lab}")
        for p in range(4): a(f"buffer_load_dwordx4 v[{220+4*p}:{223+4*p}], v2, s[20:23], s59 offen offset:{1024*p} sc1")
        a(f"{lab}:")
    for i in range(16): a(f"v_mov_b32 v{220+i}, 0")
    a("s_cmp_eq_u32 s3, 0\n s_cbranch_scc1 L_fx8")
    for i in range(4): a(f"v_mov_b32 v{180+i}, 0")
    a("L_fx8:")
    bpass()
    for t in range(18): trread(("a", 72 + 4*t), 40, 41, t)
    a("s_mov_b32 s81, 0\n s_branch L_fchk")
    a("L_fa:")
    bpass()
    a(f"s_add_u32 s81, s81, 1\n s_cmp_gt_u32 s81, {SPIN}\n s_cbranch_scc1 L_fgo")
    a("L_fchk:")
    a("s_waitcnt vmcnt(0)"); chk_chain(99, range(188, 236))
    a("v_cmp_eq_u32 vcc, -1, v99\n s_cbranch_vccnz L_fa")
    a("L_fgo:")
    a("s_waitcnt vmcnt(0)")
    stamp(8)
    for p in range(4):
        for blk in range(3):
            a(f"v_mfma_f32_16x16x32_bf16 v[{172+4*blk}:{175+4*blk}], v[8:11], v[{188+16*blk+4*p}:{191+16*blk+4*p}], v[{172+4*blk}:{175+4*blk}]")
    for blk in range(3):
        d = 172 + 4 * blk
        a(f"v_cvt_pk_bf16_f32 v{44+2*blk}, v{d}, v{d+1}\n v_cvt_pk_bf16_f32 v{45+2*blk}, v{d+2}, v{d+3}")
        if blk < 2: a(f"ds_write_b64 v28, v[{44+2*blk}:{45+2*blk}] offset:{8*IMG_T*blk}")
    a(f"s_cmp_eq_u32 s3, 0\n s_cbranch_scc0 L_fw8\n ds_write_b64 v28, v[48:49] offset:{16*IMG_T}")
    a("L_fw8:")
    a("v_add_f32 v42, v172, v173\n v_mul_f32 v43, v172, v172")
    for i in range(1, 12):
        if i >= 2: a(f"v_add_f32 v42, v42, v{172+i}")
        a(f"v_fmac_f32 v43, v{172+i}, v{172+i}")
    for ctl in ("quad_perm:[1,0,3,2]", "row_ror:8"):
        for r in (42, 43): a(f"v_add_f32_dpp v{r}, v{r}, v{r} {ctl} {DPP}")
    a("ds_write_b64 v29, v[42:43]\n s_waitcnt lgkmcnt(0)\n s_barrier")
    a("ds_read_b64 v[42:43], v31")
    HF = 184
    def hread(t): a(f"ds_read_b128 v[{HF+4*(t%15)}:{HF+3+4*(t%15)}], v30 offset:{t*IMG_T}")
    for t in range(12): hread(t)
    side = []
    for ctl in ("quad_perm:[1,0,3,2]", "quad_perm:[2,3,0,1]", "row_half_mirror", "row_mirror"):
        side.append([f"v_add_f32_dpp v{r}, v{r}, v{r} {ctl} {DPP}" for r in (42, 43)])
    side.append([f"v_mul_f32 v42, {f2u(1/576):#x}, v42", f"v_mul_f32 v43, {f2u(1/576):#x}, v43"])
    side.append(["v_fma_f32 v43, -v42, v42, v43", f"v_add_f32 v43, {f2u(1e-5):#x}, v43"])
    side.append(["v_rsq_f32 v43, v43"])
    for t in range(18):
        h = HF + 4 * (t % 15)
        a(f"s_waitcnt lgkmcnt({min(11, 17 - t)})")
        a(f"v_mfma_f32_16x16x32_bf16 v[52:55], v[{h}:{h+3}], a[{4*t}:{4*t+3}], {'0' if t == 0 else 'v[52:55]'}")
        a(f"v_mfma_f32_16x16x32_bf16 v[56:59], v[{h}:{h+3}], a[{72+4*t}:{75+4*t}], {'0' if t == 0 else 'v[56:59]'}")
        if t + 12 < 18: hread(t + 12)
        if t >= 6 and side:
            for s in side.pop(0): a(s)
    for i in range(12): a(f"v_mov_b32 v{60+i}, 0")
    a("s_cmp_eq_u32 s7, 0\n s_cbranch_scc0 L_fnr")
    for k in range(3): a(f"ds_read_b64 v[{44+2*k}:{45+2*k}], v37 offset:{8*IMG_T*k}")
    a("s_waitcnt lgkmcnt(0)")
    for i in range(6): a(f"v_lshlrev_b32 v{60+2*i}, 16, v{44+i}\n v_and_b32 v{61+2*i}, s78, v{44+i}")
    a("L_fnr:")
    a("v_fma_f32 v52, -v42, v53, v52\n v_fma_f32 v56, -v42, v57, v56\n v_mul_f32 v52, v52, v43\n v_mul_f32 v56, v56, v43")
    c1 = -2 * 0.7978845608028654 * 1.4426950408889634
    a(f"v_mul_f32 v53, v52, v52\n v_mov_b32 v54, {f2u(c1):#x}\n v_fmamk_f32 v53, v53, {f2u(c1 * 0.044715):#x}, v54\n v_mul_f32 v53, v53, v52")
    a("v_exp_f32 v53, v53\n v_mul_f32 v52, v52, v56\n v_add_f32 v53, 1.0, v53\n v_rcp_f32 v53, v53\n v_mul_f32 v52, v52, v53")
    a("v_cvt_pk_bf16_f32 v52, v52, v52\n ds_write_b16 v32, v52\n s_waitcnt lgkmcnt(0)\n s_barrier")
    stamp(9)
    for e in range(4):
        for t in range(2): a(f"ds_read_b128 v[{184+8*e+4*t}:{187+8*e+4*t}], v{33+e} offset:{256*t}")
    if diag: a("s_waitcnt lgkmcnt(0)")
    for e in range(4):
        for t in range(2):
            if not diag: a(f"s_waitcnt lgkmcnt({7 - 2*e - t})")
            for acc in range(3):
                s9 = 4 * acc + e
                if s9 > 8: continue
                w = 100 + 4 * (2 * s9 + t)
                a(f"v_mfma_f32_16x16x32_bf16 v[{60+4*acc}:{63+4*acc}], v[{w}:{w+3}], v[{184+8*e+4*t}:{187+8*e+4*t}], v[{60+4*acc}:{63+4*acc}]")
    a("v_cvt_pk_bf16_f32 v48, v68, v69\n v_cvt_pk_bf16_f32 v49, v70, v71\n v_min_u32 v48, -2, v48\n v_min_u32 v49, -2, v49")
    for i in range(4): a(f"v_cvt_pk_bf16_f32 v{44+i}, v{60+2*i}, v{61+2*i}")
    for i in range(4): a(f"v_min_u32 v{44+i}, -2, v{44+i}")
    a("buffer_store_dwordx4 v[44:47], v38, s[20:23], s58 offen sc1")
    a("s_mov_b32 exec_lo, 0x000f000f\n s_mov_b32 exec_hi, 0x000f000f")
    a("buffer_store_dwordx2 v[48:49], v39, s[20:23], s58 offen sc1")
    stamp(10); flush(); dump()
    a("s_endpgm")

    pend[:] = base_pend
    a("L_R:")
    a("s_cmp_eq_u32 s3, 0\n s_cbranch_scc0 L_fin\n s_cmp_lt_u32 s7, 36\n s_cbranch_scc0 L_fin")
    a("v_and_b32 v97, 1, v0\n v_cmp_eq_u32 vcc, 1, v97\n v_mov_b32 v98, 0x3f80\n v_mov_b32 v99, 0x3f800000\n v_cndmask_b32 v98, v98, v99, vcc\n v_bfe_u32 v97, v0, 1, 3")
    for d in range(4): a(f"v_cmp_eq_u32 vcc, {d}, v97\n v_cndmask_b32 v{8+d}, 0, v98, vcc")
    a("s_mul_i32 s82, s7, 7282\n s_lshr_b32 s82, s82, 16\n s_mul_i32 s83, s82, 9\n s_sub_u32 s83, s7, s83")
    a("s_lshl_b32 s58, s82, 5\n s_cmp_eq_u32 s83, 8\n s_cbranch_scc1 L_r8")
    a("v_mul_u32_u24 v28, 1152, v94\n v_bfe_u32 v98, v0, 2, 1\n v_lshl_add_u32 v28, v98, 7, v28\n v_lshl_add_u32 v28, v93, 9, v28")
    a("s_and_b32 s82, s83, 1\n s_lshl_b32 s82, s82, 8\n s_add_u32 s58, s58, s82\n s_lshr_b32 s82, s83, 1\n s_lshl_b32 s82, s82, 3\n s_add_u32 s58, s58, s82\n s_branch L_r9")
    a("L_r8:")
    a("v_bfe_u32 v28, v0, 1, 2\n v_mul_u32_u24 v28, 1152, v28\n v_and_b32 v98, 1, v0\n v_lshl_add_u32 v28, v98, 4, v28\n v_lshl_add_u32 v28, v93, 3, v28\n s_add_u32 s58, s58, 1024")
    a("L_r9:")
    a(f"s_mul_i32 s82, s7, 9216\n s_add_u32 s82, s82, {WS_C}\n s_add_u32 s83, s82, 4096\n s_add_u32 s59, s82, 8192\n s_mov_b32 s81, 0")
    a("L_ra:")
    for i in range(9): a(f"buffer_load_dwordx4 v[{172+4*i}:{175+4*i}], v2, s[20:23], {('s82','s83','s59')[i>>2]} offen offset:{1024*(i&3)} sc1")
    a(f"s_add_u32 s81, s81, 1\n s_cmp_gt_u32 s81, {SPIN}\n s_cbranch_scc1 L_rgo")
    a("s_waitcnt vmcnt(0)"); chk_chain(99, range(172, 208))
    a("v_cmp_eq_u32 vcc, -1, v99\n s_cbranch_vccnz L_ra")
    a("L_rgo:")
    a("s_waitcnt vmcnt(0)")
    stamp(7)
    for i in range(9): a(f"v_mfma_f32_16x16x32_bf16 v[52:55], v[8:11], v[{172+4*i}:{175+4*i}], {'0' if i == 0 else 'v[52:55]'}")
    for i in range(4): a(f"v_add_f32_dpp v{52+i}, v{52+i}, v{52+i} row_ror:8 {DPP}")
    a("v_cvt_pk_bf16_f32 v52, v52, v53\n v_cvt_pk_bf16_f32 v53, v54, v55")
    a("s_mov_b64 exec, 0x00ff00ff\n buffer_store_dwordx2 v[52:53], v28, s[36:39], s58 offen")
    a(f"s_cmp_eq_u32 s7, 0\n s_cbranch_scc0 L_rend\n v_mov_b32 v54, s54\n v_mov_b32 v55, {WS_EP}\n s_mov_b64 exec, 1\n buffer_store_dword v54, v55, s[20:23], 0 offen sc1")
    a("L_rend:")
    if probe >= 0:
        if probe == 99: a("s_memrealtime s[86:87]")
        a("s_memrealtime s[88:89]\n s_waitcnt lgkmcnt(0)\n s_sub_u32 s86, s86, s84")
        a("L_probe:")
        a("s_memrealtime s[90:91]\n s_waitcnt lgkmcnt(0)\n s_sub_u32 s90, s90, s88\n s_cmp_lt_u32 s90, s86\n s_cbranch_scc1 L_probe")
    stamp(8); flush(); dump()
    a("s_endpgm")
    pend[:] = base_pend
    a("L_fin:")
    flush(); dump()
    a("L_end:")
    body = a.finish()
    body = body.replace("CODE_REST", "L_end-L_pc")
    return f"""{HEADER}; @launch grid=(256,1,1) block=(256,1,1) lds={LDS_BYTES}
.amdgcn_target "amdgcn-amd-amdhsa--gfx950"
.text
.globl {KN}
.p2align 8
.type {KN},@function
{KN}:
{body}
    s_endpgm
.section .rodata,"a"
.p2align 6
.amdhsa_kernel {KN}
  .amdhsa_next_free_vgpr 512
  .amdhsa_next_free_sgpr 102
  .amdhsa_accum_offset 256
  .amdhsa_group_segment_fixed_size 0
  .amdhsa_kernarg_size 96
  .amdhsa_user_sgpr_count 2
  .amdhsa_user_sgpr_kernarg_segment_ptr 1
  .amdhsa_system_sgpr_workgroup_id_x 1
.end_amdhsa_kernel
"""

if __name__ == "__main__":
    out = sys.argv[1]
    kw = {}
    for x in sys.argv[2:]:
        k, v = x.split("=")
        kw[k] = int(v) if v.lstrip("-").isdigit() else v
    open(out, "w").write(gen(**kw))
```

```python
import sys, struct
from asmlib import Asm

KN = "sequential_preLN__sliding_block_cached__geglu_ffn__decode_kernel"
HEADER = open("sequential_preLN__sliding_block_cached__geglu_ffn__decode.s.ref").read().split("; Override launch")[0]

def f2u(x): return struct.unpack("<I", struct.pack("<f", x))[0]

WS_Q   = 0x0
WS_EP  = 0x10000
WS_ST  = 0x11000
WS_A   = WS_ST + 32768
WS_B   = WS_A + 131072
WS_C   = WS_B + 36864
WS_END = WS_C + 331776
WS_DIAG = 0x100000
R0, R1 = 0, 73728
IMG = 147456; IMG_T = 272
CMB = 152576
ST  = 156672
HST = 156800
ACT = 157440
ZER = ACT + 512
LDS_BYTES = ZER + 512
OIM = R1
SPIN = 1 << 18
DPP = "row_mask:0xf bank_mask:0xf"
MF = "v_mfma_f32_16x16x32_bf16"

def gen(diag=False, probe=-1, NT="nt", QNT="none", PNT="none", KF=4, NK1=10, QPOLL=0, QL=10, LAG=11,
        ER=5, EPOS=20, NE=8, N1=422, G=24, GATE=1, CLR=1, PFC=1, MASK=1, REPS=8, STEP=1, WIN=0):
    a = Asm()
    pend = []
    NT, QNT, PNT = [("" if x == "none" else x) for x in (NT, QNT, PNT)]
    def stamp(i):
        if probe >= 0:
            if i == 0: a("s_memrealtime s[84:85]")
            if i == probe: a("s_memrealtime s[86:87]")
        if not diag: return
        p = 84 + 2 * (len(pend))
        assert p <= 100
        a(f"s_memrealtime s[{p}:{p+1}]"); pend.append((i, p))
    def flush():
        if not diag: return
        a("s_waitcnt lgkmcnt(0)")
        for i, p in pend: a(f"v_writelane_b32 v255, s{p}, {i}")
        pend.clear()
    def dump():
        if not diag: return
        a("s_mov_b64 exec, -1")
        a("s_lshl_b32 s74, s2, 2\n s_add_u32 s74, s74, s3\n s_lshl_b32 s74, s74, 8")
        a(f"s_add_u32 s74, s74, {WS_DIAG}")
        a("v_lshlrev_b32 v254, 2, v0")
        a("s_mov_b32 s22, 0x200000")
        a("buffer_store_dword v255, v254, s[20:23], s74 offen")
    def srd(d, p, n):
        a(f"s_mov_b64 s[{d}:{d+1}], s[{p}:{p+1}]\n s_mov_b32 s{d+2}, {n}\n s_mov_b32 s{d+3}, 0x20000")
    def rowred(regs, op):
        for ctl in ("quad_perm:[1,0,3,2]", "quad_perm:[2,3,0,1]", "row_half_mirror", "row_mirror"):
            for r in regs: a(f"{op}_dpp v{r}, v{r}, v{r} {ctl} {DPP}")
    def xrow(r, t, op):
        for sw in ("v_permlane16_swap_b32", "v_permlane32_swap_b32"):
            a(f"v_mov_b32 v{t}, v{r}\n {sw} v{r}, v{t}\n {op} v{r}, v{r}, v{t}")
    def rnd(r):
        a(f"v_cvt_pk_bf16_f32 v{r}, v{r}, v{r}\n v_and_b32 v{r}, s78, v{r}")
    def chk4(acc, r, first):
        if first: a(f"v_max3_u32 v{acc}, v{r}, v{r+1}, v{r+2}\n v_max_u32 v{acc}, v{r+3}, v{acc}")
        else:     a(f"v_max3_u32 v{acc}, v{r}, v{r+1}, v{acc}\n v_max3_u32 v{acc}, v{r+2}, v{r+3}, v{acc}")
    def spin_end(acc, again):
        lab = a.label("L_ok")
        a(f"v_cmp_eq_u32 vcc, -1, v{acc}\n s_cbranch_vccz {lab}")
        a(f"s_add_u32 s81, s81, 1\n s_cmp_lt_u32 s81, {SPIN}\n s_cbranch_scc1 {again}")
        a(f"{lab}:")
    def kvload(kind, i):
        if WIN and (kind == "v" and i < QPOLL + QL or kind == "k" and i >= KF): a(f"s_waitcnt vmcnt({WIN-1})")
        if kind == "k": a(f"buffer_load_dwordx4 a[{4*i}:{4*i+3}], v1, s[8:11], s68 offen {NT}")
        else:           a(f"buffer_load_dwordx4 a[{128+4*i}:{131+4*i}], v2, s[12:15], s68 offen {NT}")
        a(f"s_addk_i32 s68, {STEP*1024}\n s_and_b32 s68, s68, s69")

    a("s_cmp_ge_u32 s2, 256\n s_cbranch_scc1 L_end")
    a("s_load_dwordx16 s[44:59], s[0:1], 0\n s_load_dwordx8 s[60:67], s[0:1], 64")
    if diag:
        for r in range(86, 102, 2): a(f"s_mov_b64 s[{r}:{r+1}], 0")
    stamp(0)
    a("v_lshrrev_b32 v1, 6, v0\n s_and_b32 s4, s2, 7\n s_lshr_b32 s5, s2, 3\n v_readfirstlane_b32 s3, v1")
    if PFC:
        a("s_cmp_eq_u32 s5, 31\n s_cbranch_scc0 L_nopfc")
        a("s_getpc_b64 s[82:83]")
        a("L_pc:")
        a("v_lshlrev_b32 v97, 6, v0\n v_min_u32 v97, CODE_REST, v97\n global_load_dword v206, v97, s[82:83]")
        a("L_nopfc:")
    a("v_and_b32 v0, 63, v0")
    if diag: a("v_mov_b32 v255, 0")
    a("s_lshr_b32 s76, s5, 4\n s_lshl_b32 s74, s4, 1\n s_add_u32 s76, s76, s74")
    a("s_and_b32 s77, s5, 15")
    a("s_movk_i32 s69, 0x7fff")
    a("s_lshl_b32 s68, s2, 2\n s_add_u32 s68, s68, s3\n s_mul_i32 s68, s68, 0x9E3779B1\n s_lshr_b32 s68, s68, 27\n s_lshl_b32 s68, s68, 10")
    a("v_bfe_u32 v92, v0, 2, 2\n v_lshrrev_b32 v93, 4, v0\n v_and_b32 v94, 3, v0")
    a("v_lshlrev_b32 v1, 8, v92\n v_lshl_add_u32 v1, v93, 6, v1\n v_lshl_add_u32 v1, v94, 4, v1")
    a("v_lshrrev_b32 v96, 3, v0\n v_and_b32 v95, 7, v0\n v_lshlrev_b32 v97, 7, v95\n v_lshl_add_u32 v97, v96, 13, v97")
    a("s_lshr_b32 s82, s77, 2\n s_lshl_b32 s82, s82, 4\n s_add_u32 s82, s82, s76\n s_lshl_b32 s82, s82, 21")
    a(f"s_and_b32 s83, s77, 3\n s_lshl_b32 s83, s83, 2\n s_add_u32 s83, s83, s3\n s_lshl_b32 s83, s83, 15\n s_add_u32 s82, s82, s83\n s_add_u32 s82, s82, {6144*256}")
    a("s_mov_b32 s10, 32768\n s_mov_b32 s11, 0x20000\n s_mov_b32 s18, 4718592\n s_mov_b32 s19, 0x20000")
    a("s_sub_u32 s70, s5, 18\n s_cmp_lt_u32 s5, 8\n s_cselect_b32 s70, s5, s70\n s_lshl_b32 s70, s70, 2\n s_add_u32 s70, s70, s3")
    a("s_lshl_b32 s73, s70, 16\n s_lshl_b32 s74, s4, 10\n s_add_u32 s73, s73, s74")
    a("s_sub_u32 s74, s5, 8\n s_cmp_lt_u32 s74, 18")
    a("s_waitcnt lgkmcnt(0)")
    a("s_mov_b64 s[16:17], s[50:51]\n s_cbranch_scc1 L_notq")
    a(f"buffer_load_dword v207, v97, s[16:19], s73 offen {QNT}")
    a(f"s_cmp_lt_u32 s5, 8\n s_cbranch_scc1 L_notq\n s_add_u32 s73, s73, {24*65536}\n buffer_load_dword v208, v97, s[16:19], s73 offen {QNT}")
    a("L_notq:")
    a("s_add_u32 s8, s46, s82\n s_addc_u32 s9, s47, 0")
    for i in range(KF): kvload("k", i)
    a(f"s_load_dword s54, s[66:67], {WS_EP}")
    a("s_add_u32 s12, s48, s82\n s_addc_u32 s13, s49, 0\n s_mov_b32 s14, 32768\n s_mov_b32 s15, 0x20000")
    srd(20, 66, WS_END); srd(24, 44, 4608); srd(28, 56, 5308416); srd(32, 58, 5308416); srd(36, 62, 4608); srd(40, 64, 256)
    a(f"s_mov_b32 s78, 0xffff0000\n s_mov_b32 s79, {f2u(128 ** -0.5):#x}\n s_mov_b32 s80, {f2u(1.4426950408889634):#x}")
    a("v_lshlrev_b32 v2, 4, v0")
    a("s_and_b32 s82, s3, 1\n s_lshl_b32 s82, s82, 2")
    a("v_and_b32 v97, 2, v96\n v_or_b32 v97, s82, v97\n v_xor_b32 v95, v95, v97\n v_lshlrev_b32 v95, 4, v95")
    a("s_lshl_b32 s83, s3, 10\n s_mov_b32 m0, s83")
    a("s_mul_i32 s75, s3, 9216\n s_movk_i32 s74, 1152\n s_mov_b32 s71, 36864")
    a("s_cmp_lt_u32 s5, 8\n s_cbranch_scc1 L_dq\n s_cmp_lt_u32 s5, 17\n s_cbranch_scc1 L_dw\n s_cmp_lt_u32 s5, 26\n s_cbranch_scc1 L_df")
    a("s_mov_b32 s6, 3\n s_sub_u32 s7, s5, 26\n s_lshl_b32 s7, s7, 3\n s_add_u32 s7, s7, s4")
    a("v_mov_b32 v188, -1\n v_mov_b32 v189, -1\n v_mov_b32 v190, -1\n v_mov_b32 v191, -1")
    a(f"s_lshl_b32 s82, s7, 2\n s_add_u32 s82, s82, s3\n s_mul_i32 s82, s82, 3072\n s_add_u32 s82, s82, {WS_ST}")
    if CLR:
        for i in range(3): a(f"buffer_store_dwordx4 v[188:191], v2, s[20:23], s82 offen offset:{1024*i} sc1")
    a("s_branch L_kld")
    a("L_dq:")
    a("s_mov_b32 s6, 0\n s_lshl_b32 s7, s4, 3\n s_add_u32 s7, s7, s5\n s_movk_i32 s74, 8192\n s_mov_b32 s71, 262144\n s_mov_b32 s72, 262144")
    a("s_lshl_b32 s73, s7, 7\n s_lshl_b32 s75, s3, 16")
    a("v_cmp_gt_u32 vcc, 36, v0\n v_mov_b32 v97, 0x10000\n v_cndmask_b32 v97, v97, v2, vcc\n s_mul_i32 s82, s3, 1152")
    a("buffer_load_dwordx4 v[188:191], v97, s[24:27], s82 offen\n buffer_load_dwordx4 v[192:195], v97, s[24:27], s82 offen offset:576")
    a("s_branch L_dma")
    a("L_dw:")
    a("s_mov_b32 s6, 1\n s_sub_u32 s7, s5, 8\n s_mov_b32 s72, 36864\n s_mul_i32 s73, s4, 589824\n s_lshl_b32 s82, s7, 7\n s_add_u32 s73, s73, s82")
    a("s_mov_b64 s[16:17], s[52:53]\n s_branch L_dma")
    a("L_df:")
    a(f"s_mov_b32 s6, 2\n s_mul_i32 s7, s4, 9\n s_add_u32 s7, s7, s5\n s_sub_u32 s7, s7, 17\n s_mov_b32 s72, {(128 - 36864) & 0xffffffff:#x}\n s_mul_i32 s73, s7, 73728")
    a("s_mov_b64 s[16:17], s[60:61]\n s_mov_b32 s18, 5308416")
    a("v_bfe_u32 v97, v0, 1, 2\n v_mul_u32_u24 v97, 1152, v97")
    a("v_bfe_u32 v98, v0, 5, 1\n v_lshl_add_u32 v97, v98, 6, v97\n v_bfe_u32 v98, v0, 3, 1\n v_lshl_add_u32 v97, v98, 5, v97")
    a("v_and_b32 v98, 1, v0\n v_lshl_add_u32 v97, v98, 4, v97\n v_bfe_u32 v98, v0, 4, 1\n v_lshl_add_u32 v97, v98, 3, v97")
    a("s_lshl_b32 s82, s3, 7")
    a("buffer_load_dwordx2 v[188:189], v97, s[24:27], s82 offen\n buffer_load_dwordx2 v[190:191], v97, s[24:27], s82 offen offset:512")
    a("buffer_load_dwordx2 v[192:193], v97, s[24:27], 0 offen offset:1024")
    a("L_dma:")
    a("s_add_u32 s73, s73, s75\n v_mad_u32_u24 v3, v96, s74, v95")
    for n in range(18):
        if n == 16: a("s_cmp_eq_u32 s6, 1\n s_cbranch_scc1 L_kld")
        if WIN: a(f"s_waitcnt vmcnt({WIN-1})")
        a(f"buffer_load_dwordx4 v3, s[16:19], s73 offen {NT} lds")
        if n < 17: a(f"s_addk_i32 m0, 0x1000\n s_add_u32 s73, s73, s{71 + (n & 1)}")
    a("L_kld:")
    nk = KF
    for i in range(NK1): kvload("k", nk); nk += 1
    a("v_lshrrev_b32 v97, 1, v92\n v_and_b32 v98, 1, v93\n v_lshl_or_b32 v97, v98, 1, v97\n v_xor_b32 v97, s3, v97")
    a("v_lshl_add_u32 v4, v93, 3, v92\n v_lshlrev_b32 v4, 7, v4\n v_lshl_add_u32 v4, v97, 5, v4\n v_lshl_add_u32 v4, v94, 3, v4\n v_add_u32 v5, 36864, v4")

    a("s_cmp_eq_u32 s6, 0\n s_cbranch_scc0 L_early")
    a(f"s_waitcnt vmcnt({18 + NK1})")
    for i in range(8):
        a(f"v_lshlrev_b32 v{172+2*i}, 16, v{188+i}\n v_and_b32 v{173+2*i}, s78, v{188+i}")
    a("v_add_f32 v196, v172, v173")
    for i in range(2, 16): a(f"v_add_f32 v196, v196, v{172+i}")
    rowred([196], "v_add_f32"); xrow(196, 197, "v_add_f32")
    a(f"v_mul_f32 v196, {f2u(1/576):#x}, v196")
    a("v_sub_f32 v198, v172, v196\n v_mul_f32 v197, v198, v198")
    for i in range(1, 16): a(f"v_sub_f32 v198, v{172+i}, v196\n v_fmac_f32 v197, v198, v198")
    a("v_cmp_gt_u32 vcc, 36, v0\n v_cndmask_b32 v197, 0, v197, vcc")
    rowred([197], "v_add_f32"); xrow(197, 198, "v_add_f32")
    a(f"v_mul_f32 v197, {f2u(1/576):#x}, v197")
    rnd(196); rnd(197)
    a(f"v_add_f32 v197, {f2u(1e-5):#x}, v197"); rnd(197)
    a("v_sqrt_f32 v197, v197"); rnd(197)
    a("v_rcp_f32 v197, v197")
    for i in range(8):
        lo, hi = 172 + 2*i, 173 + 2*i
        a(f"v_sub_f32 v{lo}, v{lo}, v196\n v_sub_f32 v{hi}, v{hi}, v196\n v_cvt_pk_bf16_f32 v198, v{lo}, v{hi}")
        a(f"v_lshlrev_b32 v{lo}, 16, v198\n v_and_b32 v{hi}, s78, v198\n v_mul_f32 v{lo}, v{lo}, v197\n v_mul_f32 v{hi}, v{hi}, v197")
        a(f"v_cvt_pk_bf16_f32 v{188+i}, v{lo}, v{hi}")
    a(f"v_lshrrev_b32 v198, 2, v0\n v_mul_u32_u24 v198, {IMG_T}, v198\n v_lshl_add_u32 v198, v94, 6, v198")
    a(f"s_lshl_b32 s82, s3, 4\n s_add_u32 s82, s82, {IMG}\n v_add_u32 v198, s82, v198")
    a("s_mov_b64 exec, vcc")
    a(f"ds_write_b128 v198, v[188:191]\n ds_write_b128 v198, v[192:195] offset:{9*IMG_T}")
    a("s_mov_b64 exec, -1")
    a("L_early:")
    if probe >= 200:
        a("s_waitcnt lgkmcnt(0)\n s_cmp_eq_u32 s5, 30\n s_cbranch_scc0 L_npb\n v_mov_b32 v97, s84\n v_mov_b32 v98, 0\n s_lshl_b32 s82, s4, 2\n s_add_u32 s82, s82, 128")
        a("s_mov_b64 exec, 1\n buffer_store_dword v97, v98, s[40:43], s82 offen sc1\n s_mov_b64 exec, -1")
        a("L_npb:")
    a(f"s_waitcnt vmcnt({NK1}) lgkmcnt(0)\n s_barrier\n s_add_u32 s54, s54, 1")
    stamp(1)
    a("s_cmp_eq_u32 s6, 3\n s_cbranch_scc0 L_etr")
    a("s_add_u32 s82, s7, 64\n v_mov_b32 v97, 1\n v_mov_b32 v98, 0\n s_cmp_eq_u32 s3, 0\n s_cbranch_scc0 L_k2")
    a("s_mov_b64 exec, 1\n buffer_store_byte v97, v98, s[40:43], s82 offen sc1\n s_mov_b64 exec, -1\n s_branch L_k2")
    a("L_etr:")
    def trread(dst, base_lo, base_hi, t):
        b, off = (base_lo, t * 4096) if t < 9 else (base_hi, (t - 9) * 4096)
        k, n = dst
        a(f"ds_read_b64_tr_b16 {k}[{n}:{n+1}], v{b} offset:{off}\n ds_read_b64_tr_b16 {k}[{n+2}:{n+3}], v{b} offset:{off+512}")
    for t in range(18): trread(("v", 100 + 4*t), 4, 5, t)
    a("s_cmp_eq_u32 s6, 0\n s_cbranch_scc0 L_k2")
    a(f"v_lshl_add_u32 v198, v93, 2, v94\n v_lshlrev_b32 v198, 4, v198\n v_add_u32 v198, {IMG}, v198")
    for t in range(18): a(f"ds_read_b128 v[{20+4*t}:{23+4*t}], v198 offset:{t*IMG_T}")
    a("s_waitcnt lgkmcnt(0)")
    for t in range(18):
        a(f"{MF} v[16:19], v[{100+4*t}:{103+4*t}], v[{20+4*t}:{23+4*t}], {'0' if t == 0 else 'v[16:19]'}")
    a("v_lshlrev_b32 v198, 14, v94\n v_lshl_add_u32 v198, v93, 4, v198")
    a("s_lshl_b32 s82, s7, 8\n s_lshl_b32 s83, s3, 6\n s_add_u32 s82, s82, s83")
    a("v_cvt_pk_bf16_f32 v16, v16, v17\n v_cvt_pk_bf16_f32 v18, v18, v19\n v_mov_b32 v17, s54\n v_mov_b32 v19, s54")
    a("s_mov_b32 exec_lo, 0x000f000f\n s_mov_b32 exec_hi, 0x000f000f")
    a("buffer_store_dwordx4 v[16:19], v198, s[20:23], s82 offen sc1")
    a("s_mov_b64 exec, -1")
    stamp(11)
    a("L_k2:")
    while nk < 32:
        if nk == max(EPOS, KF + NK1):
            a("s_movk_i32 s82, 9216\n v_mad_u32_u24 v6, v96, s82, v95")
            a("s_sub_u32 s83, s6, 1\n s_cmp_lt_u32 s83, 2\n s_cbranch_scc1 L_noe")
            a("v_mul_u32_u24 v6, 7282, v0\n v_lshrrev_b32 v6, 16, v6\n v_mul_u32_u24 v97, 9, v6\n v_sub_u32 v97, v0, v97\n v_min_u32 v6, 6, v6")
            a("v_mul_u32_u24 v6, 9216, v6\n v_lshl_add_u32 v6, v97, 7, v6\n s_mul_i32 s59, s4, 1152")
            if ER:
                a(f"s_mul_i32 s82, s70, {ER*9216}\n s_add_u32 s82, s82, s59")
                m = (1 << (9 * ER)) - 1
                a(f"s_mov_b32 exec_lo, {m & 0xffffffff:#x}\n s_mov_b32 exec_hi, {m >> 32:#x}")
                a(f"buffer_load_dword v209, v6, s[28:31], s82 offen {PNT}\n s_mov_b64 exec, -1")
            a("L_noe:")
        kvload("k", nk); nk += 1
    for i in range(QPOLL): kvload("v", i)

    a("v_bfe_u32 v62, v0, 2, 1\n v_lshlrev_b32 v62, 9, v62\n v_lshl_add_u32 v62, v93, 7, v62\n v_lshl_add_u32 v62, v94, 5, v62")
    a("v_min_u32 v63, 11, v0\n v_lshlrev_b32 v63, 2, v63")
    a("s_lshr_b32 s82, s77, 2\n s_lshl_b32 s82, s82, 14\n s_lshl_b32 s83, s76, 10\n s_add_u32 s82, s82, s83")
    def qpass():
        a("buffer_load_dword v60, v63, s[40:43], 0 offen offset:64 sc1")
        a("buffer_load_dwordx4 v[52:55], v62, s[20:23], s82 offen sc1\n buffer_load_dwordx4 v[56:59], v62, s[20:23], s82 offen offset:16 sc1")
    stamp(2)
    qpass()
    nv = QPOLL
    for i in range(QL): kvload("v", nv); nv += 1
    a("v_and_b32 v97, 1, v0\n v_cmp_eq_u32 vcc, 1, v97\n v_mov_b32 v98, 0xffff\n v_mov_b32 v99, s78\n v_cndmask_b32 v98, v98, v99, vcc")
    a("v_bfe_u32 v97, v0, 3, 1\n v_bfe_u32 v99, v0, 1, 1\n v_lshl_or_b32 v97, v97, 1, v99")
    for d in range(4): a(f"v_cmp_eq_u32 vcc, {d}, v97\n v_cndmask_b32 v{12+d}, 0, v98, vcc")
    a("v_mov_b32 v7, 0xff800000\n s_mov_b32 s81, 0")
    a(f"s_waitcnt vmcnt({QL})\n s_branch L_qchk")
    a("L_qpoll:")
    qpass()
    a(f"s_add_u32 s81, s81, 1\n s_cmp_gt_u32 s81, {SPIN}\n s_waitcnt vmcnt(0)\n s_cbranch_scc1 L_qgo")
    a("L_qchk:")
    a("v_xor_b32 v60, 0x01010101, v60")
    for r in (53, 55, 57, 59): a(f"v_xor_b32 v{r}, s54, v{r}")
    a("v_or3_b32 v60, v60, v53, v55\n v_or3_b32 v60, v60, v57, v59\n v_cmp_ne_u32 vcc, 0, v60\n s_cbranch_vccnz L_qpoll")
    a("L_qgo:")
    a("v_mov_b32 v8, v52\n v_mov_b32 v9, v54\n v_mov_b32 v10, v56\n v_mov_b32 v11, v58")
    stamp(3)
    def qk(gi):
        for q in range(4):
            d = 52 + 16 * (gi & 1) + 4 * q; k = 16 * gi + 4 * q
            a(f"{MF} v[{d}:{d+3}], a[{k}:{k+3}], v[8:11], 0")
    qk(0)
    for gi in range(8):
        if gi < 7: qk(gi + 1)
        D = 52 + 16 * (gi & 1); T = 20 + 4 * gi
        for u in range(4):
            for q in range(4):
                if u == 0: a(f"v_mov_b32_dpp v{T+q}, v{D+4*q} quad_perm:[0,0,0,0] {DPP}")
                else:      a(f"v_add_f32_dpp v{T+q}, v{D+4*q+u}, v{T+q} quad_perm:[{u},{u},{u},{u}] {DPP}")
        a(f"v_max3_f32 v7, v{T}, v{T+1}, v7\n v_max3_f32 v7, v{T+2}, v{T+3}, v7")
        for rep in range(2):
            a(f"v_cvt_pk_bf16_f32 v97, v{T}, v{T+1}\n v_cvt_pk_bf16_f32 v98, v{T+2}, v{T+3}")
            a(f"v_lshlrev_b32 v{T}, 16, v97\n v_and_b32 v{T+1}, s78, v97\n v_lshlrev_b32 v{T+2}, 16, v98\n v_and_b32 v{T+3}, s78, v98")
            if rep == 0:
                for q in range(4): a(f"v_mul_f32 v{T+q}, s79, v{T+q}")
        kvload("v", nv); nv += 1
    xrow(7, 97, "v_max_f32")
    rnd(7); a("v_mul_f32 v7, s79, v7"); rnd(7)
    a("v_mul_f32 v52, s80, v7")
    for i in range(32): a(f"v_fma_f32 v{20+i}, v{20+i}, s80, -v52")
    kvload("v", nv); nv += 1
    for i in range(32):
        a(f"v_exp_f32 v{20+i}, v{20+i}")
        if i == 2: a("v_add_f32 v53, v20, v21")
        if i > 2:  a(f"v_add_f32 v53, v53, v{19+i}")
        if i == 15: kvload("v", nv); nv += 1
    a("v_add_f32 v53, v53, v51")
    kvload("v", nv); nv += 1
    xrow(53, 97, "v_add_f32")
    a(f"v_bfe_u32 v97, v0, 2, 1\n v_lshlrev_b32 v97, 5, v97\n s_lshl_b32 s82, s3, 3\n s_add_u32 s82, s82, {ST}\n v_add_u32 v97, s82, v97")
    a("s_mov_b64 exec, 0x11\n ds_write_b64 v97, v[52:53]\n s_mov_b64 exec, -1")
    stamp(4); flush()
    def pbuild(i):
        P = 84 + 4 * (i & 1)
        a(f"v_cvt_pk_bf16_f32 v99, v{20+i}, v{20+i}")
        for d in range(4): a(f"v_and_b32 v{P+d}, v99, v{12+d}")
    def pv(i):
        P = 84 + 4 * (i & 1)
        a(f"{MF} v[16:19], v[{P}:{P+3}], a[{128+4*i}:{131+4*i}], {'0' if i == 0 else 'v[16:19]'}")
    done = nv - LAG
    a(f"s_waitcnt vmcnt({LAG})")
    pbuild(0)
    for i in range(done):
        pbuild(i + 1); pv(i)
    a("s_waitcnt lgkmcnt(0)\n s_barrier")
    a(f"v_and_b32 v97, 1, v93\n v_lshlrev_b32 v97, 5, v97\n v_add_u32 v98, s82, v97\n v_add_u32 v97, {ST}, v97")
    a("ds_read_b128 v[56:59], v97\n ds_read_b128 v[60:63], v97 offset:16\n ds_read_b32 v64, v98")
    kvload("v", nv); nv += 1
    a("s_waitcnt lgkmcnt(0)")
    a("v_max3_f32 v65, v56, v58, v60\n v_max_f32 v65, v65, v62")
    for r in (56, 58, 60, 62, 64): a(f"v_sub_f32 v{r}, v{r}, v65")
    for r in (56, 58, 60, 62, 64): a(f"v_exp_f32 v{r}, v{r}")
    a("v_mul_f32 v66, v56, v57\n v_fmac_f32 v66, v58, v59\n v_fmac_f32 v66, v60, v61\n v_fmac_f32 v66, v62, v63")
    a("v_rcp_f32 v67, v66\n v_log_f32 v66, v66")
    a("v_mul_f32 v7, v64, v67")
    a("v_add_f32 v66, v66, v65\n v_min_u32 v66, -2, v66")
    def lse_pub():
        a("s_cmp_eq_u32 s3, 0\n s_cbranch_scc0 L_nolse")
        a(f"s_lshl_b32 s82, s4, 5\n s_add_u32 s82, s82, s5\n s_lshl_b32 s82, s82, 7\n s_add_u32 s82, s82, {WS_ST}")
        a("v_lshlrev_b32 v97, 2, v93\n s_mov_b64 exec, 0x10001\n buffer_store_dword v66, v97, s[20:23], s82 offen sc1\n s_mov_b64 exec, -1")
        a("L_nolse:")
    G = max(G, nv)
    if nv == G: lse_pub()
    a(f"s_waitcnt vmcnt({LAG})"); pv(done); done += 1
    while nv < 32:
        kvload("v", nv); nv += 1
        if nv == G: lse_pub()
        if nv == 32:
            a("s_cmp_eq_u32 s6, 1\n s_cbranch_scc0 L_tq")
            a(f"v_and_b32 v68, 15, v0\n v_lshlrev_b32 v68, 7, v68\n s_lshl_b32 s56, s4, 12\n s_add_u32 s56, s56, {WS_ST}")
            a("buffer_load_dwordx2 v[74:75], v68, s[20:23], s56 offen offset:2048 sc1\n s_branch L_tl")
            a("L_tq:")
            sh = {8: 2, 4: 3, 2: 4, 1: 5}[REPS]
            a(f"v_and_b32 v68, {REPS-1}, v96\n v_lshlrev_b32 v68, {sh}, v68\n v_and_b32 v69, 7, v0\n v_lshl_add_u32 v68, v69, 5, v68\n v_lshlrev_b32 v68, 7, v68")
            a(f"s_cmp_eq_u32 s3, 1\n s_cselect_b32 s56, {WS_ST + 128 * (3 if REPS > 1 else 19)}, s22\n v_mov_b32 v74, 0\n v_mov_b32 v75, 0")
            a("L_tl:")
            a("buffer_load_dwordx2 v[72:73], v68, s[20:23], s56 offen sc1")
        pbuild(done); a(f"s_waitcnt vmcnt({LAG + (nv == 32)})"); pv(done); done += 1
    a(f"s_lshl_b32 s82, s76, 13\n s_lshl_b32 s83, s77, 8\n s_add_u32 s82, s82, s83\n s_add_u32 s57, s82, {WS_A}")
    a("v_and_b32 v97, 15, v0\n v_lshlrev_b32 v97, 4, v97\n v_lshl_add_u32 v97, v93, 12, v97")
    a(f"s_lshl_b32 s82, s3, 10\n s_mov_b32 m0, s82\n s_add_u32 s82, s82, {CMB}\n v_add_u32 v98, s82, v2")
    for i in range(done, 32):
        pbuild(i); a(f"s_waitcnt vmcnt({32 - i})"); pv(i)
    stamp(5)
    for i in range(4): a(f"v_mul_f32 v{16+i}, v{16+i}, v7")
    a("ds_write_b128 v98, v[16:19]\n s_cmp_eq_u32 s3, 0\n s_waitcnt lgkmcnt(0)\n s_barrier\n s_cbranch_scc0 L_pubd")
    for w in range(1, 4): a(f"ds_read_b128 v[{52+4*w}:{55+4*w}], v98 offset:{1024*w}")
    for w in range(1, 4):
        a(f"s_waitcnt lgkmcnt({0 if diag else 3 - w})")
        a(f"v_pk_add_f32 v[16:17], v[16:17], v[{52+4*w}:{53+4*w}]\n v_pk_add_f32 v[18:19], v[18:19], v[{54+4*w}:{55+4*w}]")
    a("v_cvt_pk_bf16_f32 v16, v16, v17\n v_cvt_pk_bf16_f32 v17, v18, v19\n v_min_u32 v16, -2, v16\n v_min_u32 v17, -2, v17")
    a("v_permlane32_swap_b32 v16, v18\n v_permlane32_swap_b32 v17, v19")
    a("s_mov_b32 exec_hi, 0\n buffer_store_dwordx4 v[16:19], v97, s[20:23], s57 offen sc1\n s_mov_b64 exec, -1")
    a("L_pubd:")
    stamp(6)
    def late(n):
        s = 28 if n < 18 else 32
        a(f"buffer_load_dwordx4 v6, s[{s}:{s+3}], s73 offen {NT} lds")
        a("s_addk_i32 m0, 0x1000")
        if n == 17: a("s_mov_b32 s73, s58")
        else:       a("s_add_u32 s73, s73, 294912")
    a("s_waitcnt vmcnt(1)\n s_cmp_eq_u32 s3, 0\n s_cbranch_scc1 L_tw\n s_waitcnt vmcnt(0)")
    a("L_tw:")
    a("s_cmp_eq_u32 s6, 2\n s_cbranch_scc0 L_tab0")
    a("s_lshl_b32 s73, s7, 7\n s_mul_i32 s82, s3, 73728\n s_add_u32 s73, s73, s82\n s_mov_b32 s58, s73")
    for n in range(NE): late(n)
    a("L_tab0:")
    if not GATE: a("s_cmp_eq_u32 s6, 1\n s_cbranch_scc0 L_tab2")
    a("s_mov_b32 s81, 0\n s_branch L_tab1")
    a("L_tab:")
    a("buffer_load_dwordx2 v[72:73], v68, s[20:23], s56 offen sc1\n s_cmp_eq_u32 s6, 1\n s_cbranch_scc0 L_tabw")
    a("buffer_load_dwordx2 v[74:75], v68, s[20:23], s56 offen offset:2048 sc1")
    a("L_tabw:")
    a("s_waitcnt vmcnt(0)")
    a("L_tab1:")
    chk4(99, 72, True); spin_end(99, "L_tab")
    a("s_cmp_eq_u32 s6, 1\n s_cbranch_scc1 L_W")
    a("L_tab2:")
    a("s_barrier")
    stamp(12)
    base_pend = list(pend)
    a("s_cmp_eq_u32 s6, 2\n s_cbranch_scc1 L_F")
    NG = (576 - N1) // 7
    assert NG * 7 == 576 - N1
    a(f"s_mov_b32 s18, 5308416\n s_sub_u32 s59, s59, {NG*7*9216}")
    for i in range((NG + 83 + 55) // 56):
        a(f"s_cmp_lt_u32 s70, {NG}\n s_cselect_b64 s[16:17], s[28:29], s[32:33]\n s_cselect_b32 s82, s18, 0")
        a(f"s_mul_i32 s83, s70, {7*9216}\n s_add_u32 s82, s82, s83\n s_add_u32 s82, s82, s59")
        a(f"buffer_load_dword v{200+i}, v6, s[16:19], s82 offen {PNT}\n s_add_u32 s70, s70, 56")
    a("s_cmp_eq_u32 s6, 3\n s_cbranch_scc1 L_R\n s_branch L_fin")

    pend[:] = base_pend[:-1]
    a("L_W:")
    a(f"s_lshl_b32 s83, s4, 2\n s_add_u32 s83, s83, s3\n s_lshl_b32 s83, s83, 12\n s_add_u32 s83, s83, {WS_A}")
    def apass():
        for i in range(4): a(f"buffer_load_dwordx4 v[{172+4*i}:{175+4*i}], v2, s[20:23], s83 offen offset:{1024*i} sc1")
    apass()
    for hh in range(4): a(f"v_max_f32_dpp v{24+hh}, v{72+hh}, v{72+hh} quad_perm:[1,0,3,2] {DPP}")
    for hh in range(4): a(f"v_max_f32_dpp v{24+hh}, v{24+hh}, v{24+hh} quad_perm:[2,3,0,1] {DPP}")
    for hh in range(4): a(f"v_sub_f32 v{20+hh}, v{72+hh}, v{24+hh}")
    for hh in range(4): a(f"v_exp_f32 v{20+hh}, v{20+hh}")
    for hh in range(4): a(f"v_add_f32_dpp v{24+hh}, v{20+hh}, v{20+hh} quad_perm:[1,0,3,2] {DPP}")
    for hh in range(4): a(f"v_add_f32_dpp v{24+hh}, v{24+hh}, v{24+hh} quad_perm:[2,3,0,1] {DPP}")
    for hh in range(4): a(f"v_rcp_f32 v{24+hh}, v{24+hh}")
    for hh in range(4): a(f"v_mul_f32 v{20+hh}, v{20+hh}, v{24+hh}")
    a(f"v_and_b32 v97, 15, v0\n v_and_b32 v28, 7, v0\n v_xor_b32 v28, v28, v93\n v_lshlrev_b32 v28, 4, v28\n v_lshl_add_u32 v28, v97, 8, v28")
    a(f"s_lshl_b32 s82, s3, 12\n s_add_u32 s82, s82, {OIM}\n v_add_u32 v28, s82, v28\n v_xor_b32 v29, 64, v28")
    a(f"v_xor_b32 v30, v97, v93\n v_lshlrev_b32 v30, 4, v30\n v_lshl_add_u32 v30, v93, 8, v30\n v_add_u32 v30, {OIM}, v30\n v_xor_b32 v31, 64, v30")
    a("v_lshlrev_b32 v32, 5, v92\n v_lshl_add_u32 v32, v93, 3, v32")
    a(f"s_lshr_b32 s82, s3, 1\n s_lshl_b32 s58, s7, 1\n s_add_u32 s82, s82, s58\n s_lshl_b32 s82, s82, 3\n s_add_u32 s82, s82, s4\n s_lshl_b32 s82, s82, 1")
    a(f"s_and_b32 s58, s3, 1\n s_add_u32 s82, s82, s58\n s_lshl_b32 s82, s82, 7\n s_add_u32 s82, s82, {WS_B}")
    a("s_mov_b32 s81, 0\n s_branch L_wchk")
    a("L_wa:")
    if MASK: a("s_mov_b64 exec, vcc")
    apass()
    if MASK: a("s_mov_b64 exec, -1")
    a("L_wchk:")
    for i in range(4):
        a(f"s_waitcnt vmcnt({3 - i})\n ds_write_b128 v{28 + (i & 1)}, v[{172+4*i}:{175+4*i}] offset:{128 * (i >> 1)}")
        chk4(99, 172 + 4*i, i == 0)
    a("s_waitcnt lgkmcnt(0)")
    spin_end(99, "L_wa")
    stamp(7)
    if diag: a("s_waitcnt lgkmcnt(0)")
    a("s_barrier")
    for tt in range(16): a(f"ds_read_b128 v[{188+4*tt}:{191+4*tt}], v{30 + (tt & 1)} offset:{1024*tt}")
    def wfma(hh, i):
        a(f"v_mul_f32 v{52+i}, v{36+i}, v20" if hh == 0 else f"v_fmac_f32 v{52+i}, v{36+4*hh+i}, v{20+hh}")
    for tt in range(16):
        hh, t = tt >> 2, tt & 3
        a(f"s_waitcnt lgkmcnt({15 - tt})")
        a(f"{MF} v[{36+4*hh}:{39+4*hh}], v[{100+4*tt}:{103+4*tt}], v[{188+4*tt}:{191+4*tt}], {'0' if t == 0 else f'v[{36+4*hh}:{39+4*hh}]'}")
        if hh >= 2: wfma(hh - 2, t)
    a("s_mov_b32 s58, 0x11111111\n s_mov_b32 s59, 0x11111111")
    for hh in (2, 3):
        for i in range(4): wfma(hh, i)
    for ctl in ("quad_perm:[1,0,3,2]", "quad_perm:[2,3,0,1]"):
        for i in range(4): a(f"v_add_f32_dpp v{52+i}, v{52+i}, v{52+i} {ctl} {DPP}")
    a("v_cvt_pk_bf16_f32 v52, v52, v53\n v_cvt_pk_bf16_f32 v53, v54, v55\n v_min_u32 v52, -2, v52\n v_min_u32 v53, -2, v53")
    a("s_mov_b64 exec, s[58:59]")
    a("buffer_store_dwordx2 v[52:53], v32, s[20:23], s82 offen sc1")
    stamp(8); flush(); dump()
    a("s_endpgm")

    pend[:] = base_pend
    a("L_F:")
    for n in range(NE, 36):
        late(n)
        if n == NE + 9:
            for i in range(6): a(f"v_lshlrev_b32 v{172+2*i}, 16, v{188+i}\n v_and_b32 v{173+2*i}, s78, v{188+i}")
            a("v_mov_b32 v20, 0x3f803f80\n v_mov_b32 v21, v20\n v_mov_b32 v22, v20\n v_mov_b32 v23, v20")
            a(f"v_mul_u32_u24 v97, {IMG_T}, v0\n v_add_u32 v97, {IMG + 256}, v97\n s_mov_b64 exec, 0x3ffff\n ds_write_b128 v97, v[20:23]\n s_mov_b64 exec, -1")
            a("v_mov_b32 v24, 0\n v_mov_b32 v25, 0\n v_mov_b32 v26, 0\n v_mov_b32 v27, 0")
            a(f"v_mov_b32 v97, {ZER}\n ds_write_b128 v97, v[24:27]\n ds_write_b128 v97, v[24:27] offset:256")
            a("v_and_b32 v97, 1, v0\n v_cmp_eq_u32 vcc, 1, v97\n v_mov_b32 v98, 0x3f80\n v_mov_b32 v99, 0x3f800000\n v_cndmask_b32 v98, v98, v99, vcc\n v_bfe_u32 v97, v0, 1, 3")
            for d in range(8): a(f"v_cmp_eq_u32 vcc, {d}, v97\n v_cndmask_b32 v{8+d}, 0, v98, vcc")
        if n == NE + 12:
            a(f"v_bfe_u32 v97, v0, 1, 2\n v_bfe_u32 v28, v0, 5, 1\n v_mul_u32_u24 v28, {IMG_T}, v28\n v_bfe_u32 v98, v0, 3, 1\n v_lshl_add_u32 v28, v98, 7, v28")
            a("v_and_b32 v98, 1, v0\n v_lshl_add_u32 v28, v98, 6, v28\n v_lshl_add_u32 v28, v97, 4, v28\n v_bfe_u32 v98, v0, 4, 1\n v_lshl_add_u32 v28, v98, 3, v28")
            a(f"s_mul_i32 s82, s3, {2*IMG_T}\n s_add_u32 s82, s82, {IMG}\n v_add_u32 v28, s82, v28")
            a(f"v_lshlrev_b32 v29, 7, v97\n v_lshl_add_u32 v29, v93, 3, v29\n s_lshl_b32 s82, s3, 5\n s_add_u32 s82, s82, {HST}\n v_add_u32 v29, s82, v29")
            a(f"v_lshl_add_u32 v30, v93, 2, v92\n v_lshlrev_b32 v30, 4, v30\n v_mov_b32 v98, 256\n v_cmp_eq_u32 vcc, 1, v94\n v_cndmask_b32 v30, v30, v98, vcc\n v_add_u32 v30, {IMG}, v30")
            a(f"v_lshlrev_b32 v31, 3, v0\n v_add_u32 v31, {HST}, v31")
            a("v_bfe_u32 v32, v0, 3, 1\n v_lshlrev_b32 v32, 6, v32\n v_lshl_add_u32 v32, v93, 4, v32\n v_and_b32 v98, 7, v0\n v_lshl_add_u32 v32, v98, 1, v32")
            a(f"s_lshl_b32 s82, s3, 7\n s_add_u32 s82, s82, {ACT}\n v_add_u32 v32, s82, v32")
        if n == NE + 15:
            a(f"v_lshl_add_u32 v98, v93, 2, v94\n v_lshlrev_b32 v98, 4, v98\n v_add_u32 v98, {ACT}, v98\n v_mov_b32 v99, {ZER}")
            for e in range(4): a(f"v_cmp_eq_u32 vcc, {e}, v92\n v_cndmask_b32 v{33+e}, v99, v98, vcc")
            a(f"v_mul_u32_u24 v37, {2*IMG_T}, v92\n v_bfe_u32 v98, v0, 5, 1\n v_lshl_add_u32 v37, v98, 6, v37\n v_lshl_add_u32 v37, v94, 4, v37\n v_bfe_u32 v98, v0, 4, 1\n v_lshl_add_u32 v37, v98, 3, v37")
            a(f"s_lshr_b32 s82, s3, 1\n s_mul_i32 s82, s82, {IMG_T}\n s_and_b32 s83, s3, 1\n s_lshl_b32 s83, s83, 7\n s_add_u32 s82, s82, s83\n s_add_u32 s82, s82, {IMG}\n v_add_u32 v37, s82, v37")
            a("s_cmp_eq_u32 s7, 0\n s_cselect_b32 s75, s78, 0")
            a("v_mul_u32_u24 v38, 9216, v96\n v_and_b32 v98, 7, v0\n v_lshl_add_u32 v38, v98, 4, v38")
            a(f"v_lshlrev_b32 v39, 5, v94\n v_lshl_add_u32 v39, v93, 3, v39\n v_add_u32 v39, {8*9216}, v39")
            a(f"v_add_u32 v40, {R1}, v4\n v_add_u32 v41, {R1}, v5")
            for i in range(16): a(f"v_mov_b32 v{220+i}, 0")
            a("s_cmp_eq_u32 s3, 0\n s_cbranch_scc1 L_fx8")
            for i in range(4): a(f"v_mov_b32 v{180+i}, 0")
            a("L_fx8:")
    a(f"s_mul_i32 s58, s3, {9*9216}\n s_lshl_b32 s82, s7, 7\n s_add_u32 s58, s58, s82\n s_add_u32 s58, s58, {WS_C}")
    a(f"s_lshl_b32 s82, s3, 12\n s_add_u32 s82, s82, {WS_B}\n s_add_u32 s83, s82, 16384\n s_mov_b32 s59, {WS_B + 32768}")
    a("s_waitcnt vmcnt(9) lgkmcnt(0)\n s_barrier")
    for t in range(18): trread(("a", 4*t), 4, 5, t)
    for t in range(9): trread(("a", 72 + 4*t), 40, 41, t)
    def bpass():
        lab = a.label("L_fb")
        a(f"s_cmp_eq_u32 s3, 0\n s_cbranch_scc0 {lab}")
        for p in range(4): a(f"buffer_load_dwordx4 v[{220+4*p}:{223+4*p}], v2, s[20:23], s59 offen offset:{1024*p} sc1")
        a(f"{lab}:")
        for blk, so in ((0, "s82"), (1, "s83")):
            for p in range(4): a(f"buffer_load_dwordx4 v[{188+16*blk+4*p}:{191+16*blk+4*p}], v2, s[20:23], {so} offen offset:{1024*p} sc1")
    a("s_waitcnt vmcnt(0)")
    bpass()
    a("s_barrier")
    stamp(7)
    for t in range(9, 18): trread(("a", 72 + 4*t), 40, 41, t)
    a("s_mov_b32 s81, 0\n s_branch L_fchk")
    a("L_fa:")
    if MASK: a("s_mov_b64 exec, vcc")
    bpass()
    if MASK: a("s_mov_b64 exec, -1")
    a("L_fchk:")
    HD = 76
    k = 0
    for blk in (2, 0, 1):
        for p in range(4):
            r = 188 + 16 * blk + 4 * p; d = HD + 4 * blk
            a(f"s_waitcnt vmcnt({11 - k})")
            a(f"{MF} v[{d}:{d+3}], v[{8+4*(p>>1)}:{11+4*(p>>1)}], v[{r}:{r+3}], " + (f"v[{172+4*blk}:{175+4*blk}]" if p == 0 else f"v[{d}:{d+3}]"))
            chk4(99, r, k == 0); k += 1
    for blk in (2, 0):
        d = HD + 4 * blk
        a(f"v_cvt_pk_bf16_f32 v{44+2*blk}, v{d}, v{d+1}\n v_cvt_pk_bf16_f32 v{45+2*blk}, v{d+2}, v{d+3}")
    spin_end(99, "L_fa")
    stamp(8)
    a("ds_write_b64 v28, v[44:45]")
    a(f"v_cvt_pk_bf16_f32 v46, v{HD+4}, v{HD+5}\n v_cvt_pk_bf16_f32 v47, v{HD+6}, v{HD+7}")
    a(f"s_cmp_eq_u32 s3, 0\n ds_write_b64 v28, v[46:47] offset:{8*IMG_T}\n s_cbranch_scc0 L_fw8\n ds_write_b64 v28, v[48:49] offset:{16*IMG_T}")
    a("L_fw8:")
    a("s_waitcnt lgkmcnt(0)\n s_barrier")
    HF = 184
    def hread(t): a(f"ds_read_b128 v[{HF+4*(t%15)}:{HF+3+4*(t%15)}], v30 offset:{t*IMG_T}")
    for t in range(12): hread(t)
    a(f"v_add_f32 v42, v{HD}, v{HD+1}\n v_mul_f32 v43, v{HD}, v{HD}")
    st1 = []
    for i in range(1, 12):
        st1.append(([f"v_add_f32 v42, v42, v{HD+i}"] if i >= 2 else []) + [f"v_fmac_f32 v43, v{HD+i}, v{HD+i}"])
    for s in st1[:7]:
        for x in s: a(x)
    side = {0: st1[7] + st1[8], 1: st1[9] + st1[10]}
    side[2] = [f"v_add_f32_dpp v{r}, v{r}, v{r} quad_perm:[1,0,3,2] {DPP}" for r in (42, 43)]
    side[3] = [f"v_add_f32_dpp v{r}, v{r}, v{r} row_ror:8 {DPP}" for r in (42, 43)]
    side[5] = ["ds_write_b64 v29, v[42:43]"] + [f"ds_read_b64 v[{44+2*k}:{45+2*k}], v37 offset:{8*IMG_T*k}" for k in range(3)]
    side[8] = ["s_waitcnt lgkmcnt(0)", "s_barrier", "ds_read_b64 v[42:43], v31"]
    side[9] = [f"v_lshlrev_b32 v{60+2*i}, 16, v{44+i}" for i in range(3)]
    side[10] = [f"v_lshlrev_b32 v{60+2*i}, 16, v{44+i}" for i in range(3, 6)]
    side[11] = [f"v_and_b32 v{61+2*i}, s75, v{44+i}" for i in range(3)]
    side[12] = ["s_waitcnt lgkmcnt(0)"] + [f"v_add_f32_dpp v{r}, v{r}, v{r} quad_perm:[1,0,3,2] {DPP}" for r in (42, 43)] + ["v_and_b32 v67, s75, v47"]
    side[13] = [f"v_add_f32_dpp v{r}, v{r}, v{r} quad_perm:[2,3,0,1] {DPP}" for r in (42, 43)] + ["v_and_b32 v69, s75, v48"]
    side[14] = [f"v_add_f32_dpp v{r}, v{r}, v{r} row_half_mirror {DPP}" for r in (42, 43)] + ["v_and_b32 v71, s75, v49"]
    side[15] = [f"v_add_f32_dpp v{r}, v{r}, v{r} row_mirror {DPP}" for r in (42, 43)]
    side[16] = [f"v_mul_f32 v42, {f2u(1/576):#x}, v42", f"v_mul_f32 v43, {f2u(1/576):#x}, v43", "v_fma_f32 v43, -v42, v42, v43"]
    side[17] = [f"v_add_f32 v43, {f2u(1e-5):#x}, v43", "v_rsq_f32 v43, v43"] + [f"v_and_b32 v{60+2*i}, s75, v{60+2*i}" for i in range(6)]
    for t in range(18):
        h = HF + 4 * (t % 15)
        if t <= 5:   a("s_waitcnt lgkmcnt(11)")
        elif t <= 8: a(f"s_waitcnt lgkmcnt({17 - t + 4})")
        a(f"{MF} v[52:55], v[{h}:{h+3}], a[{4*t}:{4*t+3}], {'0' if t == 0 else 'v[52:55]'}")
        a(f"{MF} v[56:59], v[{h}:{h+3}], a[{72+4*t}:{75+4*t}], {'0' if t == 0 else 'v[56:59]'}")
        if t + 12 < 18: hread(t + 12)
        for s in side.get(t, []): a(s)
    c1 = -2 * 0.7978845608028654 * 1.4426950408889634
    a("v_fma_f32 v52, -v42, v53, v52\n v_fma_f32 v56, -v42, v57, v56\n v_mul_f32 v52, v52, v43")
    a(f"v_mov_b32 v54, {f2u(c1):#x}\n v_mul_f32 v53, v52, v52\n v_mul_f32 v56, v56, v43\n v_fmamk_f32 v53, v53, {f2u(c1 * 0.044715):#x}, v54\n v_mul_f32 v53, v53, v52")
    a("v_exp_f32 v53, v53\n v_mul_f32 v52, v52, v56\n v_add_f32 v53, 1.0, v53\n v_rcp_f32 v53, v53\n v_mul_f32 v52, v52, v53")
    a("v_cvt_pk_bf16_f32 v52, v52, v52\n ds_write_b16 v32, v52\n s_waitcnt lgkmcnt(0)\n s_barrier")
    stamp(9)
    for e in range(4):
        for t in range(2): a(f"ds_read_b128 v[{184+8*e+4*t}:{187+8*e+4*t}], v{33+e} offset:{256*t}")
    if diag: a("s_waitcnt lgkmcnt(0)")
    for e in range(4):
        for t in range(2):
            if not diag: a(f"s_waitcnt lgkmcnt({7 - 2*e - t})")
            for acc in range(3):
                s9 = 4 * acc + e
                if s9 > 8: continue
                w = 100 + 4 * (2 * s9 + t)
                a(f"{MF} v[{60+4*acc}:{63+4*acc}], v[{w}:{w+3}], v[{184+8*e+4*t}:{187+8*e+4*t}], v[{60+4*acc}:{63+4*acc}]")
        if e == 2:
            a("v_cvt_pk_bf16_f32 v48, v68, v69\n v_cvt_pk_bf16_f32 v49, v70, v71\n v_min_u32 v48, -2, v48\n v_min_u32 v49, -2, v49")
    a("s_mov_b32 exec_lo, 0x000f000f\n s_mov_b32 exec_hi, 0x000f000f")
    a("buffer_store_dwordx2 v[48:49], v39, s[20:23], s58 offen sc1\n s_mov_b64 exec, -1")
    for i in range(4): a(f"v_cvt_pk_bf16_f32 v{44+i}, v{60+2*i}, v{61+2*i}")
    for i in range(4): a(f"v_min_u32 v{44+i}, -2, v{44+i}")
    a("buffer_store_dwordx4 v[44:47], v38, s[20:23], s58 offen sc1")
    stamp(10); flush(); dump()
    a("s_endpgm")

    pend[:] = base_pend
    a("L_R:")
    a("s_cmp_eq_u32 s3, 0\n s_cbranch_scc0 L_fin\n s_cmp_lt_u32 s7, 36\n s_cbranch_scc0 L_fin")
    a("v_and_b32 v97, 1, v0\n v_cmp_eq_u32 vcc, 1, v97\n v_mov_b32 v98, 0x3f80\n v_mov_b32 v99, 0x3f800000\n v_cndmask_b32 v98, v98, v99, vcc\n v_bfe_u32 v97, v0, 1, 3")
    for d in range(4): a(f"v_cmp_eq_u32 vcc, {d}, v97\n v_cndmask_b32 v{8+d}, 0, v98, vcc")
    a("s_mul_i32 s82, s7, 7282\n s_lshr_b32 s82, s82, 16\n s_mul_i32 s83, s82, 9\n s_sub_u32 s83, s7, s83")
    a("s_lshl_b32 s58, s82, 5\n s_cmp_eq_u32 s83, 8\n s_cbranch_scc1 L_r8")
    a("v_mul_u32_u24 v28, 1152, v94\n v_bfe_u32 v98, v0, 2, 1\n v_lshl_add_u32 v28, v98, 7, v28\n v_lshl_add_u32 v28, v93, 9, v28")
    a("s_and_b32 s82, s83, 1\n s_lshl_b32 s82, s82, 8\n s_add_u32 s58, s58, s82\n s_lshr_b32 s82, s83, 1\n s_lshl_b32 s82, s82, 3\n s_add_u32 s58, s58, s82\n s_branch L_r9")
    a("L_r8:")
    a("v_bfe_u32 v28, v0, 1, 2\n v_mul_u32_u24 v28, 1152, v28\n v_and_b32 v98, 1, v0\n v_lshl_add_u32 v28, v98, 4, v28\n v_lshl_add_u32 v28, v93, 3, v28\n s_add_u32 s58, s58, 1024")
    a("L_r9:")
    a(f"s_mul_i32 s82, s7, 9216\n s_add_u32 s82, s82, {WS_C}\n s_add_u32 s83, s82, 4096\n s_add_u32 s59, s82, 8192\n s_mov_b32 s81, 0\n s_mov_b64 vcc, -1")
    a("L_ra:")
    if MASK: a("s_mov_b64 exec, vcc")
    for i in range(9): a(f"buffer_load_dwordx4 v[{172+4*i}:{175+4*i}], v2, s[20:23], {('s82','s83','s59')[i>>2]} offen offset:{1024*(i&3)} sc1")
    if MASK: a("s_mov_b64 exec, -1")
    for i in range(9):
        a(f"s_waitcnt vmcnt({8 - i})")
        a(f"{MF} v[52:55], v[8:11], v[{172+4*i}:{175+4*i}], {'0' if i == 0 else 'v[52:55]'}")
        chk4(99, 172 + 4*i, i == 0)
    a("s_nop 3")
    spin_end(99, "L_ra")
    stamp(7)
    for i in range(4): a(f"v_add_f32_dpp v{52+i}, v{52+i}, v{52+i} row_ror:8 {DPP}")
    a("v_cvt_pk_bf16_f32 v52, v52, v53\n v_cvt_pk_bf16_f32 v53, v54, v55")
    a("s_mov_b64 exec, 0x00ff00ff\n buffer_store_dwordx2 v[52:53], v28, s[36:39], s58 offen")
    a(f"s_cmp_eq_u32 s7, 0\n s_cbranch_scc0 L_rend\n v_mov_b32 v54, s54\n v_mov_b32 v55, {WS_EP}\n s_mov_b64 exec, 1\n buffer_store_dword v54, v55, s[20:23], 0 offen sc1")
    a("L_rend:")
    if probe >= 0:
        if probe == 99: a("s_memrealtime s[86:87]")
        if probe >= 200:
            a("s_mov_b64 exec, -1\n v_and_b32 v97, 7, v0\n v_lshlrev_b32 v97, 2, v97\n buffer_load_dword v98, v97, s[40:43], 0 offen offset:128 sc1\n s_waitcnt vmcnt(0)")
            for j in range(8): a(f"v_readlane_b32 s{44+j}, v98, {j}")
            a("s_nop 4\n s_mov_b32 s84, s44\n s_mov_b32 s52, s44")
            for j in range(1, 8): a(f"s_min_u32 s84, s84, s{44+j}\n s_max_u32 s52, s52, s{44+j}")
            a(f"s_sub_u32 s86, s{44 + probe - 200}, s84\n s_min_u32 s86, s86, 1000\n s_lshl_b32 s86, s86, 4\n s_mov_b32 s84, 0")
        a("s_memrealtime s[88:89]\n s_waitcnt lgkmcnt(0)\n s_sub_u32 s86, s86, s84")
        a("L_probe:")
        a("s_memrealtime s[90:91]\n s_waitcnt lgkmcnt(0)\n s_sub_u32 s90, s90, s88\n s_cmp_lt_u32 s90, s86\n s_cbranch_scc1 L_probe")
    stamp(8); flush(); dump()
    a("s_endpgm")
    pend[:] = base_pend
    a("L_fin:")
    flush(); dump()
    a("L_end:")
    body = a.finish().replace("CODE_REST", "L_end-L_pc")
    return f"""{HEADER}; @launch grid=(256,1,1) block=(256,1,1) lds={LDS_BYTES}
.amdgcn_target "amdgcn-amd-amdhsa--gfx950"
.text
.globl {KN}
.p2align 8
.type {KN},@function
{KN}:
{body}
    s_endpgm
.section .rodata,"a"
.p2align 6
.amdhsa_kernel {KN}
  .amdhsa_next_free_vgpr 512
  .amdhsa_next_free_sgpr 102
  .amdhsa_accum_offset 256
  .amdhsa_group_segment_fixed_size 0
  .amdhsa_kernarg_size 96
  .amdhsa_user_sgpr_count 2
  .amdhsa_user_sgpr_kernarg_segment_ptr 1
  .amdhsa_system_sgpr_workgroup_id_x 1
.end_amdhsa_kernel
"""

if __name__ == "__main__":
    out = sys.argv[1]
    kw = {}
    for x in sys.argv[2:]:
        k, v = x.split("=")
        kw[k] = int(v) if v.lstrip("-").isdigit() else v
    open(out, "w").write(gen(**kw))
```

```python
import sys, struct
from asmlib import Asm

KN = "sequential_preLN__sliding_block_cached__geglu_ffn__decode_kernel"
HEADER = open("sequential_preLN__sliding_block_cached__geglu_ffn__decode.s.ref").read().split("; Override launch")[0]

def f2u(x): return struct.unpack("<I", struct.pack("<f", x))[0]

WS_Q   = 0x0
WS_EP  = 0x10000
WS_FL  = 0x10800
WS_ST  = 0x12000
WS_A   = WS_ST + 32768
WS_B   = WS_A + 131072
WS_C   = WS_B + 36864
WS_END = WS_C + 331776
WS_DIAG = 0x100000
R0, R1 = 0, 73728
IMG = 147456; IMG_T = 272
CMB = 152576
ST  = 156672
HST = 156800
ACT = 157440
ZER = ACT + 512
LDS_BYTES = ZER + 512
OIM = R1
SPIN = 1 << 18
DPP = "row_mask:0xf bank_mask:0xf"
MF = "v_mfma_f32_16x16x32_bf16"

def gen(diag=False, probe=-1, NT="nt", QNT="none", PNT="none", KF=4, NK1=10, QPOLL=0, QL=10, LAG=9,
        CLR=1, PFC=1, MASK=1, STEP=9, WIN=0, WINV=0, FUN=0, FFREE=0, WINL=0, NF=8, X=''):
    a = Asm()
    pend = []
    NT, QNT, PNT = [("" if x == "none" else x) for x in (NT, QNT, PNT)]
    def stamp(i):
        if probe >= 0:
            if i == 0: a("s_memrealtime s[84:85]")
            if i == probe: a("s_memrealtime s[86:87]")
        if not diag: return
        p = 84 + 2 * (len(pend))
        assert p <= 100
        a(f"s_memrealtime s[{p}:{p+1}]"); pend.append((i, p))
    def flush():
        if not diag: return
        a("s_waitcnt lgkmcnt(0)")
        for i, p in pend: a(f"v_writelane_b32 v255, s{p}, {i}")
        pend.clear()
    def dump():
        if not diag: return
        a("s_mov_b64 exec, -1")
        a("s_lshl_b32 s74, s2, 2\n s_add_u32 s74, s74, s3\n s_lshl_b32 s74, s74, 8")
        a(f"s_add_u32 s74, s74, {WS_DIAG}")
        a("v_lshlrev_b32 v254, 2, v0")
        a("s_mov_b32 s22, 0x200000")
        a("buffer_store_dword v255, v254, s[20:23], s74 offen")
    def srd(d, p, n):
        a(f"s_mov_b64 s[{d}:{d+1}], s[{p}:{p+1}]\n s_mov_b32 s{d+2}, {n}\n s_mov_b32 s{d+3}, 0x20000")
    def rowred(regs, op):
        for ctl in ("quad_perm:[1,0,3,2]", "quad_perm:[2,3,0,1]", "row_half_mirror", "row_mirror"):
            for r in regs: a(f"{op}_dpp v{r}, v{r}, v{r} {ctl} {DPP}")
    def xrow(r, t, op):
        for sw in ("v_permlane16_swap_b32", "v_permlane32_swap_b32"):
            a(f"v_mov_b32 v{t}, v{r}\n {sw} v{r}, v{t}\n {op} v{r}, v{r}, v{t}")
    def rnd(r):
        a(f"v_cvt_pk_bf16_f32 v{r}, v{r}, v{r}\n v_and_b32 v{r}, s78, v{r}")
    def chk4(acc, r, first):
        if first: a(f"v_max3_u32 v{acc}, v{r}, v{r+1}, v{r+2}\n v_max_u32 v{acc}, v{r+3}, v{acc}")
        else:     a(f"v_max3_u32 v{acc}, v{r}, v{r+1}, v{acc}\n v_max3_u32 v{acc}, v{r+2}, v{r+3}, v{acc}")
    def spin_end(acc, again):
        lab = a.label("L_ok")
        a(f"v_cmp_eq_u32 vcc, -1, v{acc}\n s_cbranch_vccz {lab}")
        a(f"s_add_u32 s81, s81, 1\n s_cmp_lt_u32 s81, {SPIN}\n s_cbranch_scc1 {again}")
        a(f"{lab}:")
    def thr(w):
        if FFREE:
            lab = a.label("L_t")
            a(f"s_cbranch_vccnz {lab}\n s_waitcnt vmcnt({w-1})\n{lab}:")
        else:
            a(f"s_waitcnt vmcnt({w-1})")
    def setfree():
        if FFREE: a("s_cmp_eq_u32 s6, 2\n s_cselect_b64 vcc, -1, 0")
    def kvload(kind, i):
        if WIN and (kind == "v" and i < QPOLL + QL or kind == "k" and i >= KF): thr(WIN)
        elif WINV and kind == "v": thr(WINV)
        if kind == "k": a(f"buffer_load_dwordx4 a[{4*i}:{4*i+3}], v1, s[8:11], s68 offen {NT}")
        else:           a(f"buffer_load_dwordx4 a[{128+4*i}:{131+4*i}], v2, s[12:15], s68 offen {NT}")
        a(f"s_addk_i32 s68, {STEP*1024}\n s_and_b32 s68, s68, s69")

    a("s_cmp_ge_u32 s2, 256\n s_cbranch_scc1 L_end")
    a("s_load_dwordx16 s[44:59], s[0:1], 0\n s_load_dwordx8 s[60:67], s[0:1], 64")
    if diag:
        for r in range(86, 102, 2): a(f"s_mov_b64 s[{r}:{r+1}], 0")
    stamp(0)
    a("v_lshrrev_b32 v1, 6, v0\n s_and_b32 s4, s2, 7\n s_lshr_b32 s5, s2, 3\n v_readfirstlane_b32 s3, v1")
    if PFC:
        a("s_cmp_eq_u32 s5, 31\n s_cbranch_scc0 L_nopfc")
        a("s_getpc_b64 s[82:83]")
        a("L_pc:")
        a("v_lshlrev_b32 v97, 6, v0\n v_min_u32 v97, CODE_REST, v97\n global_load_dword v206, v97, s[82:83]")
        a("L_nopfc:")
    a("v_and_b32 v0, 63, v0")
    if diag: a("v_mov_b32 v255, 0")
    a("s_lshr_b32 s76, s5, 4\n s_lshl_b32 s74, s4, 1\n s_add_u32 s76, s76, s74")
    a("s_and_b32 s77, s5, 15")
    a("s_movk_i32 s69, 0x7fff")
    a("s_lshl_b32 s68, s2, 2\n s_add_u32 s68, s68, s3\n s_mul_i32 s68, s68, 0x9E3779B1\n s_lshr_b32 s68, s68, 27\n s_lshl_b32 s68, s68, 10")
    a("v_bfe_u32 v92, v0, 2, 2\n v_lshrrev_b32 v93, 4, v0\n v_and_b32 v94, 3, v0")
    a("v_lshlrev_b32 v1, 8, v92\n v_lshl_add_u32 v1, v93, 6, v1\n v_lshl_add_u32 v1, v94, 4, v1")
    a("v_lshrrev_b32 v96, 3, v0\n v_and_b32 v95, 7, v0\n v_lshlrev_b32 v97, 7, v95\n v_lshl_add_u32 v97, v96, 13, v97")
    a("s_lshr_b32 s82, s77, 2\n s_lshl_b32 s82, s82, 4\n s_add_u32 s82, s82, s76\n s_lshl_b32 s82, s82, 21")
    a(f"s_and_b32 s83, s77, 3\n s_lshl_b32 s83, s83, 2\n s_add_u32 s83, s83, s3\n s_lshl_b32 s83, s83, 15\n s_add_u32 s82, s82, s83\n s_add_u32 s82, s82, {6144*256}")
    a("s_mov_b32 s10, 32768\n s_mov_b32 s11, 0x20000\n s_mov_b32 s18, 4718592\n s_mov_b32 s19, 0x20000")
    a("s_sub_u32 s70, s5, 18\n s_cmp_lt_u32 s5, 8\n s_cselect_b32 s70, s5, s70\n s_lshl_b32 s70, s70, 2\n s_add_u32 s70, s70, s3")
    a("s_lshl_b32 s73, s70, 16\n s_lshl_b32 s74, s4, 10\n s_add_u32 s73, s73, s74")
    a("v_lshlrev_b32 v2, 4, v0")
    if "k" in X: a("v_mov_b32 v1, v2")
    a("v_mov_b32 v188, -1\n v_mov_b32 v189, -1\n v_mov_b32 v190, -1\n v_mov_b32 v191, -1")
    a("s_sub_u32 s7, s5, 26\n s_lshl_b32 s7, s7, 3\n s_add_u32 s7, s7, s4")
    a(f"s_lshl_b32 s75, s7, 2\n s_add_u32 s75, s75, s3\n s_mul_i32 s75, s75, 3072\n s_add_u32 s75, s75, {WS_ST}")
    a(f"s_mov_b32 s22, {WS_END}\n s_mov_b32 s23, 0x20000")
    a("s_sub_u32 s74, s5, 8\n s_cmp_lt_u32 s74, 18")
    a("s_waitcnt lgkmcnt(0)")
    a(f"s_load_dword s54, s[66:67], {WS_EP}")
    a("s_mov_b64 s[16:17], s[50:51]\n s_mov_b64 s[20:21], s[66:67]\n s_cbranch_scc1 L_notq")
    a("s_cmp_lt_u32 s5, 8\n s_cbranch_scc1 L_tq1")
    if CLR:
        for i in range(3): a(f"buffer_store_dwordx4 v[188:191], v2, s[20:23], s75 offen offset:{1024*i} sc1")
    if "t" in X: a("s_mov_b32 s73, 0x10000000")
    a(f"buffer_load_dword v208, v97, s[16:19], s73 offen {QNT}\n s_add_u32 s73, s73, {24*65536}")
    a("L_tq1:")
    if "t" in X: a("s_mov_b32 s73, 0x10000000")
    a(f"buffer_load_dword v207, v97, s[16:19], s73 offen {QNT}")
    a("L_notq:")
    a("s_add_u32 s8, s46, s82\n s_addc_u32 s9, s47, 0")
    for i in range(KF): kvload("k", i)
    a("s_add_u32 s12, s48, s82\n s_addc_u32 s13, s49, 0\n s_mov_b32 s14, 32768\n s_mov_b32 s15, 0x20000")
    srd(24, 44, 0 if "x" in X else 4608); srd(28, 56, 5308416); srd(32, 58, 5308416); srd(36, 62, 4608)
    if probe >= 200: srd(40, 64, 256)
    a(f"s_mov_b32 s78, 0xffff0000\n s_mov_b32 s79, {f2u(128 ** -0.5):#x}\n s_mov_b32 s80, {f2u(1.4426950408889634):#x}")
    a("s_and_b32 s82, s3, 1\n s_lshl_b32 s82, s82, 2")
    a("v_and_b32 v97, 2, v96\n v_or_b32 v97, s82, v97\n v_xor_b32 v95, v95, v97\n v_lshlrev_b32 v95, 4, v95")
    a("s_lshl_b32 s83, s3, 10\n s_mov_b32 m0, s83")
    a("s_mul_i32 s75, s3, 9216\n s_movk_i32 s74, 1152\n s_movk_i32 s56, 0x1000\n s_movk_i32 s57, 0x1000")
    a("s_cmp_lt_u32 s5, 8\n s_cbranch_scc1 L_dq\n s_cmp_lt_u32 s5, 17\n s_cbranch_scc1 L_dw\n s_cmp_lt_u32 s5, 26\n s_cbranch_scc1 L_df")
    a(f"s_mov_b32 s6, 3\n s_lshl_b32 s82, s7, 7\n s_add_u32 s82, s82, {WS_FL}\n v_lshlrev_b32 v98, 2, v0\n s_waitcnt vmcnt({2 + KF}) lgkmcnt(0)\n s_barrier")
    a("s_add_u32 s83, s54, 1\n v_mov_b32 v97, s83\n s_cmp_eq_u32 s3, 0\n s_cbranch_scc0 L_kld")
    a("s_mov_b32 exec_hi, 0\n buffer_store_dword v97, v98, s[20:23], s82 offen sc1\n s_mov_b64 exec, -1\n s_branch L_kld")
    a("L_dq:")
    a("s_mov_b32 s6, 0\n s_lshl_b32 s7, s4, 3\n s_add_u32 s7, s7, s5\n s_movk_i32 s74, 8192\n s_mov_b32 s71, 262144\n s_mov_b32 s72, 262144")
    a("s_lshl_b32 s73, s7, 7\n s_lshl_b32 s75, s3, 16")
    a("v_cmp_gt_u32 vcc, 36, v0\n v_mov_b32 v97, 0x10000\n v_cndmask_b32 v97, v97, v2, vcc\n s_mul_i32 s82, s3, 1152")
    a("buffer_load_dwordx4 v[188:191], v97, s[24:27], s82 offen\n buffer_load_dwordx4 v[192:195], v97, s[24:27], s82 offen offset:576")
    a("s_branch L_dma")
    a("L_dw:")
    a("s_mov_b32 s6, 1\n s_sub_u32 s7, s5, 8\n s_mov_b32 s71, 36864\n s_mov_b32 s72, 36864\n s_mul_i32 s73, s4, 589824\n s_lshl_b32 s82, s7, 7\n s_add_u32 s73, s73, s82")
    a("s_mov_b64 s[16:17], s[52:53]\n s_branch L_dma")
    a("L_df:")
    a(f"s_mov_b32 s6, 2\n s_mul_i32 s7, s4, 9\n s_add_u32 s7, s7, s5\n s_sub_u32 s7, s7, 17\n s_movk_i32 s71, 128\n s_mov_b32 s72, {36864 - 1024}\n s_mul_i32 s73, s7, 73728")
    a(f"s_movk_i32 s56, 0x2000\n s_mov_b32 s57, {(4096 - 65536) & 0xffffffff:#x}")
    a("s_mov_b64 s[16:17], s[60:61]\n s_mov_b32 s18, 5308416")
    a("v_bfe_u32 v97, v0, 1, 2\n v_mul_u32_u24 v97, 1152, v97")
    a("v_bfe_u32 v98, v0, 5, 1\n v_lshl_add_u32 v97, v98, 6, v97\n v_bfe_u32 v98, v0, 3, 1\n v_lshl_add_u32 v97, v98, 5, v97")
    a("v_and_b32 v98, 1, v0\n v_lshl_add_u32 v97, v98, 4, v97\n v_bfe_u32 v98, v0, 4, 1\n v_lshl_add_u32 v97, v98, 3, v97")
    a("s_lshl_b32 s82, s3, 7")
    a("buffer_load_dwordx2 v[188:189], v97, s[24:27], s82 offen\n buffer_load_dwordx2 v[190:191], v97, s[24:27], s82 offen offset:512")
    a("buffer_load_dwordx2 v[192:193], v97, s[24:27], 0 offen offset:1024")
    a("L_dma:")
    a("s_add_u32 s73, s73, s75\n v_mad_u32_u24 v3, v96, s74, v95")
    if "e" in X: a("s_branch L_kld")
    if "E" in X: a("s_cmp_eq_u32 s6, 0\n s_cbranch_scc1 L_kld")
    setfree()
    for n in range(18):
        if n == 16: a("s_cmp_eq_u32 s6, 1\n s_cbranch_scc1 L_kld")
        if WIN: thr(WIN + FUN)
        a(f"buffer_load_dwordx4 v3, s[16:19], s73 offen {NT} lds")
        if n < 17: a(f"s_add_u32 m0, m0, s{56 + (n == 8)}\n s_add_u32 s73, s73, s{71 + (n == 8)}")
    a("L_kld:")
    setfree()
    nk = KF
    for i in range(NK1): kvload("k", nk); nk += 1
    a("v_lshrrev_b32 v97, 1, v92\n v_and_b32 v98, 1, v93\n v_lshl_or_b32 v97, v98, 1, v97")
    a("v_lshl_add_u32 v98, v93, 3, v92\n v_lshlrev_b32 v98, 7, v98\n v_lshl_add_u32 v98, v97, 5, v98\n v_lshl_add_u32 v98, v94, 3, v98")
    a("s_lshl_b32 s82, s3, 5\n v_xor_b32 v4, s82, v98\n v_add_u32 v5, 36864, v4\n v_add_u32 v204, 0x10000, v4")
    a("s_lshl_b32 s83, s3, 13\n s_cmp_eq_u32 s6, 2\n s_cselect_b32 s82, s83, s82\n s_cselect_b32 s83, 32, 0x2000")
    a("v_xor_b32 v200, s82, v98\n v_xor_b32 v201, s83, v200\n s_lshl_b32 s83, s83, 1\n v_xor_b32 v202, s83, v200\n v_xor_b32 v203, s83, v201")

    if "b" in X: a("s_branch L_k2")
    a("s_cmp_eq_u32 s6, 0\n s_cbranch_scc0 L_early")
    a(f"s_waitcnt vmcnt({18 + NK1})")
    for i in range(8):
        a(f"v_lshlrev_b32 v{172+2*i}, 16, v{188+i}\n v_and_b32 v{173+2*i}, s78, v{188+i}")
    a("v_add_f32 v196, v172, v173")
    for i in range(2, 16): a(f"v_add_f32 v196, v196, v{172+i}")
    rowred([196], "v_add_f32"); xrow(196, 197, "v_add_f32")
    a(f"v_mul_f32 v196, {f2u(1/576):#x}, v196")
    a("v_sub_f32 v198, v172, v196\n v_mul_f32 v197, v198, v198")
    for i in range(1, 16): a(f"v_sub_f32 v198, v{172+i}, v196\n v_fmac_f32 v197, v198, v198")
    a("v_cmp_gt_u32 vcc, 36, v0\n v_cndmask_b32 v197, 0, v197, vcc")
    rowred([197], "v_add_f32"); xrow(197, 198, "v_add_f32")
    a(f"v_mul_f32 v197, {f2u(1/576):#x}, v197")
    rnd(196); rnd(197)
    a(f"v_add_f32 v197, {f2u(1e-5):#x}, v197"); rnd(197)
    a("v_sqrt_f32 v197, v197"); rnd(197)
    a("v_rcp_f32 v197, v197")
    for i in range(8):
        lo, hi = 172 + 2*i, 173 + 2*i
        a(f"v_sub_f32 v{lo}, v{lo}, v196\n v_sub_f32 v{hi}, v{hi}, v196\n v_cvt_pk_bf16_f32 v198, v{lo}, v{hi}")
        a(f"v_lshlrev_b32 v{lo}, 16, v198\n v_and_b32 v{hi}, s78, v198\n v_mul_f32 v{lo}, v{lo}, v197\n v_mul_f32 v{hi}, v{hi}, v197")
        a(f"v_cvt_pk_bf16_f32 v{188+i}, v{lo}, v{hi}")
    a(f"v_lshrrev_b32 v198, 2, v0\n v_mul_u32_u24 v198, {IMG_T}, v198\n v_lshl_add_u32 v198, v94, 6, v198")
    a(f"s_lshl_b32 s82, s3, 4\n s_add_u32 s82, s82, {IMG}\n v_add_u32 v198, s82, v198")
    a("s_mov_b64 exec, vcc")
    a(f"ds_write_b128 v198, v[188:191]\n ds_write_b128 v198, v[192:195] offset:{9*IMG_T}")
    a("s_mov_b64 exec, -1")
    a("L_early:")
    if probe >= 200:
        a("s_waitcnt lgkmcnt(0)\n s_cmp_eq_u32 s5, 30\n s_cbranch_scc0 L_npb\n v_mov_b32 v97, s84\n v_mov_b32 v98, 0\n s_lshl_b32 s82, s4, 2\n s_add_u32 s82, s82, 128")
        a("s_mov_b64 exec, 1\n buffer_store_dword v97, v98, s[40:43], s82 offen sc1\n s_mov_b64 exec, -1")
        a("L_npb:")
    a(f"s_waitcnt vmcnt({NK1}) lgkmcnt(0)\n s_barrier\n s_add_u32 s54, s54, 1")
    stamp(1)
    a("s_cmp_eq_u32 s6, 3\n s_cbranch_scc1 L_k2")
    def trread(dst, base_lo, base_hi, t):
        b, off = (base_lo, t * 4096) if t < 9 else (base_hi, (t - 9) * 4096)
        k, n = dst
        a(f"ds_read_b64_tr_b16 {k}[{n}:{n+1}], v{b} offset:{off}\n ds_read_b64_tr_b16 {k}[{n+2}:{n+3}], v{b} offset:{off+512}")
    for j in range(18):
        b, off = (200 + ((j >> 1) & 3), (j & 1) * 4096 + (j >> 3) * 32768) if j < 16 else (204, (j & 1) * 4096)
        a(f"ds_read_b64_tr_b16 v[{100+4*j}:{101+4*j}], v{b} offset:{off}\n ds_read_b64_tr_b16 v[{102+4*j}:{103+4*j}], v{b} offset:{off+512}")
    a("s_cmp_eq_u32 s6, 0\n s_cbranch_scc0 L_k2")
    a(f"v_lshl_add_u32 v198, v93, 2, v94\n v_lshlrev_b32 v198, 4, v198\n v_add_u32 v198, {IMG}, v198")
    for t in range(18): a(f"ds_read_b128 v[{20+4*t}:{23+4*t}], v198 offset:{t*IMG_T}")
    a("s_waitcnt lgkmcnt(0)")
    for t in range(18):
        a(f"{MF} v[16:19], v[{100+4*t}:{103+4*t}], v[{20+4*t}:{23+4*t}], {'0' if t == 0 else 'v[16:19]'}")
    a(f"v_lshlrev_b32 v198, 8, v94\n v_lshl_add_u32 v198, v93, 4, v198\n s_lshl_b32 s83, s3, 6\n s_add_u32 s83, s83, {CMB}\n v_add_u32 v198, s83, v198")
    a(f"v_add_u32 v199, {CMB}, v2\n v_and_b32 v97, 15, v0\n v_lshlrev_b32 v97, 4, v97\n v_lshl_add_u32 v97, v93, 14, v97\n s_lshl_b32 s82, s7, 8")
    a("v_cvt_pk_bf16_f32 v16, v16, v17\n v_cvt_pk_bf16_f32 v18, v18, v19\n v_mov_b32 v17, s54\n v_mov_b32 v19, s54")
    a("s_mov_b32 exec_lo, 0x000f000f\n s_mov_b32 exec_hi, 0x000f000f\n ds_write_b128 v198, v[16:19]\n s_mov_b64 exec, -1")
    a("s_cmp_eq_u32 s3, 0\n s_waitcnt lgkmcnt(0)\n s_barrier\n s_cbranch_scc0 L_k2")
    a("ds_read_b128 v[16:19], v199\n s_waitcnt lgkmcnt(0)")
    if "s" not in X: a("buffer_store_dwordx4 v[16:19], v97, s[20:23], s82 offen sc1")
    stamp(11)
    a("L_k2:")
    setfree()
    while nk < 32:
        kvload("k", nk); nk += 1
    for i in range(QPOLL): kvload("v", i)

    a("v_bfe_u32 v62, v0, 2, 1\n v_lshlrev_b32 v62, 9, v62\n v_lshl_add_u32 v62, v93, 7, v62\n v_lshl_add_u32 v62, v94, 5, v62")
    a(f"v_min_u32 v63, 11, v0\n v_lshlrev_b32 v63, 7, v63\n s_mul_i32 s56, s3, {12*128}\n s_add_u32 s56, s56, {WS_FL}")
    a("s_lshr_b32 s82, s77, 2\n s_lshl_b32 s82, s82, 14\n s_lshl_b32 s83, s76, 10\n s_add_u32 s82, s82, s83")
    def qpass():
        a("buffer_load_dword v60, v63, s[20:23], s56 offen sc1")
        a("buffer_load_dwordx4 v[52:55], v62, s[20:23], s82 offen sc1\n buffer_load_dwordx4 v[56:59], v62, s[20:23], s82 offen offset:16 sc1")
    stamp(2)
    if "p" not in X: qpass()
    nv = QPOLL
    for i in range(QL): kvload("v", nv); nv += 1
    if "v" in X:
        while nv < 32: kvload("v", nv); nv += 1
        a("s_waitcnt vmcnt(0)"); stamp(5); flush(); dump(); a("s_endpgm")
        nv = QL
    a("v_and_b32 v97, 1, v0\n v_cmp_eq_u32 vcc, 1, v97\n v_mov_b32 v98, 0xffff\n v_mov_b32 v99, s78\n v_cndmask_b32 v98, v98, v99, vcc")
    a("v_bfe_u32 v97, v0, 3, 1\n v_bfe_u32 v99, v0, 1, 1\n v_lshl_or_b32 v97, v97, 1, v99")
    for d in range(4): a(f"v_cmp_eq_u32 vcc, {d}, v97\n v_cndmask_b32 v{12+d}, 0, v98, vcc")
    a("v_mov_b32 v7, 0xff800000\n s_mov_b32 s81, 0")
    a(f"s_waitcnt vmcnt({QL})\n s_branch {'L_qgo' if 'q' in X else 'L_qchk'}")
    a("L_qpoll:")
    qpass()
    a(f"s_add_u32 s81, s81, 1\n s_cmp_gt_u32 s81, {SPIN}\n s_waitcnt vmcnt(0)\n s_cbranch_scc1 L_qgo")
    a("L_qchk:")
    for r in (60, 53, 55, 57, 59): a(f"v_xor_b32 v{r}, s54, v{r}")
    a("v_or3_b32 v60, v60, v53, v55\n v_or3_b32 v60, v60, v57, v59\n v_cmp_ne_u32 vcc, 0, v60\n s_cbranch_vccnz L_qpoll")
    a("L_qgo:")
    a("v_mov_b32 v8, v52\n v_mov_b32 v9, v54\n v_mov_b32 v10, v56\n v_mov_b32 v11, v58")
    setfree()
    stamp(3)
    def qk(gi):
        for q in range(4):
            d = 52 + 16 * (gi & 1) + 4 * q; k = 16 * gi + 4 * q
            a(f"{MF} v[{d}:{d+3}], a[{k}:{k+3}], v[8:11], 0")
    qk(0)
    for gi in range(8):
        if gi < 7: qk(gi + 1)
        D = 52 + 16 * (gi & 1); T = 20 + 4 * gi
        for u in range(4):
            for q in range(4):
                if u == 0: a(f"v_mov_b32_dpp v{T+q}, v{D+4*q} quad_perm:[0,0,0,0] {DPP}")
                else:      a(f"v_add_f32_dpp v{T+q}, v{D+4*q+u}, v{T+q} quad_perm:[{u},{u},{u},{u}] {DPP}")
        a(f"v_max3_f32 v7, v{T}, v{T+1}, v7\n v_max3_f32 v7, v{T+2}, v{T+3}, v7")
        for rep in range(2):
            a(f"v_cvt_pk_bf16_f32 v97, v{T}, v{T+1}\n v_cvt_pk_bf16_f32 v98, v{T+2}, v{T+3}")
            a(f"v_lshlrev_b32 v{T}, 16, v97\n v_and_b32 v{T+1}, s78, v97\n v_lshlrev_b32 v{T+2}, 16, v98\n v_and_b32 v{T+3}, s78, v98")
            if rep == 0:
                for q in range(4): a(f"v_mul_f32 v{T+q}, s79, v{T+q}")
        kvload("v", nv); nv += 1
    xrow(7, 97, "v_max_f32")
    rnd(7); a("v_mul_f32 v7, s79, v7"); rnd(7)
    a("v_mul_f32 v52, s80, v7")
    for i in range(32): a(f"v_fma_f32 v{20+i}, v{20+i}, s80, -v52")
    kvload("v", nv); nv += 1
    for i in range(32):
        a(f"v_exp_f32 v{20+i}, v{20+i}")
        if i == 2: a("v_add_f32 v53, v20, v21")
        if i > 2:  a(f"v_add_f32 v53, v53, v{19+i}")
        if i == 15: kvload("v", nv); nv += 1
    a("v_add_f32 v53, v53, v51")
    kvload("v", nv); nv += 1
    xrow(53, 97, "v_add_f32")
    a(f"v_bfe_u32 v97, v0, 2, 1\n v_lshlrev_b32 v97, 5, v97\n s_lshl_b32 s82, s3, 3\n s_add_u32 s82, s82, {ST}\n v_add_u32 v97, s82, v97")
    a("s_mov_b64 exec, 0x11\n ds_write_b64 v97, v[52:53]\n s_mov_b64 exec, -1")
    stamp(4); flush()
    def pbuild(i):
        P = 84 + 4 * (i & 1)
        a(f"v_cvt_pk_bf16_f32 v99, v{20+i}, v{20+i}")
        for d in range(4): a(f"v_and_b32 v{P+d}, v99, v{12+d}")
    def pv(i):
        P = 84 + 4 * (i & 1)
        a(f"{MF} v[16:19], v[{P}:{P+3}], a[{128+4*i}:{131+4*i}], {'0' if i == 0 else 'v[16:19]'}")
    done = nv - LAG
    a(f"s_waitcnt vmcnt({LAG})")
    pbuild(0)
    for i in range(done):
        pbuild(i + 1); pv(i)
        if i % 5 == 4 and nv < 29: kvload("v", nv); nv += 1
    a("s_waitcnt lgkmcnt(0)\n s_barrier")
    a(f"v_and_b32 v97, 1, v93\n v_lshlrev_b32 v97, 5, v97\n v_add_u32 v98, s82, v97\n v_add_u32 v97, {ST}, v97")
    a("ds_read_b128 v[56:59], v97\n ds_read_b128 v[60:63], v97 offset:16\n ds_read_b32 v64, v98")
    kvload("v", nv); nv += 1
    a("s_waitcnt lgkmcnt(0)")
    a("v_max3_f32 v65, v56, v58, v60\n v_max_f32 v65, v65, v62")
    for r in (56, 58, 60, 62, 64): a(f"v_sub_f32 v{r}, v{r}, v65")
    for r in (56, 58, 60, 62, 64): a(f"v_exp_f32 v{r}, v{r}")
    a("v_mul_f32 v66, v56, v57\n v_fmac_f32 v66, v58, v59\n v_fmac_f32 v66, v60, v61\n v_fmac_f32 v66, v62, v63")
    a("v_rcp_f32 v67, v66\n v_log_f32 v66, v66")
    a("v_mul_f32 v7, v64, v67")
    a("v_add_f32 v66, v66, v65\n v_min_u32 v66, -2, v66")
    def lse_pub():
        a("s_cmp_eq_u32 s3, 0\n s_cbranch_scc0 L_nolse")
        a(f"s_lshl_b32 s82, s4, 5\n s_add_u32 s82, s82, s5\n s_lshl_b32 s82, s82, 7\n s_add_u32 s82, s82, {WS_ST}")
        a("v_and_b32 v97, 15, v0\n v_lshlrev_b32 v97, 3, v97\n v_lshl_add_u32 v97, v93, 2, v97\n s_mov_b32 exec_hi, 0\n buffer_store_dword v66, v97, s[20:23], s82 offen sc1\n s_mov_b64 exec, -1")
        a("L_nolse:")
    if "l" not in X: lse_pub()
    a(f"s_waitcnt vmcnt({LAG})"); pv(done); done += 1
    while done < nv - LAG:
        pbuild(done); pv(done); done += 1
    a("s_movk_i32 s82, 9216\n v_mad_u32_u24 v6, v96, s82, v95")
    a(f"s_add_u32 s82, s70, {4*NF}\n s_cmp_lt_u32 s82, 72\n s_cselect_b64 s[16:17], s[28:29], s[32:33]\n s_cselect_b32 s83, 0, 72\n s_sub_u32 s82, s82, s83")
    a("s_mul_i32 s59, s4, 1152\n s_movk_i32 s71, 128\n s_lshl_b32 s83, s7, 7")
    a("s_cmp_eq_u32 s6, 2\n s_cselect_b64 s[16:17], s[28:29], s[16:17]\n s_cselect_b32 s82, s3, s82\n s_cselect_b32 s83, s83, s59\n s_cselect_b32 s71, 294912, s71")
    a("s_mul_i32 s73, s82, 73728\n s_add_u32 s73, s73, s83\n s_mov_b32 s58, s73")
    a("s_mov_b32 s18, 5308416")
    a(f"s_lshl_b32 s82, s76, 13\n s_lshl_b32 s83, s77, 8\n s_add_u32 s82, s82, s83\n s_add_u32 s57, s82, {WS_A}")
    a("v_and_b32 v97, 15, v0\n v_lshlrev_b32 v68, 7, v97\n v_lshlrev_b32 v97, 4, v97\n v_lshl_add_u32 v97, v93, 12, v97")
    a(f"s_lshl_b32 s82, s3, 10\n s_mov_b32 m0, s82\n s_add_u32 s82, s82, {CMB}\n v_add_u32 v98, s82, v2")
    a(f"s_lshl_b32 s56, s4, 12\n s_add_u32 s56, s56, {WS_ST}")
    def lsepass():
        a("buffer_load_dwordx2 v[72:73], v68, s[20:23], s56 offen sc1\n buffer_load_dwordx2 v[74:75], v68, s[20:23], s56 offen offset:2048 sc1")
    while nv < 32:
        kvload("v", nv); nv += 1
        pbuild(done); a(f"s_waitcnt vmcnt({LAG})"); pv(done); done += 1
    if "c" in X:
        a("s_waitcnt vmcnt(0)"); stamp(5); flush(); dump(); a("s_endpgm")
    a("s_cmp_eq_u32 s6, 1\n s_cbranch_scc0 L_nl")
    lsepass()
    for i in range(done, 32):
        pbuild(i); a(f"s_waitcnt vmcnt({33 - i})"); pv(i)
    a("s_nop 6\n s_branch L_comb")
    a("L_nl:")
    def late(n):
        a(f"buffer_load_dwordx4 v6, s[16:19], s73 offen {PNT} lds")
        a("s_addk_i32 m0, 0x1000\n s_add_u32 s73, s73, s71")
    nl = 0
    assert 32 - done <= 9
    for i in range(done, 32):
        late(nl); nl += 1
        pbuild(i); a(f"s_waitcnt vmcnt({31 - i + nl})"); pv(i)
    a("s_nop 7")
    a("L_comb:")
    stamp(5)
    for i in range(4): a(f"v_mul_f32 v{16+i}, v{16+i}, v7")
    a("ds_write_b128 v98, v[16:19]\n s_cmp_eq_u32 s3, 0\n s_waitcnt lgkmcnt(0)\n s_barrier\n s_cbranch_scc0 L_pubd")
    for w in range(1, 4): a(f"ds_read_b128 v[{52+4*w}:{55+4*w}], v98 offset:{1024*w}")
    for w in range(1, 4):
        a(f"s_waitcnt lgkmcnt({0 if diag else 3 - w})")
        a(f"v_pk_add_f32 v[16:17], v[16:17], v[{52+4*w}:{53+4*w}]\n v_pk_add_f32 v[18:19], v[18:19], v[{54+4*w}:{55+4*w}]")
    a("v_cvt_pk_bf16_f32 v16, v16, v17\n v_cvt_pk_bf16_f32 v17, v18, v19\n v_min_u32 v16, -2, v16\n v_min_u32 v17, -2, v17")
    a("v_permlane32_swap_b32 v16, v18\n v_permlane32_swap_b32 v17, v19")
    a("s_mov_b32 exec_hi, 0\n buffer_store_dwordx4 v[16:19], v97, s[20:23], s57 offen sc1\n s_mov_b64 exec, -1")
    a("L_pubd:")
    stamp(6)
    base_pend = list(pend)
    a("s_cmp_eq_u32 s6, 1\n s_cbranch_scc1 L_W\n s_barrier\n s_cmp_eq_u32 s6, 2\n s_cbranch_scc1 L_F")
    for n in range(nl, 18):
        if n == 9: a(f"s_mov_b64 s[16:17], s[32:33]\n s_add_u32 s73, s70, {4*NF + 56 - 72}\n s_mul_i32 s73, s73, 73728\n s_add_u32 s73, s73, s59")
        if WINL: a(f"s_waitcnt vmcnt({WINL-1})")
        late(n)
    a("s_branch L_R")

    pend[:] = base_pend
    a("L_W:")
    a("s_mov_b32 s81, 0\n s_waitcnt vmcnt(1)\n s_cmp_eq_u32 s3, 0\n s_cbranch_scc1 L_tab1\n s_waitcnt vmcnt(0)\n s_branch L_tab1")
    a("L_tab:")
    lsepass()
    a("s_waitcnt vmcnt(0)")
    a("L_tab1:")
    chk4(99, 72, True); spin_end(99, "L_tab")
    a(f"s_lshl_b32 s83, s4, 2\n s_add_u32 s83, s83, s3\n s_lshl_b32 s83, s83, 12\n s_add_u32 s83, s83, {WS_A}")
    def apass():
        for i in range(4): a(f"buffer_load_dwordx4 v[{172+4*i}:{175+4*i}], v2, s[20:23], s83 offen offset:{1024*i} sc1")
    apass()
    for hh in range(4): a(f"v_max_f32_dpp v{24+hh}, v{72+hh}, v{72+hh} quad_perm:[1,0,3,2] {DPP}")
    for hh in range(4): a(f"v_max_f32_dpp v{24+hh}, v{24+hh}, v{24+hh} quad_perm:[2,3,0,1] {DPP}")
    for hh in range(4): a(f"v_sub_f32 v{20+hh}, v{72+hh}, v{24+hh}")
    for hh in range(4): a(f"v_exp_f32 v{20+hh}, v{20+hh}")
    for hh in range(4): a(f"v_add_f32_dpp v{24+hh}, v{20+hh}, v{20+hh} quad_perm:[1,0,3,2] {DPP}")
    for hh in range(4): a(f"v_add_f32_dpp v{24+hh}, v{24+hh}, v{24+hh} quad_perm:[2,3,0,1] {DPP}")
    for hh in range(4): a(f"v_rcp_f32 v{24+hh}, v{24+hh}")
    for hh in range(4): a(f"v_mul_f32 v{20+hh}, v{20+hh}, v{24+hh}")
    a(f"v_and_b32 v97, 15, v0\n v_and_b32 v28, 7, v0\n v_xor_b32 v28, v28, v93\n v_lshlrev_b32 v28, 4, v28\n v_lshl_add_u32 v28, v97, 8, v28")
    a(f"s_lshl_b32 s82, s3, 12\n s_add_u32 s82, s82, {OIM}\n v_add_u32 v28, s82, v28\n v_xor_b32 v29, 64, v28")
    a(f"v_xor_b32 v30, v97, v93\n v_lshlrev_b32 v30, 4, v30\n v_lshl_add_u32 v30, v93, 8, v30\n v_add_u32 v30, {OIM}, v30\n v_xor_b32 v31, 64, v30")
    a("v_lshlrev_b32 v32, 5, v92\n v_lshl_add_u32 v32, v93, 3, v32")
    a(f"s_lshr_b32 s82, s3, 1\n s_lshl_b32 s58, s7, 1\n s_add_u32 s82, s82, s58\n s_lshl_b32 s82, s82, 3\n s_add_u32 s82, s82, s4\n s_lshl_b32 s82, s82, 1")
    a(f"s_and_b32 s58, s3, 1\n s_add_u32 s82, s82, s58\n s_lshl_b32 s82, s82, 7\n s_add_u32 s82, s82, {WS_B}")
    a("s_mov_b32 s81, 0\n s_branch L_wchk")
    a("L_wa:")
    if MASK: a("s_mov_b64 exec, vcc")
    apass()
    if MASK: a("s_mov_b64 exec, -1")
    a("L_wchk:")
    for i in range(4):
        a(f"s_waitcnt vmcnt({3 - i})\n ds_write_b128 v{28 + (i & 1)}, v[{172+4*i}:{175+4*i}] offset:{128 * (i >> 1)}")
        chk4(99, 172 + 4*i, i == 0)
    a("s_waitcnt lgkmcnt(0)")
    spin_end(99, "L_wa")
    stamp(7)
    if diag: a("s_waitcnt lgkmcnt(0)")
    a("s_barrier")
    for tt in range(16): a(f"ds_read_b128 v[{188+4*tt}:{191+4*tt}], v{30 + (tt & 1)} offset:{1024*tt}")
    def wfma(hh, i):
        a(f"v_mul_f32 v{52+i}, v{36+i}, v20" if hh == 0 else f"v_fmac_f32 v{52+i}, v{36+4*hh+i}, v{20+hh}")
    for tt in range(16):
        hh, t = tt >> 2, tt & 3
        a(f"s_waitcnt lgkmcnt({15 - tt})")
        a(f"{MF} v[{36+4*hh}:{39+4*hh}], v[{100+4*tt}:{103+4*tt}], v[{188+4*tt}:{191+4*tt}], {'0' if t == 0 else f'v[{36+4*hh}:{39+4*hh}]'}")
        if hh >= 2: wfma(hh - 2, t)
    a("s_mov_b32 s58, 0x11111111\n s_mov_b32 s59, 0x11111111")
    for hh in (2, 3):
        for i in range(4): wfma(hh, i)
    for ctl in ("quad_perm:[1,0,3,2]", "quad_perm:[2,3,0,1]"):
        for i in range(4): a(f"v_add_f32_dpp v{52+i}, v{52+i}, v{52+i} {ctl} {DPP}")
    a("v_cvt_pk_bf16_f32 v52, v52, v53\n v_cvt_pk_bf16_f32 v53, v54, v55\n v_min_u32 v52, -2, v52\n v_min_u32 v53, -2, v53")
    a("s_mov_b64 exec, s[58:59]")
    a("buffer_store_dwordx2 v[52:53], v32, s[20:23], s82 offen sc1")
    stamp(8); flush(); dump()
    a("s_endpgm")

    pend[:] = base_pend
    a("L_F:")
    NE = nl
    for n in range(NE, 36):
        if n == 18: a("s_mov_b64 s[16:17], s[32:33]\n s_mov_b32 s73, s58")
        late(n)
        if n == NE + 9:
            for i in range(6): a(f"v_lshlrev_b32 v{172+2*i}, 16, v{188+i}\n v_and_b32 v{173+2*i}, s78, v{188+i}")
            a("v_mov_b32 v20, 0x3f803f80\n v_mov_b32 v21, v20\n v_mov_b32 v22, v20\n v_mov_b32 v23, v20")
            a(f"v_mul_u32_u24 v97, {IMG_T}, v0\n v_add_u32 v97, {IMG + 256}, v97\n s_mov_b64 exec, 0x3ffff\n ds_write_b128 v97, v[20:23]\n s_mov_b64 exec, -1")
            a("v_mov_b32 v24, 0\n v_mov_b32 v25, 0\n v_mov_b32 v26, 0\n v_mov_b32 v27, 0")
            a(f"v_mov_b32 v97, {ZER}\n ds_write_b128 v97, v[24:27]\n ds_write_b128 v97, v[24:27] offset:256")
            a("v_and_b32 v97, 1, v0\n v_cmp_eq_u32 vcc, 1, v97\n v_mov_b32 v98, 0x3f80\n v_mov_b32 v99, 0x3f800000\n v_cndmask_b32 v98, v98, v99, vcc\n v_bfe_u32 v97, v0, 1, 3")
            for d in range(8): a(f"v_cmp_eq_u32 vcc, {d}, v97\n v_cndmask_b32 v{8+d}, 0, v98, vcc")
        if n == NE + 12:
            a(f"v_bfe_u32 v97, v0, 1, 2\n v_bfe_u32 v28, v0, 5, 1\n v_mul_u32_u24 v28, {IMG_T}, v28\n v_bfe_u32 v98, v0, 3, 1\n v_lshl_add_u32 v28, v98, 7, v28")
            a("v_and_b32 v98, 1, v0\n v_lshl_add_u32 v28, v98, 6, v28\n v_lshl_add_u32 v28, v97, 4, v28\n v_bfe_u32 v98, v0, 4, 1\n v_lshl_add_u32 v28, v98, 3, v28")
            a(f"s_mul_i32 s82, s3, {2*IMG_T}\n s_add_u32 s82, s82, {IMG}\n v_add_u32 v28, s82, v28")
            a(f"v_lshlrev_b32 v29, 7, v97\n v_lshl_add_u32 v29, v93, 3, v29\n s_lshl_b32 s82, s3, 5\n s_add_u32 s82, s82, {HST}\n v_add_u32 v29, s82, v29")
            a(f"v_lshl_add_u32 v30, v93, 2, v92\n v_lshlrev_b32 v30, 4, v30\n v_mov_b32 v98, 256\n v_cmp_eq_u32 vcc, 1, v94\n v_cndmask_b32 v30, v30, v98, vcc\n v_add_u32 v30, {IMG}, v30")
            a(f"v_lshlrev_b32 v31, 3, v0\n v_add_u32 v31, {HST}, v31")
            a("v_bfe_u32 v32, v0, 3, 1\n v_lshlrev_b32 v32, 6, v32\n v_lshl_add_u32 v32, v93, 4, v32\n v_and_b32 v98, 7, v0\n v_lshl_add_u32 v32, v98, 1, v32")
            a(f"s_lshl_b32 s82, s3, 7\n s_add_u32 s82, s82, {ACT}\n v_add_u32 v32, s82, v32")
        if n == NE + 15:
            a(f"v_lshl_add_u32 v98, v93, 2, v92\n v_lshlrev_b32 v98, 4, v98\n v_add_u32 v98, {ACT}, v98\n v_mov_b32 v99, {ZER}")
            for e in range(4): a(f"v_cmp_eq_u32 vcc, {e}, v94\n v_cndmask_b32 v{33+e}, v99, v98, vcc")
            a("v_bfe_u32 v50, v0, 5, 1\n v_lshlrev_b32 v50, 6, v50\n v_lshl_add_u32 v50, v92, 4, v50\n v_bfe_u32 v98, v0, 4, 1\n v_lshl_add_u32 v50, v98, 3, v50")
            a(f"v_bfe_u32 v37, v0, 1, 1\n v_mul_u32_u24 v37, {IMG_T}, v37\n v_and_b32 v98, 1, v0\n v_lshl_add_u32 v37, v98, 7, v37")
            a(f"s_mul_i32 s82, s3, {2*IMG_T}\n s_add_u32 s82, s82, {IMG}\n v_add3_u32 v37, v37, v50, s82")
            a(f"s_lshr_b32 s82, s3, 1\n s_mul_i32 s82, s82, {IMG_T}\n s_and_b32 s83, s3, 1\n s_lshl_b32 s83, s83, 7\n s_add_u32 s82, s82, s83\n s_add_u32 s82, s82, {IMG + 16*IMG_T}\n v_add_u32 v50, s82, v50")
            a("s_cmp_eq_u32 s7, 0\n s_cselect_b32 s75, s78, 0")
            a("v_mul_u32_u24 v38, 9216, v96\n v_and_b32 v98, 7, v0\n v_lshl_add_u32 v38, v98, 4, v38")
            a(f"v_lshlrev_b32 v39, 5, v92\n v_lshl_add_u32 v39, v93, 3, v39\n v_add_u32 v39, {8*9216}, v39")
            a(f"v_add_u32 v40, {R1}, v4\n v_add_u32 v41, {R1}, v5")
            for i in range(16): a(f"v_mov_b32 v{220+i}, 0")
            a("s_cmp_eq_u32 s3, 0\n s_cbranch_scc1 L_fx8")
            for i in range(4): a(f"v_mov_b32 v{180+i}, 0")
            a("L_fx8:")
    a(f"s_mul_i32 s58, s3, {9*9216}\n s_lshl_b32 s82, s7, 7\n s_add_u32 s58, s58, s82\n s_add_u32 s58, s58, {WS_C}")
    a(f"s_lshl_b32 s82, s3, 12\n s_add_u32 s82, s82, {WS_B}\n s_add_u32 s83, s82, 16384\n s_mov_b32 s59, {WS_B + 32768}")
    a("s_waitcnt vmcnt(9) lgkmcnt(0)\n s_barrier")
    for t in range(18): trread(("a", 4*t), 4, 5, t)
    for t in range(9): trread(("a", 72 + 4*t), 40, 41, t)
    def bpass():
        lab = a.label("L_fb")
        a(f"s_cmp_eq_u32 s3, 0\n s_cbranch_scc0 {lab}")
        for p in range(4): a(f"buffer_load_dwordx4 v[{220+4*p}:{223+4*p}], v2, s[20:23], s59 offen offset:{1024*p} sc1")
        a(f"{lab}:")
        for blk, so in ((0, "s82"), (1, "s83")):
            for p in range(4): a(f"buffer_load_dwordx4 v[{188+16*blk+4*p}:{191+16*blk+4*p}], v2, s[20:23], {so} offen offset:{1024*p} sc1")
    a("s_waitcnt vmcnt(0)")
    bpass()
    a("s_barrier")
    stamp(7)
    for t in range(9, 18): trread(("a", 72 + 4*t), 40, 41, t)
    a("s_mov_b32 s81, 0\n s_branch L_fchk")
    a("L_fa:")
    if MASK: a("s_mov_b64 exec, vcc")
    bpass()
    if MASK: a("s_mov_b64 exec, -1")
    a("L_fchk:")
    HD = 76
    k = 0
    for blk in (2, 0, 1):
        for p in range(4):
            r = 188 + 16 * blk + 4 * p; d = HD + 4 * blk
            a(f"s_waitcnt vmcnt({11 - k})")
            a(f"{MF} v[{d}:{d+3}], v[{8+4*(p>>1)}:{11+4*(p>>1)}], v[{r}:{r+3}], " + (f"v[{172+4*blk}:{175+4*blk}]" if p == 0 else f"v[{d}:{d+3}]"))
            chk4(99, r, k == 0); k += 1
    for blk in (2, 0):
        d = HD + 4 * blk
        a(f"v_cvt_pk_bf16_f32 v{44+2*blk}, v{d}, v{d+1}\n v_cvt_pk_bf16_f32 v{45+2*blk}, v{d+2}, v{d+3}")
    spin_end(99, "L_fa")
    stamp(8)
    a("ds_write_b64 v28, v[44:45]")
    a(f"v_cvt_pk_bf16_f32 v46, v{HD+4}, v{HD+5}\n v_cvt_pk_bf16_f32 v47, v{HD+6}, v{HD+7}")
    a(f"s_cmp_eq_u32 s3, 0\n ds_write_b64 v28, v[46:47] offset:{8*IMG_T}\n s_cbranch_scc0 L_fw8\n ds_write_b64 v28, v[48:49] offset:{16*IMG_T}")
    a("L_fw8:")
    a("s_waitcnt lgkmcnt(0)\n s_barrier")
    HF = 184
    def hread(t): a(f"ds_read_b128 v[{HF+4*(t%15)}:{HF+3+4*(t%15)}], v30 offset:{t*IMG_T}")
    for t in range(12): hread(t)
    a(f"v_add_f32 v42, v{HD}, v{HD+1}\n v_mul_f32 v43, v{HD}, v{HD}")
    st1 = []
    for i in range(1, 12):
        st1.append(([f"v_add_f32 v42, v42, v{HD+i}"] if i >= 2 else []) + [f"v_fmac_f32 v43, v{HD+i}, v{HD+i}"])
    for s in st1[:7]:
        for x in s: a(x)
    side = {0: st1[7] + st1[8], 1: st1[9] + st1[10]}
    side[2] = [f"v_add_f32_dpp v{r}, v{r}, v{r} quad_perm:[1,0,3,2] {DPP}" for r in (42, 43)]
    side[3] = [f"v_add_f32_dpp v{r}, v{r}, v{r} row_ror:8 {DPP}" for r in (42, 43)]
    side[5] = ["ds_write_b64 v29, v[42:43]"] + [f"ds_read_b64 v[{44+2*k}:{45+2*k}], v37 offset:{8*IMG_T*k}" for k in range(2)] + ["ds_read_b64 v[48:49], v50"]
    side[8] = ["s_waitcnt lgkmcnt(0)", "s_barrier", "ds_read_b64 v[42:43], v31"]
    side[9] = [f"v_lshlrev_b32 v{60+2*i}, 16, v{44+i}" for i in range(3)]
    side[10] = [f"v_lshlrev_b32 v{60+2*i}, 16, v{44+i}" for i in range(3, 6)]
    side[11] = [f"v_and_b32 v{61+2*i}, s75, v{44+i}" for i in range(3)]
    side[12] = ["s_waitcnt lgkmcnt(0)"] + [f"v_add_f32_dpp v{r}, v{r}, v{r} quad_perm:[1,0,3,2] {DPP}" for r in (42, 43)] + ["v_and_b32 v67, s75, v47"]
    side[13] = [f"v_add_f32_dpp v{r}, v{r}, v{r} quad_perm:[2,3,0,1] {DPP}" for r in (42, 43)] + ["v_and_b32 v69, s75, v48"]
    side[14] = [f"v_add_f32_dpp v{r}, v{r}, v{r} row_half_mirror {DPP}" for r in (42, 43)] + ["v_and_b32 v71, s75, v49"]
    side[15] = [f"v_add_f32_dpp v{r}, v{r}, v{r} row_mirror {DPP}" for r in (42, 43)]
    side[16] = [f"v_mul_f32 v42, {f2u(1/576):#x}, v42", f"v_mul_f32 v43, {f2u(1/576):#x}, v43", "v_fma_f32 v43, -v42, v42, v43"]
    side[17] = [f"v_add_f32 v43, {f2u(1e-5):#x}, v43", "v_rsq_f32 v43, v43"] + [f"v_and_b32 v{60+2*i}, s75, v{60+2*i}" for i in range(6)]
    for t in range(18):
        h = HF + 4 * (t % 15)
        if t <= 5:   a("s_waitcnt lgkmcnt(11)")
        elif t <= 8: a(f"s_waitcnt lgkmcnt({17 - t + 4})")
        a(f"{MF} v[52:55], v[{h}:{h+3}], a[{4*t}:{4*t+3}], {'0' if t == 0 else 'v[52:55]'}")
        a(f"{MF} v[56:59], v[{h}:{h+3}], a[{72+4*t}:{75+4*t}], {'0' if t == 0 else 'v[56:59]'}")
        if t + 12 < 18: hread(t + 12)
        for s in side.get(t, []): a(s)
    c1 = -2 * 0.7978845608028654 * 1.4426950408889634
    a("v_fma_f32 v52, -v42, v53, v52\n v_fma_f32 v56, -v42, v57, v56\n v_mul_f32 v52, v52, v43")
    a(f"v_mov_b32 v54, {f2u(c1):#x}\n v_mul_f32 v53, v52, v52\n v_mul_f32 v56, v56, v43\n v_fmamk_f32 v53, v53, {f2u(c1 * 0.044715):#x}, v54\n v_mul_f32 v53, v53, v52")
    a("v_exp_f32 v53, v53\n v_mul_f32 v52, v52, v56\n v_add_f32 v53, 1.0, v53\n v_rcp_f32 v53, v53\n v_mul_f32 v52, v52, v53")
    a("v_cvt_pk_bf16_f32 v52, v52, v52\n ds_write_b16 v32, v52\n s_waitcnt lgkmcnt(0)\n s_barrier")
    stamp(9)
    for e in range(4):
        for t in range(2): a(f"ds_read_b128 v[{184+8*e+4*t}:{187+8*e+4*t}], v{33+e} offset:{256*t}")
    if diag: a("s_waitcnt lgkmcnt(0)")
    for e in range(4):
        for t in range(2):
            if not diag: a(f"s_waitcnt lgkmcnt({7 - 2*e - t})")
            for acc in range(3):
                if acc == 2 and e > 0: continue
                w = 100 + 4 * (8 * acc + 2 * e + t)
                a(f"{MF} v[{60+4*acc}:{63+4*acc}], v[{w}:{w+3}], v[{184+8*e+4*t}:{187+8*e+4*t}], v[{60+4*acc}:{63+4*acc}]")
        if e == 2:
            a("v_cvt_pk_bf16_f32 v48, v68, v69\n v_cvt_pk_bf16_f32 v49, v70, v71\n v_min_u32 v48, -2, v48\n v_min_u32 v49, -2, v49")
    a("s_mov_b32 exec_lo, 0x11111111\n s_mov_b32 exec_hi, 0x11111111")
    a("buffer_store_dwordx2 v[48:49], v39, s[20:23], s58 offen sc1\n s_mov_b64 exec, -1")
    for i in range(4): a(f"v_cvt_pk_bf16_f32 v{44+i}, v{60+2*i}, v{61+2*i}")
    for i in range(4): a(f"v_min_u32 v{44+i}, -2, v{44+i}")
    a("buffer_store_dwordx4 v[44:47], v38, s[20:23], s58 offen sc1")
    stamp(10); flush(); dump()
    a("s_endpgm")

    pend[:] = base_pend
    a("L_R:")
    a("s_cmp_eq_u32 s3, 0\n s_cbranch_scc0 L_fin")
    a("v_and_b32 v97, 1, v0\n v_cmp_eq_u32 vcc, 1, v97\n v_mov_b32 v98, 0x3f80\n v_mov_b32 v99, 0x3f800000\n v_cndmask_b32 v98, v98, v99, vcc\n v_bfe_u32 v97, v0, 1, 3")
    for d in range(4): a(f"v_cmp_eq_u32 vcc, {d}, v97\n v_cndmask_b32 v{8+d}, 0, v98, vcc")
    a("s_cmp_eq_u32 s6, 0\n s_cbranch_scc1 L_r8\n s_cmp_lt_u32 s7, 32\n s_cbranch_scc0 L_fin")
    a("v_bfe_u32 v28, v0, 2, 1\n v_mul_u32_u24 v28, 1152, v28\n v_lshl_add_u32 v28, v94, 5, v28\n v_lshl_add_u32 v28, v93, 9, v28")
    a("s_lshr_b32 s82, s4, 1\n s_and_b32 s83, s4, 1\n s_sub_u32 s59, s5, 26")
    a("s_mul_i32 s7, s82, 9\n s_add_u32 s7, s7, s83\n s_lshl_b32 s58, s59, 1\n s_add_u32 s7, s7, s58")
    a("s_mul_i32 s58, s83, 2304\n s_lshl_b32 s82, s82, 7\n s_add_u32 s58, s58, s82\n s_lshl_b32 s59, s59, 3\n s_add_u32 s58, s58, s59\n s_branch L_r9")
    a("L_r8:")
    a("s_cmp_lt_u32 s7, 4\n s_cbranch_scc0 L_fin")
    a("v_bfe_u32 v28, v0, 1, 2\n v_mul_u32_u24 v28, 1152, v28\n v_and_b32 v98, 1, v0\n v_lshl_add_u32 v28, v98, 4, v28\n v_lshl_add_u32 v28, v93, 3, v28")
    a("s_lshl_b32 s58, s7, 5\n s_add_u32 s58, s58, 1024\n s_mul_i32 s7, s7, 9\n s_add_u32 s7, s7, 8")
    a("L_r9:")
    a(f"s_mul_i32 s82, s7, 9216\n s_add_u32 s82, s82, {WS_C}\n s_add_u32 s83, s82, 4096\n s_add_u32 s59, s82, 8192\n s_mov_b32 s81, 0\n s_mov_b64 vcc, -1")
    a("L_ra:")
    if MASK: a("s_mov_b64 exec, vcc")
    for i in range(9): a(f"buffer_load_dwordx4 v[{172+4*i}:{175+4*i}], v2, s[20:23], {('s82','s83','s59')[i>>2]} offen offset:{1024*(i&3)} sc1")
    if MASK: a("s_mov_b64 exec, -1")
    for i in range(9):
        a(f"s_waitcnt vmcnt({8 - i})")
        a(f"{MF} v[52:55], v[8:11], v[{172+4*i}:{175+4*i}], {'0' if i == 0 else 'v[52:55]'}")
        chk4(99, 172 + 4*i, i == 0)
    a("s_nop 3")
    spin_end(99, "L_ra")
    stamp(7)
    for i in range(4): a(f"v_add_f32_dpp v{52+i}, v{52+i}, v{52+i} row_ror:8 {DPP}")
    a("v_cvt_pk_bf16_f32 v52, v52, v53\n v_cvt_pk_bf16_f32 v53, v54, v55")
    a("s_mov_b64 exec, 0x00ff00ff\n buffer_store_dwordx2 v[52:53], v28, s[36:39], s58 offen")
    a(f"s_cmp_eq_u32 s7, 0\n s_cbranch_scc0 L_rend\n s_mov_b32 exec_lo, -1\n v_mov_b32 v54, s54\n v_lshlrev_b32 v55, 2, v0\n s_mov_b32 s82, {WS_EP}\n buffer_store_dword v54, v55, s[20:23], s82 offen sc1")
    a("L_rend:")
    if probe >= 0:
        if probe == 99: a("s_memrealtime s[86:87]")
        if probe >= 200:
            a("s_mov_b64 exec, -1\n v_and_b32 v97, 7, v0\n v_lshlrev_b32 v97, 2, v97\n buffer_load_dword v98, v97, s[40:43], 0 offen offset:128 sc1\n s_waitcnt vmcnt(0)")
            for j in range(8): a(f"v_readlane_b32 s{44+j}, v98, {j}")
            a("s_nop 4\n s_mov_b32 s84, s44\n s_mov_b32 s52, s44")
            for j in range(1, 8): a(f"s_min_u32 s84, s84, s{44+j}\n s_max_u32 s52, s52, s{44+j}")
            a(f"s_sub_u32 s86, s{44 + probe - 200}, s84\n s_min_u32 s86, s86, 1000\n s_lshl_b32 s86, s86, 4\n s_mov_b32 s84, 0")
        a("s_memrealtime s[88:89]\n s_waitcnt lgkmcnt(0)\n s_sub_u32 s86, s86, s84")
        a("L_probe:")
        a("s_memrealtime s[90:91]\n s_waitcnt lgkmcnt(0)\n s_sub_u32 s90, s90, s88\n s_cmp_lt_u32 s90, s86\n s_cbranch_scc1 L_probe")
    stamp(8); flush(); dump()
    a("s_endpgm")
    pend[:] = base_pend
    a("L_fin:")
    flush(); dump()
    a("L_end:")
    body = a.finish().replace("CODE_REST", "L_end-L_pc")
    return f"""{HEADER}; @launch grid=(256,1,1) block=(256,1,1) lds={LDS_BYTES}
.amdgcn_target "amdgcn-amd-amdhsa--gfx950"
.text
.globl {KN}
.p2align 8
.type {KN},@function
{KN}:
{body}
    s_endpgm
.section .rodata,"a"
.p2align 6
.amdhsa_kernel {KN}
  .amdhsa_next_free_vgpr 512
  .amdhsa_next_free_sgpr 102
  .amdhsa_accum_offset 256
  .amdhsa_group_segment_fixed_size 0
  .amdhsa_kernarg_size 96
  .amdhsa_user_sgpr_count 2
  .amdhsa_user_sgpr_kernarg_segment_ptr 1
  .amdhsa_system_sgpr_workgroup_id_x 1
.end_amdhsa_kernel
"""

if __name__ == "__main__":
    out = sys.argv[1]
    kw = {}
    for x in sys.argv[2:]:
        k, v = x.split("=")
        kw[k] = int(v) if v.lstrip("-").isdigit() else v
    open(out, "w").write(gen(**kw))
```

```python
import sys, struct
from asmlib import Asm

KN = "sequential_preLN__sliding_block_cached__geglu_ffn__decode_kernel"
HEADER = open("sequential_preLN__sliding_block_cached__geglu_ffn__decode.s.ref").read().split("; Override launch")[0]

def f2u(x): return struct.unpack("<I", struct.pack("<f", x))[0]

WS_Q   = 0x0
WS_EP  = 0x10000
WS_FL  = 0x10400
WS_SB  = 0x14000
WS_SC  = 0x14400
WS_ST  = 0x15000
WS_A   = WS_ST + 32768
WS_B   = WS_A + 131072
WS_C   = WS_B + 36864
WS_END = WS_C + 331776
WS_DIAG = 0x100000
R0, R1 = 0, 73728
IMG = 147456; IMG_T = 272
CMB = 152576
ST  = 156672
HST = 156800
ACT = 157440
ZER = ACT + 512
XIM = ZER + 512
LDS_BYTES = XIM + 5120
OIM = R1
WTS = HST
SPIN = 1 << 18
DPP = "row_mask:0xf bank_mask:0xf"
MF = "v_mfma_f32_16x16x32_bf16"

def gen(diag=False, probe=-1, NT="nt", PNT="none", KF=0, NK1=7, QPOLL=0, QL=7, LAG=9, STEP=9,
        WIN=6, WINV=0, FUN=0, NQF=14, NFF=14, LNP=5, RD=1, PFC=1,
        RT=0, QTCH=1, TP0=14, TP1=22, NM=0, LH=1, N1U=189,
        LOC=1, SIGB=1, SIGC=1, CPOS=16, NTF=4, AL=1, LH2=1, X=""):
    a = Asm()
    pend = []
    NT, PNT = [("" if x == "none" else x) for x in (NT, PNT)]
    def stamp(i):
        if probe >= 0:
            if i == 0: a("s_memrealtime s[84:85]")
            if i == probe: a("s_memrealtime s[86:87]")
        if not diag: return
        p = 84 + 2 * (len(pend))
        assert p <= 100
        a(f"s_memrealtime s[{p}:{p+1}]"); pend.append((i, p))
    def flush():
        if not diag: return
        a("s_waitcnt lgkmcnt(0)")
        for i, p in pend: a(f"v_writelane_b32 v255, s{p}, {i}")
        pend.clear()
    def dump():
        if not diag: return
        a("s_mov_b64 exec, -1\n v_writelane_b32 v255, s81, 14")
        a("s_lshl_b32 s74, s2, 2\n s_add_u32 s74, s74, s3\n s_lshl_b32 s74, s74, 8")
        a(f"s_add_u32 s74, s74, {WS_DIAG}")
        a("v_lshlrev_b32 v254, 2, v0")
        a("s_mov_b32 s22, 0x200000")
        a("buffer_store_dword v255, v254, s[20:23], s74 offen")
    def srd(d, p, n):
        a(f"s_mov_b64 s[{d}:{d+1}], s[{p}:{p+1}]\n s_mov_b32 s{d+2}, {n}\n s_mov_b32 s{d+3}, 0x20000")
    def rowred(regs, op):
        for ctl in ("quad_perm:[1,0,3,2]", "quad_perm:[2,3,0,1]", "row_half_mirror", "row_mirror"):
            for r in regs: a(f"{op}_dpp v{r}, v{r}, v{r} {ctl} {DPP}")
    def xrow(r, t, op):
        for sw in ("v_permlane16_swap_b32", "v_permlane32_swap_b32"):
            a(f"v_mov_b32 v{t}, v{r}\n {sw} v{r}, v{t}\n {op} v{r}, v{r}, v{t}")
    def rnd(r):
        a(f"v_cvt_pk_bf16_f32 v{r}, v{r}, v{r}\n v_and_b32 v{r}, s78, v{r}")
    def chk4(acc, r, first):
        if first: a(f"v_max3_u32 v{acc}, v{r}, v{r+1}, v{r+2}\n v_max_u32 v{acc}, v{r+3}, v{acc}")
        else:     a(f"v_max3_u32 v{acc}, v{r}, v{r+1}, v{acc}\n v_max3_u32 v{acc}, v{r+2}, v{r+3}, v{acc}")
    def spin_end(acc, again):
        lab = a.label("L_ok")
        a(f"v_cmp_eq_u32 vcc, -1, v{acc}\n s_cbranch_vccz {lab}")
        a(f"s_add_u32 s81, s81, 1\n s_cmp_lt_u32 s81, {SPIN}\n s_cbranch_scc1 {again}")
        a(f"{lab}:")
    def line_store(val, so):
        a(f"v_mov_b32 v97, {val}\n v_lshlrev_b32 v98, 2, v0\n s_mov_b32 exec_hi, 0\n buffer_store_dword v97, v98, s[20:23], {so} offen sc1\n s_mov_b32 exec_hi, -1")
    def near_store(text):
        if not LOC: a(text + " sc1"); return
        l1, l2 = a.label("L_far"), a.label("L_st")
        a(f"s_cmp_eq_u32 s55, 1\n s_cbranch_scc0 {l1}\n {text}\n s_branch {l2}\n{l1}:\n {text} sc1\n{l2}:")
    free = [False]
    def kvload(kind, i):
        w = WIN if (kind == "k" and i >= KF or kind == "v" and i < QPOLL + QL) else (WINV if kind == "v" else 0)
        if w and free[0]:
            lab = a.label("L_t")
            a(f"s_cbranch_vccnz {lab}\n s_waitcnt vmcnt({w-1})\n{lab}:")
        elif w: a(f"s_waitcnt vmcnt({w-1})")
        if kind == "k": a(f"buffer_load_dwordx4 a[{4*i}:{4*i+3}], v1, s[8:11], s68 offen {NT}")
        else:           a(f"buffer_load_dwordx4 a[{128+4*i}:{131+4*i}], v2, s[12:15], s68 offen {NT}")
        a(f"s_addk_i32 s68, {STEP*1024}\n s_and_b32 s68, s68, s69")

    a("s_cmp_ge_u32 s2, 256\n s_cbranch_scc1 L_end")
    a("s_load_dwordx16 s[44:59], s[0:1], 0\n s_load_dwordx8 s[60:67], s[0:1], 64")
    if diag:
        for r in range(86, 102, 2): a(f"s_mov_b64 s[{r}:{r+1}], 0")
    stamp(0)
    a("v_lshrrev_b32 v1, 6, v0\n s_and_b32 s4, s2, 7\n s_lshr_b32 s5, s2, 3\n v_readfirstlane_b32 s3, v1")
    if PFC:
        a("s_cmp_eq_u32 s5, 31\n s_cbranch_scc0 L_nopfc")
        a("s_getpc_b64 s[82:83]")
        a("L_pc:")
        a("v_lshlrev_b32 v97, 7, v0\n v_cmp_gt_u32 vcc, CODE_REST, v97\n s_and_saveexec_b64 s[70:71], vcc\n s_cbranch_execz L_pc2\n global_load_dword v206, v97, s[82:83]")
        a("L_pc2:\n s_mov_b64 exec, -1")
        a("L_nopfc:")
    a("v_and_b32 v0, 63, v0")
    if diag: a("v_mov_b32 v255, 0")
    a("s_lshr_b32 s76, s5, 4\n s_lshl_b32 s74, s4, 1\n s_add_u32 s76, s76, s74")
    a("s_and_b32 s77, s5, 15")
    a("s_movk_i32 s69, 0x7fff")
    a("s_lshl_b32 s68, s2, 2\n s_add_u32 s68, s68, s3\n s_mul_i32 s68, s68, 0x9E3779B1\n s_lshr_b32 s68, s68, 27\n s_lshl_b32 s68, s68, 10")
    a("v_bfe_u32 v92, v0, 2, 2\n v_lshrrev_b32 v93, 4, v0\n v_and_b32 v94, 3, v0")
    a("v_lshlrev_b32 v1, 8, v92\n v_lshl_add_u32 v1, v93, 6, v1\n v_lshl_add_u32 v1, v94, 4, v1")
    a("v_lshrrev_b32 v96, 3, v0\n v_and_b32 v95, 7, v0\n v_lshlrev_b32 v97, 7, v95\n v_lshl_add_u32 v97, v96, 13, v97")
    a("s_lshr_b32 s82, s77, 2\n s_lshl_b32 s82, s82, 4\n s_add_u32 s82, s82, s76\n s_lshl_b32 s82, s82, 21")
    a(f"s_and_b32 s83, s77, 3\n s_lshl_b32 s83, s83, 2\n s_add_u32 s83, s83, s3\n s_lshl_b32 s83, s83, 15\n s_add_u32 s82, s82, s83\n s_add_u32 s82, s82, {6144*256}")
    a("s_mov_b32 s10, 32768\n s_mov_b32 s11, 0x20000\n s_mov_b32 s18, 4718592\n s_mov_b32 s19, 0x20000")
    a("s_sub_u32 s70, s5, 18\n s_cmp_lt_u32 s5, 8\n s_cselect_b32 s70, s5, s70\n s_lshl_b32 s70, s70, 2\n s_add_u32 s70, s70, s3")
    a("s_add_u32 s73, s70, 16\n s_lshl_b32 s73, s73, 16\n s_lshl_b32 s74, s4, 10\n s_add_u32 s73, s73, s74")
    a("v_lshlrev_b32 v2, 4, v0")
    a("v_mov_b32 v188, -1\n v_mov_b32 v189, -1\n v_mov_b32 v190, -1\n v_mov_b32 v191, -1")
    a("s_sub_u32 s7, s5, 26\n s_lshl_b32 s7, s7, 3\n s_add_u32 s7, s7, s4")
    a(f"s_lshl_b32 s75, s7, 2\n s_add_u32 s75, s75, s3\n s_mul_i32 s75, s75, 3072\n s_add_u32 s75, s75, {WS_ST}")
    a(f"s_mov_b32 s22, {WS_END}\n s_mov_b32 s23, 0x20000")
    a("s_sub_u32 s74, s5, 8\n s_cmp_lt_u32 s74, 18")
    a("s_waitcnt lgkmcnt(0)")
    a(f"s_load_dword s54, s[66:67], {WS_EP}")
    a("s_mov_b64 s[16:17], s[50:51]\n s_mov_b64 s[20:21], s[66:67]\n s_cbranch_scc1 L_notq")
    a(f"buffer_load_dword v207, v97, s[16:19], s73 offen {PNT}")
    a("s_cmp_lt_u32 s5, 8\n s_cbranch_scc1 L_notq")
    for i in range(3): a(f"buffer_store_dwordx4 v[188:191], v2, s[20:23], s75 offen offset:{1024*i} sc1")
    if RD:
        a("s_sub_u32 s73, s70, 32\n s_mul_i32 s73, s73, 12\n v_lshrrev_b32 v97, 2, v0\n v_add_u32 v97, s73, v97\n v_and_b32 v98, 0x1e0, v97\n v_add_u32 v97, v97, v98\n v_mul_u32_u24 v97, 1152, v97\n v_lshl_add_u32 v97, v94, 7, v97")
        a(f"s_mul_i32 s73, s4, {9*73728}\n s_add_u32 s73, s73, {32*1152 + 5*128}\n s_mov_b64 s[16:17], s[60:61]\n s_mov_b32 s18, 5308416")
        a(f"s_mov_b32 exec_hi, 0xffff\n buffer_load_dword v208, v97, s[16:19], s73 offen {PNT}\n s_mov_b32 exec_hi, -1")
    a("L_notq:")
    a("s_add_u32 s8, s46, s82\n s_addc_u32 s9, s47, 0")
    for i in range(KF): kvload("k", i)
    a("s_add_u32 s12, s48, s82\n s_addc_u32 s13, s49, 0\n s_mov_b32 s14, 32768\n s_mov_b32 s15, 0x20000")
    srd(24, 44, 4608)
    a("s_and_b32 s82, s3, 1\n s_lshl_b32 s82, s82, 2")
    a("v_and_b32 v97, 2, v96\n v_or_b32 v97, s82, v97\n v_xor_b32 v95, v95, v97\n v_lshlrev_b32 v95, 4, v95")
    a("s_lshl_b32 s83, s3, 10\n s_mov_b32 m0, s83\n s_mov_b32 s78, 0xffff0000")
    a("s_mul_i32 s75, s3, 9216\n s_movk_i32 s74, 1152\n s_movk_i32 s40, 0x1000\n s_movk_i32 s41, 0x1000")
    a("s_cmp_lt_u32 s5, 8\n s_cbranch_scc1 L_dq\n s_cmp_lt_u32 s5, 17\n s_cbranch_scc1 L_dw\n s_cmp_lt_u32 s5, 26\n s_cbranch_scc1 L_df")
    a("s_mov_b32 s6, 3\n s_branch L_kld")
    a("L_dq:")
    a("s_mov_b32 s6, 0\n s_lshl_b32 s7, s4, 3\n s_add_u32 s7, s7, s5\n s_movk_i32 s74, 8192\n s_mov_b32 s71, 262144\n s_mov_b32 s72, 262144")
    a("s_lshl_b32 s73, s7, 7\n s_lshl_b32 s75, s3, 16")
    for i in range(8): a(f"v_mov_b32 v{188+i}, 0")
    a("s_mul_i32 s82, s3, 1152\n s_mov_b32 exec_hi, 15")
    a("buffer_load_dwordx4 v[188:191], v2, s[24:27], s82 offen\n buffer_load_dwordx4 v[192:195], v2, s[24:27], s82 offen offset:576\n s_mov_b32 exec_hi, -1")
    a("s_branch L_dma")
    a("L_dw:")
    a("s_mov_b32 s6, 1\n s_sub_u32 s7, s5, 8\n s_mov_b32 s71, 36864\n s_mov_b32 s72, 36864\n s_mul_i32 s73, s4, 589824\n s_lshl_b32 s82, s7, 7\n s_add_u32 s73, s73, s82")
    a("s_mov_b64 s[16:17], s[52:53]\n s_branch L_dma")
    a("L_df:")
    a(f"s_mov_b32 s6, 2\n s_mul_i32 s7, s4, 9\n s_add_u32 s7, s7, s5\n s_sub_u32 s7, s7, 17\n s_movk_i32 s71, 128\n s_mov_b32 s72, {36864 - 1024}\n s_mul_i32 s73, s7, 73728")
    a(f"s_movk_i32 s40, 0x2000\n s_mov_b32 s41, {(4096 - 65536) & 0xffffffff:#x}")
    a("s_mov_b64 s[16:17], s[60:61]\n s_mov_b32 s18, 5308416")
    a(f"s_mul_i32 s82, s3, 1152\n s_add_u32 m0, s82, {XIM}\n s_mov_b32 exec_hi, 15")
    a("buffer_load_dwordx4 v2, s[24:27], s82 offen lds\n buffer_load_dwordx4 v2, s[24:27], s82 offen offset:576 lds\n s_mov_b32 exec_hi, -1\n s_mov_b32 m0, s83")
    a("L_dma:")
    a("s_add_u32 s73, s73, s75\n v_mad_u32_u24 v3, v96, s74, v95")
    def layernorm():
        a("s_cmp_eq_u32 s6, 0\n s_cbranch_scc0 L_noln")
        a(f"s_waitcnt vmcnt({LNP})")
        for i in range(8):
            a(f"v_lshlrev_b32 v{172+2*i}, 16, v{188+i}\n v_and_b32 v{173+2*i}, s78, v{188+i}")
        a("v_add_f32 v196, v172, v173")
        for i in range(2, 16): a(f"v_add_f32 v196, v196, v{172+i}")
        rowred([196], "v_add_f32"); xrow(196, 197, "v_add_f32")
        a(f"v_mul_f32 v196, {f2u(1/576):#x}, v196")
        a("v_sub_f32 v198, v172, v196\n v_mul_f32 v197, v198, v198")
        for i in range(1, 16): a(f"v_sub_f32 v198, v{172+i}, v196\n v_fmac_f32 v197, v198, v198")
        a("v_cmp_gt_u32 vcc, 36, v0\n v_cndmask_b32 v197, 0, v197, vcc")
        rowred([197], "v_add_f32"); xrow(197, 198, "v_add_f32")
        a(f"v_mul_f32 v197, {f2u(1/576):#x}, v197")
        rnd(196); rnd(197)
        a(f"v_add_f32 v197, {f2u(1e-5):#x}, v197"); rnd(197)
        a("v_sqrt_f32 v197, v197"); rnd(197)
        a("v_rcp_f32 v197, v197")
        for i in range(8):
            lo, hi = 172 + 2*i, 173 + 2*i
            a(f"v_sub_f32 v{lo}, v{lo}, v196\n v_sub_f32 v{hi}, v{hi}, v196\n v_cvt_pk_bf16_f32 v198, v{lo}, v{hi}")
            a(f"v_lshlrev_b32 v{lo}, 16, v198\n v_and_b32 v{hi}, s78, v198\n v_mul_f32 v{lo}, v{lo}, v197\n v_mul_f32 v{hi}, v{hi}, v197")
            a(f"v_cvt_pk_bf16_f32 v{188+i}, v{lo}, v{hi}")
        a(f"v_lshrrev_b32 v198, 2, v0\n v_mul_u32_u24 v198, {IMG_T}, v198\n v_lshl_add_u32 v198, v94, 6, v198")
        a(f"s_lshl_b32 s82, s3, 4\n s_add_u32 s82, s82, {IMG}\n v_add_u32 v198, s82, v198")
        a("s_mov_b64 exec, vcc")
        a(f"ds_write_b128 v198, v[188:191]\n ds_write_b128 v198, v[192:195] offset:{9*IMG_T}")
        a("s_mov_b64 exec, -1")
        a("L_noln:")
    for n in range(18):
        if n == LNP: layernorm()
        if n == 16: a("s_cmp_eq_u32 s6, 1\n s_cbranch_scc1 L_kld")
        if WIN and n + KF >= WIN + FUN: a(f"s_waitcnt vmcnt({WIN + FUN - 1})")
        a(f"buffer_load_dwordx4 v3, s[16:19], s73 offen {NT} lds")
        if n < 17: a(f"s_add_u32 m0, m0, s{40 + (n == 8)}\n s_add_u32 s73, s73, s{71 + (n == 8)}")
    a("L_kld:")
    nk = KF
    for i in range(NK1):
        kvload("k", nk); nk += 1
        if i == 0:
            srd(28, 56, 5308416); srd(32, 58, 5308416); srd(36, 62, 4608)
            a(f"s_mov_b32 s79, {f2u(128 ** -0.5):#x}\n s_mov_b32 s80, {f2u(1.4426950408889634):#x}\n s_getreg_b32 s42, hwreg(HW_REG_XCC_ID, 0, 3)")
        if i == 1:
            a("v_lshrrev_b32 v97, 1, v92\n v_and_b32 v98, 1, v93\n v_lshl_or_b32 v97, v98, 1, v97")
            a("v_lshl_add_u32 v98, v93, 3, v92\n v_lshlrev_b32 v98, 7, v98\n v_lshl_add_u32 v98, v97, 5, v98\n v_lshl_add_u32 v98, v94, 3, v98")
            a("s_lshl_b32 s82, s3, 5\n v_xor_b32 v4, s82, v98\n v_add_u32 v5, 36864, v4\n v_add_u32 v204, 0x10000, v4")
            a("s_lshl_b32 s83, s3, 13\n s_cmp_eq_u32 s6, 2\n s_cselect_b32 s82, s83, s82\n s_cselect_b32 s83, 32, 0x2000")
            a("v_xor_b32 v200, s82, v98\n v_xor_b32 v201, s83, v200\n s_lshl_b32 s83, s83, 1\n v_xor_b32 v202, s83, v200\n v_xor_b32 v203, s83, v201")

    a(f"s_waitcnt vmcnt({NK1}) lgkmcnt(0)\n s_barrier\n s_add_u32 s54, s54, 16\n s_add_u32 s43, s54, s42")
    stamp(1)
    a("s_and_b32 s82, s6, 1\n s_cbranch_scc0 L_etr\n s_cmp_eq_u32 s3, 0\n s_cbranch_scc0 L_etr")
    a(f"s_mul_i32 s82, s4, 9\n s_add_u32 s82, s82, 48\n s_cmp_eq_u32 s6, 1\n s_cselect_b32 s82, s82, 0\n s_add_u32 s82, s82, s7\n s_lshl_b32 s82, s82, 7\n s_add_u32 s82, s82, {WS_FL}")
    line_store("s43", "s82")
    a("L_etr:")
    def trread(dst, base_lo, base_hi, t):
        b, off = (base_lo, t * 4096) if t < 9 else (base_hi, (t - 9) * 4096)
        k, n = dst
        a(f"ds_read_b64_tr_b16 {k}[{n}:{n+1}], v{b} offset:{off}\n ds_read_b64_tr_b16 {k}[{n+2}:{n+3}], v{b} offset:{off+512}")
    for j in range(18):
        if j % 6 == 0: kvload("k", nk); nk += 1
        b, off = (200 + ((j >> 1) & 3), (j & 1) * 4096 + (j >> 3) * 32768) if j < 16 else (204, (j & 1) * 4096)
        a(f"ds_read_b64_tr_b16 v[{100+4*j}:{101+4*j}], v{b} offset:{off}\n ds_read_b64_tr_b16 v[{102+4*j}:{103+4*j}], v{b} offset:{off+512}")
    a("s_cmp_eq_u32 s6, 0\n s_cbranch_scc0 L_k2")
    a(f"v_lshl_add_u32 v198, v93, 2, v94\n v_lshlrev_b32 v198, 4, v198\n v_add_u32 v198, {IMG}, v198")
    for t in range(18): a(f"ds_read_b128 v[{20+4*t}:{23+4*t}], v198 offset:{t*IMG_T}")
    a("s_waitcnt lgkmcnt(0)")
    for t in range(18):
        a(f"{MF} v[16:19], v[{100+4*t}:{103+4*t}], v[{20+4*t}:{23+4*t}], {'0' if t == 0 else 'v[16:19]'}")
    a("v_lshlrev_b32 v198, 8, v94\n v_bfe_u32 v97, v0, 4, 1\n v_lshl_add_u32 v198, v97, 6, v198\n v_bfe_u32 v97, v0, 5, 1\n v_lshl_add_u32 v198, v97, 4, v198")
    a(f"s_lshr_b32 s83, s3, 1\n s_lshl_b32 s83, s83, 7\n s_and_b32 s82, s3, 1\n s_lshl_b32 s82, s82, 5\n s_add_u32 s83, s83, s82\n s_add_u32 s83, s83, {CMB}\n v_add_u32 v198, s83, v198")
    a(f"v_add_u32 v199, {CMB}, v2\n v_and_b32 v97, 15, v0\n v_lshlrev_b32 v97, 4, v97\n v_lshl_add_u32 v97, v93, 14, v97\n s_lshl_b32 s82, s7, 8")
    a("v_cvt_pk_bf16_f32 v16, v16, v17\n v_cvt_pk_bf16_f32 v18, v18, v19\n v_mov_b32 v17, s54\n v_mov_b32 v19, s54")
    a("s_mov_b32 exec_lo, 0x000f000f\n s_mov_b32 exec_hi, 0x000f000f\n ds_write_b128 v198, v[16:19]\n s_mov_b64 exec, -1")
    a("s_cmp_eq_u32 s3, 0\n s_waitcnt lgkmcnt(0)\n s_barrier\n s_cbranch_scc0 L_k2")
    a("ds_read_b128 v[16:19], v199\n s_waitcnt lgkmcnt(0)")
    a("buffer_store_dwordx4 v[16:19], v97, s[20:23], s82 offen sc1")
    stamp(11)
    a("L_k2:")
    a("s_movk_i32 s82, 9216\n v_mad_u32_u24 v6, v96, s82, v95\n s_mov_b32 s18, 5308416\n s_mul_i32 s59, s4, 1152")
    a("s_cmp_eq_u32 s6, 2\n s_cbranch_scc1 L_v6")
    a("v_mul_u32_u24 v6, 7282, v0\n v_lshrrev_b32 v6, 16, v6\n v_mul_u32_u24 v97, 9, v6\n v_sub_u32 v97, v0, v97\n v_mul_u32_u24 v6, 9216, v6\n v_lshl_add_u32 v6, v97, 7, v6")
    a(f"s_sub_u32 s71, s5, 9\n s_cmp_eq_u32 s6, 3\n s_cselect_b32 s71, s71, s5\n s_lshl_b32 s71, s71, 2\n s_add_u32 s71, s71, s3")
    if not QTCH: a("s_sub_u32 s71, s71, 32")
    a("L_v6:")
    def etouch(rd):
        lab = a.label("L_nt")
        if rd == 0 and QTCH: a(f"s_cmp_eq_u32 s6, 2\n s_cbranch_scc1 {lab}")
        else:                a(f"s_and_b32 s82, s6, 1\n s_cbranch_scc0 {lab}")
        if rd == 1: a("s_add_u32 s71, s71, 60")
        m = (1 << (9 * RT)) - 1
        a(f"s_cmp_lt_u32 s71, {576 // RT}\n s_cselect_b64 s[16:17], s[28:29], s[32:33]\n s_cselect_b32 s82, 0, {576 // RT}\n s_sub_u32 s82, s71, s82")
        a(f"s_mul_i32 s82, s82, {RT * 9216}\n s_add_u32 s82, s82, s59\n s_mov_b32 exec_lo, {m & 0xffffffff:#x}\n s_mov_b32 exec_hi, {m >> 32:#x}")
        a(f"buffer_load_dword v{209+rd}, v6, s[16:19], s82 offen {PNT}\n s_mov_b64 exec, -1")
        a(f"{lab}:")
    C = []
    c = C.append
    c("v_bfe_u32 v97, v0, 1, 2\n v_mul_u32_u24 v97, 1152, v97\n v_bfe_u32 v98, v0, 5, 1\n v_lshl_add_u32 v97, v98, 6, v97\n v_bfe_u32 v98, v0, 3, 1\n v_lshl_add_u32 v97, v98, 5, v97")
    c("v_and_b32 v98, 1, v0\n v_lshl_add_u32 v97, v98, 4, v97\n v_bfe_u32 v98, v0, 4, 1\n v_lshl_add_u32 v97, v98, 3, v97\n"
      f"s_lshl_b32 s83, s3, 7\n s_add_u32 s83, s83, {XIM}\n v_add_u32 v97, s83, v97\n" + "\n".join(f"ds_read_b64 v[{192+2*i}:{193+2*i}], v97 offset:{512*i}" for i in range(3)))
    c("v_mov_b32 v184, 0x3f803f80\n v_mov_b32 v185, v184\n v_mov_b32 v186, v184\n v_mov_b32 v187, v184\n"
      f"v_mul_u32_u24 v97, {IMG_T}, v0\n v_add_u32 v97, {IMG + 256}, v97\n s_mov_b64 exec, 0x3ffff\n ds_write_b128 v97, v[184:187]\n s_mov_b64 exec, -1")
    c(f"v_mov_b32 v188, 0\n v_mov_b32 v189, 0\n v_mov_b32 v190, 0\n v_mov_b32 v191, 0\n v_mov_b32 v97, {ZER}\n ds_write_b128 v97, v[188:191]\n ds_write_b128 v97, v[188:191] offset:256")
    c("s_waitcnt lgkmcnt(0)\n s_cmp_eq_u32 s3, 0\n s_cselect_b32 s83, -1, 0\n v_and_b32 v196, s83, v196\n v_and_b32 v197, s83, v197\n" +
      "\n".join(f"v_lshlrev_b32 v{172+2*i}, 16, v{192+i}\n v_and_b32 v{173+2*i}, s78, v{192+i}" for i in range(6)))
    c("v_and_b32 v97, 1, v0\n v_cmp_eq_u32 s[66:67], 1, v97\n v_mov_b32 v98, 0x3f80\n v_mov_b32 v99, 0x3f800000\n v_cndmask_b32 v98, v98, v99, s[66:67]\n v_bfe_u32 v97, v0, 1, 3")
    c("\n".join(f"v_cmp_eq_u32 s[66:67], {d}, v97\n v_cndmask_b32 v{184+d}, 0, v98, s[66:67]" for d in range(4)))
    c("\n".join(f"v_cmp_eq_u32 s[66:67], {d}, v97\n v_cndmask_b32 v{184+d}, 0, v98, s[66:67]" for d in range(4, 8)))
    c(f"v_bfe_u32 v97, v0, 1, 2\n v_bfe_u32 v192, v0, 5, 1\n v_mul_u32_u24 v192, {IMG_T}, v192\n v_bfe_u32 v98, v0, 3, 1\n v_lshl_add_u32 v192, v98, 7, v192\n"
      "v_and_b32 v98, 1, v0\n v_lshl_add_u32 v192, v98, 6, v192\n v_lshl_add_u32 v192, v97, 4, v192\n v_bfe_u32 v98, v0, 4, 1\n v_lshl_add_u32 v192, v98, 3, v192")
    c(f"s_mul_i32 s83, s3, {2*IMG_T}\n s_add_u32 s83, s83, {IMG}\n v_add_u32 v192, s83, v192\n"
      f"v_lshlrev_b32 v193, 7, v97\n v_lshl_add_u32 v193, v93, 3, v193\n s_lshl_b32 s83, s3, 5\n s_add_u32 s83, s83, {HST}\n v_add_u32 v193, s83, v193")
    c(f"v_lshl_add_u32 v194, v93, 2, v92\n v_lshlrev_b32 v194, 4, v194\n v_add_u32 v99, {ACT}, v194\n v_mov_b32 v98, 256\n v_cmp_eq_u32 s[66:67], 1, v94\n v_cndmask_b32 v194, v194, v98, s[66:67]\n v_add_u32 v194, {IMG}, v194\n"
      f"v_lshlrev_b32 v195, 3, v0\n v_add_u32 v195, {HST}, v195")
    c(f"v_mov_b32 v98, {ZER}\n" + "\n".join(f"v_cmp_eq_u32 s[66:67], {e}, v94\n v_cndmask_b32 v{197+e}, v98, v99, s[66:67]" for e in range(4)))
    c("v_bfe_u32 v196, v0, 3, 1\n v_lshlrev_b32 v196, 6, v196\n v_lshl_add_u32 v196, v93, 4, v196\n v_and_b32 v98, 7, v0\n v_lshl_add_u32 v196, v98, 1, v196\n"
      f"s_lshl_b32 s83, s3, 7\n s_add_u32 s83, s83, {ACT}\n v_add_u32 v196, s83, v196\n v_mul_u32_u24 v203, 9216, v96\n v_lshl_add_u32 v203, v98, 4, v203")
    c("v_bfe_u32 v202, v0, 5, 1\n v_lshlrev_b32 v202, 6, v202\n v_lshl_add_u32 v202, v92, 4, v202\n v_bfe_u32 v98, v0, 4, 1\n v_lshl_add_u32 v202, v98, 3, v202\n"
      f"v_bfe_u32 v201, v0, 1, 1\n v_mul_u32_u24 v201, {IMG_T}, v201\n v_and_b32 v98, 1, v0\n v_lshl_add_u32 v201, v98, 7, v201")
    c(f"s_mul_i32 s83, s3, {2*IMG_T}\n s_add_u32 s83, s83, {IMG}\n v_add3_u32 v201, v201, v202, s83\n"
      f"s_lshr_b32 s83, s3, 1\n s_mul_i32 s83, s83, {IMG_T}\n s_and_b32 s75, s3, 1\n s_lshl_b32 s75, s75, 7\n s_add_u32 s83, s83, s75\n s_add_u32 s83, s83, {IMG + 16*IMG_T}\n v_add_u32 v202, s83, v202")
    c(f"v_lshlrev_b32 v204, 5, v92\n v_lshl_add_u32 v204, v93, 3, v204\n v_add_u32 v204, {8*9216}, v204\n v_add_u32 v205, {R1}, v4\n v_add_u32 v206, {R1}, v5\n"
      f"s_cmp_eq_u32 s7, 0\n s_cselect_b32 s75, s78, 0\n v_lshlrev_b32 v207, 7, v93\n v_add_u32 v207, {WS_SB}, v207")
    c(f"s_mul_i32 s62, s3, {9*9216}\n s_sub_u32 s83, s5, 17\n s_lshl_b32 s83, s83, 3\n s_add_u32 s83, s83, s4\n s_lshl_b32 s83, s83, 7\n s_add_u32 s62, s62, s83\n s_add_u32 s62, s62, {WS_C}\n"
      f"s_lshl_b32 s63, s3, 12\n s_add_u32 s63, s63, {WS_B}\n s_add_u32 s64, s63, 16384\n s_mov_b32 s65, {WS_B + 32768}\n s_lshl_b32 s61, s4, 7\n s_add_u32 s61, s61, {WS_SC}")
    c("s_mov_b64 s[16:17], s[28:29]\n s_lshl_b32 s73, s7, 7\n s_mul_i32 s83, s3, 73728\n s_add_u32 s73, s73, s83\n s_mov_b32 s58, s73\n s_lshl_b32 s83, s3, 10\n s_mov_b32 m0, s83")
    Wl = []
    w = Wl.append
    w(f"v_and_b32 v97, 15, v0\n v_and_b32 v172, 7, v0\n v_xor_b32 v172, v172, v93\n v_lshlrev_b32 v172, 4, v172\n v_lshl_add_u32 v172, v97, 8, v172")
    w(f"s_lshl_b32 s83, s3, 12\n s_add_u32 s83, s83, {OIM}\n v_add_u32 v172, s83, v172\n v_xor_b32 v173, 64, v172")
    w(f"v_xor_b32 v174, v97, v93\n v_lshlrev_b32 v174, 4, v174\n v_lshl_add_u32 v174, v93, 8, v174\n v_add_u32 v174, {OIM}, v174\n v_xor_b32 v175, 64, v174")
    w("v_lshlrev_b32 v176, 5, v92\n v_lshl_add_u32 v176, v93, 3, v176")
    w(f"v_lshlrev_b32 v177, 7, v0\n v_lshlrev_b32 v178, 4, v97\n v_add_u32 v178, {WTS}, v178\n s_lshl_b32 s83, s3, 2\n v_add_u32 v179, s83, v178\n v_mov_b32 v180, 0")
    w("s_lshr_b32 s83, s3, 1\n s_lshl_b32 s62, s7, 1\n s_add_u32 s62, s62, s83\n s_lshl_b32 s62, s62, 3\n s_add_u32 s62, s62, s4\n s_lshl_b32 s62, s62, 1")
    w(f"s_and_b32 s75, s3, 1\n s_add_u32 s62, s62, s75\n s_lshl_b32 s62, s62, 7\n s_add_u32 s62, s62, {WS_B}")
    w(f"s_lshl_b32 s63, s4, 2\n s_add_u32 s63, s63, s3\n s_lshl_b32 s63, s63, 12\n s_add_u32 s63, s63, {WS_A}")
    w(f"s_lshl_b32 s64, s4, 1\n s_add_u32 s64, s64, s83\n s_lshl_b32 s64, s64, 11\n s_lshl_b32 s75, s75, 2\n s_add_u32 s64, s64, s75\n s_add_u32 s64, s64, {WS_ST}")
    w(f"s_lshl_b32 s61, s4, 7\n s_add_u32 s61, s61, {WS_SB}")
    hooks = [(2, x) for x in C] + [(1, "\n".join(Wl[i:i+3])) for i in range(0, len(Wl), 3)]
    def late(n):
        if n == 18: a("s_mov_b64 s[16:17], s[32:33]\n s_mov_b32 s73, s58")
        a(f"buffer_load_dwordx4 v6, s[16:19], s73 offen {NT} lds")
        a("s_addk_i32 m0, 0x1000\n s_add_u32 s73, s73, 294912")
    k0 = nk
    while nk < 32:
        if RT and nk == max(TP0, k0): etouch(0)
        if RT and nk == TP1: etouch(1)
        if nk == k0 and NFF: a("s_and_b32 s82, s6, 1\n s_cselect_b64 vcc, 0, -1")
        if nk == k0 + NFF and NQF > NFF: a("s_cmp_eq_u32 s6, 0\n s_cselect_b64 vcc, -1, 0")
        free[0] = nk < k0 + max(NQF, NFF)
        kvload("k", nk); nk += 1
        for _ in range(-(-len(hooks) // (32 - nk + 1))):
            role, code = hooks.pop(0)
            lab = a.label("L_h")
            a(f"s_cmp_eq_u32 s6, {role}\n s_cbranch_scc0 {lab}"); a(code); a(f"{lab}:")
    free[0] = False
    for i in range(QPOLL): kvload("v", i)

    a("v_bfe_u32 v62, v0, 2, 1\n v_lshlrev_b32 v62, 9, v62\n v_lshl_add_u32 v62, v93, 7, v62\n v_lshl_add_u32 v62, v94, 4, v62")
    a(f"v_lshlrev_b32 v63, 7, v0\n v_mov_b32 v61, s43\n s_mul_i32 s56, s4, 9\n s_add_u32 s56, s56, 64\n s_lshl_b32 s57, s3, 4")
    a(f"s_cmp_eq_u32 s3, 0\n s_cselect_b32 s56, s56, s57\n s_movk_i32 s40, 0x1ff\n s_cselect_b32 s40, s40, 0xffff\n s_mov_b32 s41, 0\n s_lshl_b32 s56, s56, 7\n s_add_u32 s56, s56, {WS_FL - 16*128}")
    a("s_lshr_b32 s82, s77, 2\n s_lshl_b32 s82, s82, 14\n s_lshl_b32 s83, s76, 10\n s_add_u32 s82, s82, s83")
    def qpass():
        a("s_mov_b64 exec, s[40:41]\n buffer_load_dword v61, v63, s[20:23], s56 offen sc1\n s_mov_b64 exec, -1")
        a("buffer_load_dwordx4 v[52:55], v62, s[20:23], s82 offen sc1\n buffer_load_dwordx4 v[56:59], v62, s[20:23], s82 offen offset:64 sc1")
    stamp(2)
    qpass()
    nv = QPOLL
    for i in range(QL): kvload("v", nv); nv += 1
    a("v_and_b32 v97, 1, v0\n v_cmp_eq_u32 vcc, 1, v97\n v_mov_b32 v98, 0xffff\n v_mov_b32 v99, s78\n v_cndmask_b32 v98, v98, v99, vcc")
    a("v_bfe_u32 v97, v0, 3, 1\n v_bfe_u32 v99, v0, 1, 1\n v_lshl_or_b32 v97, v97, 1, v99")
    for d in range(4): a(f"v_cmp_eq_u32 vcc, {d}, v97\n v_cndmask_b32 v{12+d}, 0, v98, vcc")
    a("v_mov_b32 v7, 0xff800000\n s_mov_b32 s81, 0")
    a(f"s_waitcnt vmcnt({QL})\n s_branch L_qchk")
    a("L_qpoll:")
    qpass()
    a(f"s_add_u32 s81, s81, 1\n s_cmp_gt_u32 s81, {SPIN}\n s_waitcnt vmcnt(0)\n s_cbranch_scc1 L_qgo")
    a("L_qchk:")
    a("v_subrev_u32 v60, s54, v61\n v_lshrrev_b32 v60, 3, v60")
    for r in (53, 55, 57, 59): a(f"v_xor_b32 v{r}, s54, v{r}")
    a("v_or3_b32 v60, v60, v53, v55\n v_or3_b32 v60, v60, v57, v59\n v_cmp_ne_u32 vcc, 0, v60\n s_cbranch_vccnz L_qpoll")
    a("L_qgo:")
    a("v_cmp_ne_u32 vcc, s43, v61\n v_mov_b32 v8, v52\n v_mov_b32 v9, v54\n v_mov_b32 v10, v56\n v_mov_b32 v11, v58\n s_cmp_eq_u64 vcc, 0\n s_cselect_b32 s55, 1, 0")
    if diag: a("v_writelane_b32 v255, s81, 13")
    stamp(3)

    def qk(gi):
        for q in range(4):
            d = 52 + 16 * (gi & 1) + 4 * q; k = 16 * gi + 4 * q
            a(f"{MF} v[{d}:{d+3}], a[{k}:{k+3}], v[8:11], 0")
    qk(0)
    for gi in range(8):
        if gi < 7: qk(gi + 1)
        D = 52 + 16 * (gi & 1); T = 20 + 4 * gi
        for u in range(4):
            for q in range(4):
                if u == 0: a(f"v_mov_b32_dpp v{T+q}, v{D+4*q} quad_perm:[0,0,0,0] {DPP}")
                else:      a(f"v_add_f32_dpp v{T+q}, v{D+4*q+u}, v{T+q} quad_perm:[{u},{u},{u},{u}] {DPP}")
        a(f"v_max3_f32 v7, v{T}, v{T+1}, v7\n v_max3_f32 v7, v{T+2}, v{T+3}, v7")
        for rep in range(2):
            a(f"v_cvt_pk_bf16_f32 v97, v{T}, v{T+1}\n v_cvt_pk_bf16_f32 v98, v{T+2}, v{T+3}")
            a(f"v_lshlrev_b32 v{T}, 16, v97\n v_and_b32 v{T+1}, s78, v97\n v_lshlrev_b32 v{T+2}, 16, v98\n v_and_b32 v{T+3}, s78, v98")
            if rep == 0:
                for q in range(4): a(f"v_mul_f32 v{T+q}, s79, v{T+q}")
        kvload("v", nv); nv += 1
    xrow(7, 97, "v_max_f32")
    rnd(7); a("v_mul_f32 v7, s79, v7"); rnd(7)
    a("v_mul_f32 v52, s80, v7")
    for i in range(32): a(f"v_fma_f32 v{20+i}, v{20+i}, s80, -v52")
    kvload("v", nv); nv += 1
    for i in range(32):
        a(f"v_exp_f32 v{20+i}, v{20+i}")
        if i == 2: a("v_add_f32 v53, v20, v21")
        if i > 2:  a(f"v_add_f32 v53, v53, v{19+i}")
        if i == 15: kvload("v", nv); nv += 1
    a("v_add_f32 v53, v53, v51")
    kvload("v", nv); nv += 1
    xrow(53, 97, "v_add_f32")
    a(f"v_bfe_u32 v97, v0, 2, 1\n v_lshlrev_b32 v97, 5, v97\n s_lshl_b32 s82, s3, 3\n s_add_u32 s82, s82, {ST}\n v_add_u32 v97, s82, v97")
    a("s_mov_b64 exec, 0x11\n ds_write_b64 v97, v[52:53]\n s_mov_b64 exec, -1")
    stamp(4); flush()
    PB = {}
    def pbuild(i):
        if i in PB and PB[i][1]: return
        P = PB[i][0] if i in PB else 84 + 4 * (i & 1)
        a(f"v_cvt_pk_bf16_f32 v99, v{20+i}, v{20+i}")
        for d in range(4): a(f"v_and_b32 v{P+d}, v99, v{12+d}")
    def pv(i):
        P = PB[i][0] if i in PB else 84 + 4 * (i & 1)
        a(f"{MF} v[16:19], v[{P}:{P+3}], a[{128+4*i}:{131+4*i}], {'0' if i == 0 else 'v[16:19]'}")
    done = nv - LAG
    a(f"s_waitcnt vmcnt({LAG})")
    pbuild(0)
    for i in range(done):
        pbuild(i + 1); pv(i)
        if i % 5 == 4 and nv < 29: kvload("v", nv); nv += 1
    a("s_waitcnt lgkmcnt(0)\n s_barrier")
    a(f"v_and_b32 v97, 1, v93\n v_lshlrev_b32 v97, 5, v97\n v_add_u32 v98, s82, v97\n v_add_u32 v97, {ST}, v97")
    a("ds_read_b128 v[56:59], v97\n ds_read_b128 v[60:63], v97 offset:16\n ds_read_b32 v64, v98")
    kvload("v", nv); nv += 1
    a("s_waitcnt lgkmcnt(0)")
    a("v_max3_f32 v65, v56, v58, v60\n v_max_f32 v65, v65, v62")
    for r in (56, 58, 60, 62, 64): a(f"v_sub_f32 v{r}, v{r}, v65")
    for r in (56, 58, 60, 62, 64): a(f"v_exp_f32 v{r}, v{r}")
    a("v_mul_f32 v66, v56, v57\n v_fmac_f32 v66, v58, v59\n v_fmac_f32 v66, v60, v61\n v_fmac_f32 v66, v62, v63")
    a("v_rcp_f32 v67, v66\n v_log_f32 v66, v66")
    a("v_mul_f32 v7, v64, v67")
    a("v_add_f32 v66, v66, v65\n v_min_u32 v66, -2, v66")
    a("s_cmp_eq_u32 s3, 0\n s_cbranch_scc0 L_nolse")
    a(f"s_lshl_b32 s82, s4, 5\n s_add_u32 s82, s82, s5\n s_lshl_b32 s82, s82, 7\n s_add_u32 s82, s82, {WS_ST}")
    a("v_and_b32 v67, 15, v0\n v_lshlrev_b32 v67, 3, v67\n v_lshl_add_u32 v67, v93, 2, v67\n s_mov_b32 exec_hi, 0")
    near_store("buffer_store_dword v66, v67, s[20:23], s82 offen")
    a("s_mov_b32 exec_hi, -1")
    a("L_nolse:")
    if NM:
        a("s_cmp_eq_u32 s6, 2\n s_cbranch_scc0 L_md")
        for n in range(NM): late(n)
        a("L_md:")
    a(f"s_waitcnt vmcnt({LAG})"); pv(done); done += 1
    while done < nv - LAG:
        pbuild(done); pv(done); done += 1
    a(f"s_lshl_b32 s82, s76, 13\n s_lshl_b32 s83, s77, 8\n s_add_u32 s82, s82, s83\n s_add_u32 s57, s82, {WS_A}")
    a("v_and_b32 v97, 15, v0\n v_lshlrev_b32 v97, 4, v97\n v_lshl_add_u32 v97, v93, 12, v97")
    a(f"s_lshl_b32 s82, s3, 10\n s_add_u32 s82, s82, {CMB}\n v_add_u32 v98, s82, v2")
    todo = list(range(32 - LAG, 32))
    while nv < 32:
        kvload("v", nv); nv += 1
        k = -(-len(todo) // (32 - nv + 1))
        for i in todo[:k]:
            PB[i] = [212 + 4 * (31 - i), False]; pbuild(i); PB[i][1] = True
        todo = todo[k:]
        pbuild(done); a(f"s_waitcnt vmcnt({LAG})"); pv(done); done += 1
    if "c" in X:
        a("s_waitcnt vmcnt(0)"); stamp(5); flush(); dump(); a("s_endpgm")
    a("s_cmp_eq_u32 s6, 2\n s_cbranch_scc1 L_ft")
    def lsepass(): a("s_mov_b64 exec, 0xffff\n buffer_load_dword v180, v177, s[20:23], s64 offen sc1\n s_mov_b64 exec, -1")
    def ltouch():
        a(f"s_mul_i32 s82, s70, {7*9216}\n s_add_u32 s82, s82, s59\n s_add_u32 s82, s82, {N1U*9216}\n s_mov_b32 exec_hi, 0x7fffffff")
        a(f"buffer_load_dword v211, v6, s[32:35], s82 offen {PNT}\n s_mov_b32 exec_hi, -1")
    a("s_cmp_eq_u32 s6, 1\n s_cbranch_scc0 L_nw")
    lsepass()
    a("L_x1:")
    for i in range(done, 32):
        a(f"s_waitcnt vmcnt({32 - i})"); pv(i)
    a("s_nop 6\n s_branch L_comb")
    a("L_nw:")
    if LH == 2:
        ltouch(); a("s_branch L_x1")
    else:
        for i in range(done, 32):
            a(f"s_waitcnt vmcnt({31 - i})"); pv(i)
        a("s_nop 6\n s_branch L_comb")
    a("L_ft:")
    nl = NM
    for i in range(done, 32):
        if nl < 36 and nl - NM < NTF: late(nl); nl += 1
        a(f"s_waitcnt vmcnt({31 - i + nl - NM})"); pv(i)
    a("s_nop 7")
    a("L_comb:")
    stamp(5)
    for i in range(4): a(f"v_mul_f32 v{16+i}, v{16+i}, v7")
    a("ds_write_b128 v98, v[16:19]\n s_cmp_eq_u32 s3, 0\n s_waitcnt lgkmcnt(0)\n s_barrier\n s_cbranch_scc0 L_pubd")
    for w in range(1, 4): a(f"ds_read_b128 v[{52+4*w}:{55+4*w}], v98 offset:{1024*w}")
    for w in range(1, 4):
        a(f"s_waitcnt lgkmcnt({3 - w})")
        a(f"v_pk_add_f32 v[16:17], v[16:17], v[{52+4*w}:{53+4*w}]\n v_pk_add_f32 v[18:19], v[18:19], v[{54+4*w}:{55+4*w}]")
    a("v_cvt_pk_bf16_f32 v16, v16, v17\n v_cvt_pk_bf16_f32 v17, v18, v19\n v_min_u32 v16, -2, v16\n v_min_u32 v17, -2, v17")
    a("v_permlane32_swap_b32 v16, v18\n v_permlane32_swap_b32 v17, v19\n s_mov_b32 exec_hi, 0")
    near_store("buffer_store_dwordx4 v[16:19], v97, s[20:23], s57 offen")
    a("s_mov_b32 exec_hi, -1")
    a("L_pubd:")
    stamp(6)
    base_pend = list(pend)
    a("s_mov_b32 s81, 0\n s_cmp_eq_u32 s6, 2\n s_cbranch_scc1 L_F\n s_cmp_eq_u32 s6, 1\n s_cbranch_scc0 L_R")

    def apass():
        for i in range(4): a(f"buffer_load_dwordx4 v[{20+4*i}:{23+4*i}], v2, s[20:23], s63 offen offset:{1024*i} sc1")
    apass()
    a("s_waitcnt vmcnt(5)\n s_cmp_eq_u32 s3, 0\n s_cbranch_scc1 L_tab1\n s_waitcnt vmcnt(4)\n s_branch L_tab1")
    a("L_tab:")
    lsepass(); a("s_waitcnt vmcnt(0)")
    a("L_tab1:")
    spin_end(180, "L_tab")
    a(f"v_max_f32_dpp v181, v180, v180 quad_perm:[1,0,3,2] {DPP}\n v_max_f32_dpp v181, v181, v181 quad_perm:[2,3,0,1] {DPP}")
    a("v_sub_f32 v180, v180, v181\n v_exp_f32 v180, v180")
    a(f"v_add_f32_dpp v181, v180, v180 quad_perm:[1,0,3,2] {DPP}\n v_add_f32_dpp v181, v181, v181 quad_perm:[2,3,0,1] {DPP}")
    a("v_rcp_f32 v181, v181\n v_mul_f32 v180, v180, v181\n s_mov_b64 exec, 0xffff\n ds_write_b32 v179, v180\n s_mov_b64 exec, -1")
    a("v_mov_b32 v97, s54\n v_lshlrev_b32 v98, 2, v0\n s_add_u32 s82, s3, s7")
    a("s_branch L_wchk")
    a("L_wa:")
    a("s_mov_b64 exec, vcc"); apass(); a("s_mov_b64 exec, -1")
    a("L_wchk:")
    for i in range(4):
        a(f"s_waitcnt vmcnt({3 - i})\n ds_write_b128 v{172 + (i & 1)}, v[{20+4*i}:{23+4*i}] offset:{128 * (i >> 1)}")
        chk4(99, 20 + 4*i, i == 0)
    a("s_waitcnt lgkmcnt(0)")
    spin_end(99, "L_wa")
    stamp(7)
    if diag: a("s_waitcnt lgkmcnt(0)")
    a("s_cmp_eq_u32 s82, 0\n s_barrier")
    if SIGB:
        a("s_cbranch_scc0 L_wns\n s_mov_b32 exec_hi, 0\n buffer_store_dword v97, v98, s[20:23], s61 offen sc1\n s_mov_b32 exec_hi, -1")
        a("L_wns:")
    for tt in range(16):
        a(f"ds_read_b128 v[{188+4*tt}:{191+4*tt}], v{174 + (tt & 1)} offset:{1024*tt}")
        if tt == 7: a("ds_read_b128 v[20:23], v178")
    def wfma(hh, i):
        a(f"v_mul_f32 v{52+i}, v{36+i}, v20" if hh == 0 else f"v_fmac_f32 v{52+i}, v{36+4*hh+i}, v{20+hh}")
    for tt in range(16):
        hh, t = tt >> 2, tt & 3
        a(f"s_waitcnt lgkmcnt({min(15, 15 - tt + (tt < 8))})")
        a(f"{MF} v[{36+4*hh}:{39+4*hh}], v[{100+4*tt}:{103+4*tt}], v[{188+4*tt}:{191+4*tt}], {'0' if t == 0 else f'v[{36+4*hh}:{39+4*hh}]'}")
        if hh >= 2: wfma(hh - 2, t)
    a("s_mov_b32 s82, 0x11111111\n s_mov_b32 s83, 0x11111111")
    for hh in (2, 3):
        for i in range(4): wfma(hh, i)
    for ctl in ("quad_perm:[1,0,3,2]", "quad_perm:[2,3,0,1]"):
        for i in range(4): a(f"v_add_f32_dpp v{52+i}, v{52+i}, v{52+i} {ctl} {DPP}")
    a("v_cvt_pk_bf16_f32 v52, v52, v53\n v_cvt_pk_bf16_f32 v53, v54, v55\n v_min_u32 v52, -2, v52\n v_min_u32 v53, -2, v53")
    a("s_mov_b64 exec, s[82:83]")
    a("buffer_store_dwordx2 v[52:53], v176, s[20:23], s62 offen sc1")
    stamp(8); flush(); dump()
    a("s_endpgm")

    pend[:] = base_pend
    a("L_R:")
    if LH == 1:
        a("s_barrier")
        if LH2:
            NG = (392 - N1U) // 7
            assert NG * 7 == 392 - N1U
            a(f"s_cmp_lt_u32 s70, {NG}\n s_cselect_b64 s[16:17], s[28:29], s[32:33]\n s_cselect_b32 s82, s18, 0\n s_mul_i32 s83, s70, {7*9216}\n s_add_u32 s82, s82, s83\n s_add_u32 s82, s82, s59\n s_sub_u32 s82, s82, {NG*7*9216}")
            a(f"s_mov_b32 exec_hi, 0x7fffffff\n buffer_load_dword v210, v6, s[16:19], s82 offen {PNT}\n s_mov_b32 exec_hi, -1")
        ltouch()
    a("s_cmp_eq_u32 s3, 0\n s_cbranch_scc0 L_fin")
    a("v_and_b32 v97, 1, v0\n v_cmp_eq_u32 vcc, 1, v97\n v_mov_b32 v98, 0x3f80\n v_mov_b32 v99, 0x3f800000\n v_cndmask_b32 v98, v98, v99, vcc\n v_bfe_u32 v97, v0, 1, 3")
    for d in range(4): a(f"v_cmp_eq_u32 vcc, {d}, v97\n v_cndmask_b32 v{8+d}, 0, v98, vcc")
    a("s_cmp_eq_u32 s6, 0\n s_cbranch_scc1 L_r8\n s_cmp_lt_u32 s7, 32\n s_cbranch_scc0 L_fin")
    a("v_bfe_u32 v28, v0, 2, 1\n v_mul_u32_u24 v28, 1152, v28\n v_lshl_add_u32 v28, v94, 5, v28\n v_lshl_add_u32 v28, v93, 9, v28")
    a("s_lshr_b32 s82, s4, 1\n s_and_b32 s83, s4, 1\n s_sub_u32 s59, s5, 26")
    a("s_mul_i32 s7, s82, 9\n s_add_u32 s7, s7, s83\n s_lshl_b32 s58, s59, 1\n s_add_u32 s7, s7, s58")
    a("s_mul_i32 s58, s83, 2304\n s_lshl_b32 s82, s82, 7\n s_add_u32 s58, s58, s82\n s_lshl_b32 s59, s59, 3\n s_add_u32 s58, s58, s59\n s_branch L_r9")
    a("L_r8:")
    a("s_cmp_lt_u32 s7, 4\n s_cbranch_scc0 L_fin")
    a("v_bfe_u32 v28, v0, 1, 2\n v_mul_u32_u24 v28, 1152, v28\n v_and_b32 v98, 1, v0\n v_lshl_add_u32 v28, v98, 4, v28\n v_lshl_add_u32 v28, v93, 3, v28")
    a("s_lshl_b32 s58, s7, 5\n s_add_u32 s58, s58, 1024\n s_mul_i32 s7, s7, 9\n s_add_u32 s7, s7, 8")
    a("L_r9:")
    a(f"s_mul_i32 s82, s7, 9216\n s_add_u32 s82, s82, {WS_C}\n s_add_u32 s83, s82, 4096\n s_add_u32 s59, s82, 8192")
    if SIGC:
        a(f"v_lshlrev_b32 v29, 7, v0\n s_mov_b32 s61, {WS_SC}\n s_mov_b32 s60, 0\n s_mov_b64 exec, 0xff")
        a("L_rs:")
        a(f"buffer_load_dword v30, v29, s[20:23], s61 offen sc1\n s_add_u32 s60, s60, 1\n s_cmp_gt_u32 s60, {SPIN}\n s_cbranch_scc1 L_rs1")
        a("s_waitcnt vmcnt(0)\n v_cmp_ne_u32 vcc, s54, v30\n s_cbranch_vccnz L_rs")
        a("L_rs1:")
        stamp(12)
    a("s_mov_b64 vcc, -1")
    a("L_ra:")
    a("s_mov_b64 exec, vcc")
    for i in range(9): a(f"buffer_load_dwordx4 v[{172+4*i}:{175+4*i}], v2, s[20:23], {('s82','s83','s59')[i>>2]} offen offset:{1024*(i&3)} sc1")
    a("s_mov_b64 exec, -1")
    for i in range(9):
        a(f"s_waitcnt vmcnt({8 - i})")
        a(f"{MF} v[52:55], v[8:11], v[{172+4*i}:{175+4*i}], {'0' if i == 0 else 'v[52:55]'}")
        chk4(99, 172 + 4*i, i == 0)
    a("s_nop 3")
    spin_end(99, "L_ra")
    stamp(7)
    for i in range(4): a(f"v_add_f32_dpp v{52+i}, v{52+i}, v{52+i} row_ror:8 {DPP}")
    a("v_cvt_pk_bf16_f32 v52, v52, v53\n v_cvt_pk_bf16_f32 v53, v54, v55")
    a("s_mov_b64 exec, 0x00ff00ff\n buffer_store_dwordx2 v[52:53], v28, s[36:39], s58 offen")
    a(f"s_cmp_eq_u32 s7, 0\n s_cbranch_scc0 L_rend\n s_mov_b32 exec_lo, -1\n v_mov_b32 v54, s54\n v_lshlrev_b32 v55, 2, v0\n s_mov_b32 s82, {WS_EP}\n buffer_store_dword v54, v55, s[20:23], s82 offen sc1")
    a("L_rend:")
    if probe >= 0:
        if probe == 99: a("s_memrealtime s[86:87]")
        a("s_memrealtime s[88:89]\n s_waitcnt lgkmcnt(0)\n s_sub_u32 s86, s86, s84")
        a("L_probe:")
        a("s_memrealtime s[90:91]\n s_waitcnt lgkmcnt(0)\n s_sub_u32 s90, s90, s88\n s_cmp_lt_u32 s90, s86\n s_cbranch_scc1 L_probe")
    stamp(8); flush(); dump()
    a("s_endpgm")
    pend[:] = base_pend
    a("L_fin:")
    flush(); dump()
    a("s_endpgm")
    pend[:] = base_pend
    if AL: a(".p2align 12")
    a("L_F:")
    if nl < 36:
        a("s_barrier")
        for n in range(nl, 36): late(n)
    def sigld(): a("buffer_load_dword v88, v207, s[20:23], 0 offen sc1\n buffer_load_dword v89, v207, s[20:23], 0 offen offset:512 sc1")
    if SIGB: sigld()
    def frag(n): trread(("a", 4*n), 4, 5, n) if n < 18 else trread(("a", 4*n), 205, 206, n - 18)
    for n in range(NM): frag(n)
    for i in range(16): a(f"v_mov_b32 v{52+i}, 0")
    rest = list(range(NM, 36))
    if len(rest) > 12:
        a(f"s_waitcnt vmcnt({11 if SIGB else 9})\n s_barrier")
        for n in rest[:-9]: frag(n)
        rest = rest[-9:]
    if not SIGB:
        a("s_waitcnt vmcnt(0)\n s_barrier")
        for n in rest: frag(n)
        stamp(7)
    BL = {0: 20, 1: 36, 2: 52}
    def bloads(ps):
        lab = a.label("L_fb")
        a(f"s_cmp_eq_u32 s3, 0\n s_cbranch_scc0 {lab}")
        for p in ps: a(f"buffer_load_dwordx4 v[{52+4*p}:{55+4*p}], v2, s[20:23], s65 offen offset:{1024*p} sc1")
        a(f"{lab}:")
        for blk, so in ((0, "s63"), (1, "s64")):
            for p in ps: a(f"buffer_load_dwordx4 v[{BL[blk]+4*p}:{BL[blk]+3+4*p}], v2, s[20:23], {so} offen offset:{1024*p} sc1")
    if SIGB:
        def sigstep():
            l1, l2 = a.label("L_fs"), a.label("L_fs")
            a("v_cmp_eq_u32 s[48:49], s54, v88\n v_cmp_eq_u32 s[50:51], s54, v89")
            a(f"s_andn2_b64 exec, s[48:49], s[44:45]\n s_cbranch_execz {l1}")
            bloads((0, 2))
            a(f"{l1}:\n s_andn2_b64 exec, s[50:51], s[46:47]\n s_cbranch_execz {l2}")
            bloads((1, 3))
            a(f"{l2}:\n s_mov_b64 exec, -1\n s_mov_b64 s[44:45], s[48:49]\n s_mov_b64 s[46:47], s[50:51]")
        a("s_mov_b64 s[44:45], 0\n s_mov_b64 s[46:47], 0\n s_mov_b32 s60, 0\n s_waitcnt vmcnt(0)")
        sigstep()
        a("s_barrier")
        stamp(7)
        for n in rest: frag(n)
        a("s_branch L_fst")
        a("L_fs:")
        sigld()
        a(f"s_add_u32 s60, s60, 1\n s_cmp_gt_u32 s60, {SPIN}\n s_cbranch_scc1 L_fall\n s_waitcnt vmcnt(0)")
        sigstep()
        a("L_fst:")
        a("s_and_b64 s[48:49], s[48:49], s[50:51]\n s_cmp_eq_u64 s[48:49], -1\n s_cbranch_scc0 L_fs")
        stamp(12)
        a("s_waitcnt vmcnt(0)\n s_branch L_fchk")
    a("L_fall:")
    a("s_mov_b64 vcc, -1")
    a("L_fa:")
    a("s_mov_b64 exec, vcc"); bloads((0, 1, 2, 3)); a("s_mov_b64 exec, -1")
    a("L_fchk:")
    HD = 68
    k = 0
    for blk in (2, 0, 1):
        for p in range(4):
            r = BL[blk] + 4 * p; d = HD + 4 * blk
            a(f"s_waitcnt vmcnt({11 - k})")
            a(f"{MF} v[{d}:{d+3}], v[{184+4*(p>>1)}:{187+4*(p>>1)}], v[{r}:{r+3}], " + (f"v[{172+4*blk}:{175+4*blk}]" if p == 0 else f"v[{d}:{d+3}]"))
            chk4(99, r, k == 0); k += 1
    for blk in (2, 0):
        d = HD + 4 * blk
        a(f"v_cvt_pk_bf16_f32 v{80+2*blk}, v{d}, v{d+1}\n v_cvt_pk_bf16_f32 v{81+2*blk}, v{d+2}, v{d+3}")
    spin_end(99, "L_fa")
    stamp(8)
    a("ds_write_b64 v192, v[80:81]")
    a(f"v_cvt_pk_bf16_f32 v82, v{HD+4}, v{HD+5}\n v_cvt_pk_bf16_f32 v83, v{HD+6}, v{HD+7}")
    a(f"s_cmp_eq_u32 s3, 0\n ds_write_b64 v192, v[82:83] offset:{8*IMG_T}\n s_cbranch_scc0 L_fw8\n ds_write_b64 v192, v[84:85] offset:{16*IMG_T}")
    a("L_fw8:")
    a("s_waitcnt lgkmcnt(0)\n s_barrier")
    hreg = lambda t: 20 + 4 * t if t < 12 else 208 + 4 * (t - 12)
    def hread(t): a(f"ds_read_b128 v[{hreg(t)}:{hreg(t)+3}], v194 offset:{t*IMG_T}")
    for t in range(12): hread(t)
    a(f"v_add_f32 v86, v{HD}, v{HD+1}\n v_mul_f32 v87, v{HD}, v{HD}")
    st1 = []
    for i in range(1, 12):
        st1.append(([f"v_add_f32 v86, v86, v{HD+i}"] if i >= 2 else []) + [f"v_fmac_f32 v87, v{HD+i}, v{HD+i}"])
    for s in st1[:7]:
        for x in s: a(x)
    dp = lambda ctl: [f"v_add_f32_dpp v{r}, v{r}, v{r} {ctl} {DPP}" for r in (86, 87)]
    side = {0: st1[7] + st1[8], 1: st1[9] + st1[10], 2: dp("quad_perm:[1,0,3,2]"), 3: dp("row_ror:8")}
    side[4] = ["v_mov_b32 v97, s54", "v_lshlrev_b32 v98, 2, v0", "s_sub_u32 s82, s5, 17", "s_add_u32 s82, s82, s3"]
    side[5] = ["ds_write_b64 v193, v[86:87]"] + [f"ds_read_b64 v[{80+2*k}:{81+2*k}], v201 offset:{8*IMG_T*k}" for k in range(2)] + ["ds_read_b64 v[84:85], v202"]
    side[8] = ["s_waitcnt lgkmcnt(0)", "s_barrier", "ds_read_b64 v[86:87], v195"]
    side[9] = [f"v_lshlrev_b32 v{HD+2*i}, 16, v{80+i}" for i in range(3)]
    side[10] = [f"v_lshlrev_b32 v{HD+2*i}, 16, v{80+i}" for i in range(3, 6)]
    side[11] = [f"v_and_b32 v{HD+1+2*i}, s75, v{80+i}" for i in range(3)]
    side[12] = ["s_waitcnt lgkmcnt(0)"] + dp("quad_perm:[1,0,3,2]") + [f"v_and_b32 v{HD+7}, s75, v83"]
    side[13] = dp("quad_perm:[2,3,0,1]") + [f"v_and_b32 v{HD+9}, s75, v84"]
    side[14] = dp("row_half_mirror") + [f"v_and_b32 v{HD+11}, s75, v85"]
    side[15] = dp("row_mirror")
    side[16] = [f"v_mul_f32 v86, {f2u(1/576):#x}, v86", f"v_mul_f32 v87, {f2u(1/576):#x}, v87", "v_fma_f32 v87, -v86, v86, v87"]
    side[17] = [f"v_add_f32 v87, {f2u(1e-5):#x}, v87", "v_rsq_f32 v87, v87"] + [f"v_and_b32 v{HD+2*i}, s75, v{HD+2*i}" for i in range(6)]
    def csig():
        a("s_cmp_eq_u32 s82, 0\n s_cbranch_scc0 L_fns\n s_mov_b32 exec_hi, 0\n buffer_store_dword v97, v98, s[20:23], s61 offen sc1\n s_mov_b32 exec_hi, -1")
        a("L_fns:")
    for t in range(18):
        h = hreg(t)
        if t <= 5:   a("s_waitcnt lgkmcnt(11)")
        elif t <= 8: a(f"s_waitcnt lgkmcnt({17 - t + 4})")
        a(f"{MF} v[8:11], v[{h}:{h+3}], a[{4*t}:{4*t+3}], {'0' if t == 0 else 'v[8:11]'}")
        a(f"{MF} v[12:15], v[{h}:{h+3}], a[{72+4*t}:{75+4*t}], {'0' if t == 0 else 'v[12:15]'}")
        if t + 12 < 18: hread(t + 12)
        for s in side.get(t, []): a(s)
        if SIGC and t == CPOS: csig()
    c1 = -2 * 0.7978845608028654 * 1.4426950408889634
    a("v_fma_f32 v8, -v86, v9, v8\n v_fma_f32 v12, -v86, v13, v12\n v_mul_f32 v8, v8, v87")
    a(f"v_mov_b32 v10, {f2u(c1):#x}\n v_mul_f32 v9, v8, v8\n v_mul_f32 v12, v12, v87\n v_fmamk_f32 v9, v9, {f2u(c1 * 0.044715):#x}, v10\n v_mul_f32 v9, v9, v8")
    a("v_exp_f32 v9, v9\n v_mul_f32 v8, v8, v12\n v_add_f32 v9, 1.0, v9\n v_rcp_f32 v9, v9\n v_mul_f32 v8, v8, v9")
    a("v_cvt_pk_bf16_f32 v8, v8, v8\n ds_write_b16 v196, v8")
    if SIGC and CPOS == 18: csig()
    a("s_waitcnt lgkmcnt(0)\n s_barrier")
    stamp(9)
    for e in range(4):
        for t in range(2): a(f"ds_read_b128 v[{20+8*e+4*t}:{23+8*e+4*t}], v{197+e} offset:{256*t}")
    if SIGC and CPOS == 19: csig()
    if diag: a("s_waitcnt lgkmcnt(0)")
    for e in range(4):
        for t in range(2):
            if not diag: a(f"s_waitcnt lgkmcnt({7 - 2*e - t})")
            for acc in range(3):
                if acc == 2 and e > 0: continue
                w = 100 + 4 * (8 * acc + 2 * e + t)
                a(f"{MF} v[{HD+4*acc}:{HD+3+4*acc}], v[{w}:{w+3}], v[{20+8*e+4*t}:{23+8*e+4*t}], v[{HD+4*acc}:{HD+3+4*acc}]")
        if e == 2:
            a(f"v_cvt_pk_bf16_f32 v84, v{HD+8}, v{HD+9}\n v_cvt_pk_bf16_f32 v85, v{HD+10}, v{HD+11}\n v_min_u32 v84, -2, v84\n v_min_u32 v85, -2, v85")
    a("s_mov_b32 exec_lo, 0x11111111\n s_mov_b32 exec_hi, 0x11111111")
    a("buffer_store_dwordx2 v[84:85], v204, s[20:23], s62 offen sc1\n s_mov_b64 exec, -1")
    for i in range(4): a(f"v_cvt_pk_bf16_f32 v{80+i}, v{HD+2*i}, v{HD+1+2*i}")
    for i in range(4): a(f"v_min_u32 v{80+i}, -2, v{80+i}")
    a("buffer_store_dwordx4 v[80:83], v203, s[20:23], s62 offen sc1")
    stamp(10); flush(); dump()
    a("s_endpgm")

    a("L_end:")
    body = a.finish().replace("CODE_REST", "L_end-L_pc")
    return f"""{HEADER}; @launch grid=(256,1,1) block=(256,1,1) lds={LDS_BYTES}
.amdgcn_target "amdgcn-amd-amdhsa--gfx950"
.text
.globl {KN}
.p2align 8
.type {KN},@function
{KN}:
{body}
    s_endpgm
.section .rodata,"a"
.p2align 6
.amdhsa_kernel {KN}
  .amdhsa_next_free_vgpr 512
  .amdhsa_next_free_sgpr 102
  .amdhsa_accum_offset 256
  .amdhsa_group_segment_fixed_size 0
  .amdhsa_kernarg_size 96
  .amdhsa_user_sgpr_count 2
  .amdhsa_user_sgpr_kernarg_segment_ptr 1
  .amdhsa_system_sgpr_workgroup_id_x 1
.end_amdhsa_kernel
"""

if __name__ == "__main__":
    out = sys.argv[1]
    kw = {}
    for x in sys.argv[2:]:
        k, v = x.split("=")
        kw[k] = int(v) if v.lstrip("-").isdigit() else v
    open(out, "w").write(gen(**kw))
```

```python
import sys, struct
from asmlib import Asm

KN = "sequential_preLN__sliding_block_cached__geglu_ffn__decode_kernel"
HEADER = open("sequential_preLN__sliding_block_cached__geglu_ffn__decode.s.ref").read().split("; Override launch")[0]

def f2u(x): return struct.unpack("<I", struct.pack("<f", x))[0]

WS_Q   = 0x0
WS_EP  = 0x10000
WS_FL  = 0x10400
WS_SB  = 0x14000
WS_SC  = 0x14400
WS_ST  = 0x15000
WS_A   = WS_ST + 32768
WS_B   = WS_A + 131072
WS_C   = WS_B + 36864
WS_END = WS_C + 331776
WS_DIAG = 0x100000
R0, R1 = 0, 73728
IMG = 147456; IMG_T = 272
CMB = 152576
ST  = 156672
HST = 156800
ACT = 157440
ZER = ACT + 512
XIM = ZER + 512
LDS_BYTES = XIM + 5120
OIM = R1
WTS = HST
SPIN = 1 << 18
DPP = "row_mask:0xf bank_mask:0xf"
MF = "v_mfma_f32_16x16x32_bf16"

def gen(diag=False, probe=-1, NT="nt", PNT="none", KF=2, NK1=7, QPOLL=0, QL=7, LAG=9, STEP=9,
        WIN=6, WINV=0, FUN=0, NQF=14, NFF=14, LNP=5, RD=1, PFC=1,
        RT=0, QTCH=1, TP0=14, TP1=22, NM=0, LH=1, N1U=189,
        LOC=1, SIGB=1, SIGC=1, CPOS=16, NTF=4, AL=1, LH2=1, KG=4, NTH=6, WINL=6, WINF=0, FE=0, FV=0, X=""):
    a = Asm()
    pend = []
    NT, PNT = [("" if x == "none" else x) for x in (NT, PNT)]
    def stamp(i):
        if probe >= 0:
            if i == 0: a("s_memrealtime s[84:85]")
            if i == probe: a("s_memrealtime s[86:87]")
        if not diag: return
        p = 84 + 2 * (len(pend))
        assert p <= 100
        a(f"s_memrealtime s[{p}:{p+1}]"); pend.append((i, p))
    def flush():
        if not diag: return
        a("s_waitcnt lgkmcnt(0)")
        for i, p in pend: a(f"v_writelane_b32 v255, s{p}, {i}")
        pend.clear()
    def dump():
        if not diag: return
        a("s_mov_b64 exec, -1\n v_writelane_b32 v255, s81, 14")
        a("s_lshl_b32 s74, s2, 2\n s_add_u32 s74, s74, s3\n s_lshl_b32 s74, s74, 8")
        a(f"s_add_u32 s74, s74, {WS_DIAG}")
        a("v_lshlrev_b32 v254, 2, v0")
        a("s_mov_b32 s22, 0x200000")
        a("buffer_store_dword v255, v254, s[20:23], s74 offen")
    def srd(d, p, n):
        a(f"s_mov_b64 s[{d}:{d+1}], s[{p}:{p+1}]\n s_mov_b32 s{d+2}, {n}\n s_mov_b32 s{d+3}, 0x20000")
    def rowred(regs, op):
        for ctl in ("quad_perm:[1,0,3,2]", "quad_perm:[2,3,0,1]", "row_half_mirror", "row_mirror"):
            for r in regs: a(f"{op}_dpp v{r}, v{r}, v{r} {ctl} {DPP}")
    def xrow(r, t, op):
        for sw in ("v_permlane16_swap_b32", "v_permlane32_swap_b32"):
            a(f"v_mov_b32 v{t}, v{r}\n {sw} v{r}, v{t}\n {op} v{r}, v{r}, v{t}")
    def rnd(r):
        a(f"v_cvt_pk_bf16_f32 v{r}, v{r}, v{r}\n v_and_b32 v{r}, s78, v{r}")
    def chk4(acc, r, first):
        if first: a(f"v_max3_u32 v{acc}, v{r}, v{r+1}, v{r+2}\n v_max_u32 v{acc}, v{r+3}, v{acc}")
        else:     a(f"v_max3_u32 v{acc}, v{r}, v{r+1}, v{acc}\n v_max3_u32 v{acc}, v{r+2}, v{r+3}, v{acc}")
    def spin_end(acc, again):
        lab = a.label("L_ok")
        a(f"v_cmp_eq_u32 vcc, -1, v{acc}\n s_cbranch_vccz {lab}")
        a(f"s_add_u32 s81, s81, 1\n s_cmp_lt_u32 s81, {SPIN}\n s_cbranch_scc1 {again}")
        a(f"{lab}:")
    def line_store(val, so):
        a(f"v_mov_b32 v97, {val}\n v_lshlrev_b32 v98, 2, v0\n s_mov_b32 exec_hi, 0\n buffer_store_dword v97, v98, s[20:23], {so} offen sc1\n s_mov_b32 exec_hi, -1")
    def near_store(text):
        if not LOC: a(text + " sc1"); return
        l1, l2 = a.label("L_far"), a.label("L_st")
        a(f"s_cmp_eq_u32 s55, 1\n s_cbranch_scc0 {l1}\n {text}\n s_branch {l2}\n{l1}:\n {text} sc1\n{l2}:")
    free = [False]
    def kvload(kind, i):
        w = WIN if (kind == "k" and i >= KF or kind == "v" and i < QPOLL + QL) else (WINV if kind == "v" else 0)
        if w and free[0]:
            lab = a.label("L_t")
            a(f"s_cbranch_vccnz {lab}\n s_waitcnt vmcnt({w-1})\n{lab}:")
        elif w: a(f"s_waitcnt vmcnt({w-1})")
        if kind == "k": a(f"buffer_load_dwordx4 a[{4*i}:{4*i+3}], v1, s[8:11], s68 offen {NT}")
        else:           a(f"buffer_load_dwordx4 a[{128+4*i}:{131+4*i}], v2, s[12:15], s68 offen {NT}")
        a(f"s_addk_i32 s68, {STEP*1024}\n s_and_b32 s68, s68, s69")

    a("s_cmp_ge_u32 s2, 256\n s_cbranch_scc1 L_end")
    a("s_load_dwordx16 s[44:59], s[0:1], 0\n s_load_dwordx8 s[60:67], s[0:1], 64")
    if diag:
        for r in range(86, 102, 2): a(f"s_mov_b64 s[{r}:{r+1}], 0")
    stamp(0)
    a("v_lshrrev_b32 v1, 6, v0\n s_and_b32 s4, s2, 7\n s_lshr_b32 s5, s2, 3\n v_readfirstlane_b32 s3, v1")
    if PFC:
        a("s_cmp_eq_u32 s5, 31\n s_cbranch_scc0 L_nopfc")
        a("s_getpc_b64 s[82:83]")
        a("L_pc:")
        a("v_lshlrev_b32 v97, 7, v0\n v_cmp_gt_u32 vcc, CODE_REST, v97\n s_and_saveexec_b64 s[70:71], vcc\n s_cbranch_execz L_pc2\n global_load_dword v206, v97, s[82:83]")
        a("L_pc2:\n s_mov_b64 exec, -1")
        a("L_nopfc:")
    a("v_and_b32 v0, 63, v0")
    if diag: a("v_mov_b32 v255, 0")
    a("s_lshr_b32 s76, s5, 4\n s_lshl_b32 s74, s4, 1\n s_add_u32 s76, s76, s74")
    a("s_and_b32 s77, s5, 15")
    a("s_movk_i32 s69, 0x7fff")
    a("s_lshl_b32 s68, s2, 2\n s_add_u32 s68, s68, s3\n s_mul_i32 s68, s68, 0x9E3779B1\n s_lshr_b32 s68, s68, 27\n s_lshl_b32 s68, s68, 10")
    a("v_bfe_u32 v92, v0, 2, 2\n v_lshrrev_b32 v93, 4, v0\n v_and_b32 v94, 3, v0")
    a("v_lshlrev_b32 v1, 8, v92\n v_lshl_add_u32 v1, v93, 6, v1\n v_lshl_add_u32 v1, v94, 4, v1")
    a("v_lshrrev_b32 v96, 3, v0\n v_and_b32 v95, 7, v0\n v_lshlrev_b32 v97, 7, v95\n v_lshl_add_u32 v97, v96, 13, v97")
    a("s_lshr_b32 s82, s77, 2\n s_lshl_b32 s82, s82, 4\n s_add_u32 s82, s82, s76\n s_lshl_b32 s82, s82, 21")
    a(f"s_and_b32 s83, s77, 3\n s_lshl_b32 s83, s83, 2\n s_add_u32 s83, s83, s3\n s_lshl_b32 s83, s83, 15\n s_add_u32 s82, s82, s83\n s_add_u32 s82, s82, {6144*256}")
    a("s_mov_b32 s10, 32768\n s_mov_b32 s11, 0x20000\n s_mov_b32 s18, 4718592\n s_mov_b32 s19, 0x20000")
    a("s_sub_u32 s70, s5, 18\n s_cmp_lt_u32 s5, 8\n s_cselect_b32 s70, s5, s70\n s_lshl_b32 s70, s70, 2\n s_add_u32 s70, s70, s3")
    a("s_add_u32 s73, s70, 16\n s_lshl_b32 s73, s73, 16\n s_lshl_b32 s74, s4, 10\n s_add_u32 s73, s73, s74")
    a("v_lshlrev_b32 v2, 4, v0")
    a("v_mov_b32 v188, -1\n v_mov_b32 v189, -1\n v_mov_b32 v190, -1\n v_mov_b32 v191, -1")
    a("s_sub_u32 s7, s5, 26\n s_lshl_b32 s7, s7, 3\n s_add_u32 s7, s7, s4")
    a(f"s_lshl_b32 s75, s7, 2\n s_add_u32 s75, s75, s3\n s_mul_i32 s75, s75, 3072\n s_add_u32 s75, s75, {WS_ST}")
    a(f"s_mov_b32 s22, {WS_END}\n s_mov_b32 s23, 0x20000")
    a("s_sub_u32 s74, s5, 8\n s_cmp_lt_u32 s74, 18")
    a("s_waitcnt lgkmcnt(0)")
    a(f"s_load_dword s54, s[66:67], {WS_EP}")
    a("s_mov_b64 s[16:17], s[50:51]\n s_mov_b64 s[20:21], s[66:67]\n s_cbranch_scc1 L_notq")
    a(f"buffer_load_dword v207, v97, s[16:19], s73 offen {PNT}")
    a("s_cmp_lt_u32 s5, 8\n s_cbranch_scc1 L_notq")
    for i in range(3): a(f"buffer_store_dwordx4 v[188:191], v2, s[20:23], s75 offen offset:{1024*i} sc1")
    if RD:
        a("s_sub_u32 s73, s70, 32\n s_mul_i32 s73, s73, 12\n v_lshrrev_b32 v97, 2, v0\n v_add_u32 v97, s73, v97\n v_and_b32 v98, 0x1e0, v97\n v_add_u32 v97, v97, v98\n v_mul_u32_u24 v97, 1152, v97\n v_lshl_add_u32 v97, v94, 7, v97")
        a(f"s_mul_i32 s73, s4, {9*73728}\n s_add_u32 s73, s73, {32*1152 + 5*128}\n s_mov_b64 s[16:17], s[60:61]\n s_mov_b32 s18, 5308416")
        a(f"s_mov_b32 exec_hi, 0xffff\n buffer_load_dword v208, v97, s[16:19], s73 offen {PNT}\n s_mov_b32 exec_hi, -1")
    a("L_notq:")
    a("s_add_u32 s8, s46, s82\n s_addc_u32 s9, s47, 0")
    for i in range(KF): kvload("k", i)
    a("s_add_u32 s12, s48, s82\n s_addc_u32 s13, s49, 0\n s_mov_b32 s14, 32768\n s_mov_b32 s15, 0x20000")
    srd(24, 44, 4608)
    a("s_and_b32 s82, s3, 1\n s_lshl_b32 s82, s82, 2")
    a("v_and_b32 v97, 2, v96\n v_or_b32 v97, s82, v97\n v_xor_b32 v95, v95, v97\n v_lshlrev_b32 v95, 4, v95")
    a("s_lshl_b32 s83, s3, 10\n s_mov_b32 m0, s83\n s_mov_b32 s78, 0xffff0000")
    a("s_mul_i32 s75, s3, 9216\n s_movk_i32 s74, 1152\n s_movk_i32 s40, 0x1000\n s_movk_i32 s41, 0x1000")
    a("s_cmp_lt_u32 s5, 8\n s_cbranch_scc1 L_dq\n s_cmp_lt_u32 s5, 17\n s_cbranch_scc1 L_dw\n s_cmp_lt_u32 s5, 26\n s_cbranch_scc1 L_df")
    a("s_mov_b32 s6, 3\n s_branch L_kld")
    a("L_dq:")
    a("s_mov_b32 s6, 0\n s_lshl_b32 s7, s4, 3\n s_add_u32 s7, s7, s5\n s_movk_i32 s74, 8192\n s_mov_b32 s71, 262144\n s_mov_b32 s72, 262144")
    a("s_lshl_b32 s73, s7, 7\n s_lshl_b32 s75, s3, 16")
    for i in range(8): a(f"v_mov_b32 v{188+i}, 0")
    a("s_mul_i32 s82, s3, 1152\n s_mov_b32 exec_hi, 15")
    a("buffer_load_dwordx4 v[188:191], v2, s[24:27], s82 offen\n buffer_load_dwordx4 v[192:195], v2, s[24:27], s82 offen offset:576\n s_mov_b32 exec_hi, -1")
    a("s_branch L_dma")
    a("L_dw:")
    a("s_mov_b32 s6, 1\n s_sub_u32 s7, s5, 8\n s_mov_b32 s71, 36864\n s_mov_b32 s72, 36864\n s_mul_i32 s73, s4, 589824\n s_lshl_b32 s82, s7, 7\n s_add_u32 s73, s73, s82")
    a("s_mov_b64 s[16:17], s[52:53]\n s_branch L_dma")
    a("L_df:")
    a(f"s_mov_b32 s6, 2\n s_mul_i32 s7, s4, 9\n s_add_u32 s7, s7, s5\n s_sub_u32 s7, s7, 17\n s_movk_i32 s71, 128\n s_mov_b32 s72, {36864 - 1024}\n s_mul_i32 s73, s7, 73728")
    a(f"s_movk_i32 s40, 0x2000\n s_mov_b32 s41, {(4096 - 65536) & 0xffffffff:#x}")
    a("s_mov_b64 s[16:17], s[60:61]\n s_mov_b32 s18, 5308416")
    a(f"s_mul_i32 s82, s3, 1152\n s_add_u32 m0, s82, {XIM}\n s_mov_b32 exec_hi, 15")
    a("buffer_load_dwordx4 v2, s[24:27], s82 offen lds\n buffer_load_dwordx4 v2, s[24:27], s82 offen offset:576 lds\n s_mov_b32 exec_hi, -1\n s_mov_b32 m0, s83")
    a("L_dma:")
    a("s_add_u32 s73, s73, s75\n v_mad_u32_u24 v3, v96, s74, v95")
    def layernorm():
        a("s_cmp_eq_u32 s6, 0\n s_cbranch_scc0 L_noln")
        a(f"s_waitcnt vmcnt({LNP})")
        for i in range(8):
            a(f"v_lshlrev_b32 v{172+2*i}, 16, v{188+i}\n v_and_b32 v{173+2*i}, s78, v{188+i}")
        a("v_add_f32 v196, v172, v173")
        for i in range(2, 16): a(f"v_add_f32 v196, v196, v{172+i}")
        rowred([196], "v_add_f32"); xrow(196, 197, "v_add_f32")
        a(f"v_mul_f32 v196, {f2u(1/576):#x}, v196")
        a("v_sub_f32 v198, v172, v196\n v_mul_f32 v197, v198, v198")
        for i in range(1, 16): a(f"v_sub_f32 v198, v{172+i}, v196\n v_fmac_f32 v197, v198, v198")
        a("v_cmp_gt_u32 vcc, 36, v0\n v_cndmask_b32 v197, 0, v197, vcc")
        rowred([197], "v_add_f32"); xrow(197, 198, "v_add_f32")
        a(f"v_mul_f32 v197, {f2u(1/576):#x}, v197")
        rnd(196); rnd(197)
        a(f"v_add_f32 v197, {f2u(1e-5):#x}, v197"); rnd(197)
        a("v_sqrt_f32 v197, v197"); rnd(197)
        a("v_rcp_f32 v197, v197")
        for i in range(8):
            lo, hi = 172 + 2*i, 173 + 2*i
            a(f"v_sub_f32 v{lo}, v{lo}, v196\n v_sub_f32 v{hi}, v{hi}, v196\n v_cvt_pk_bf16_f32 v198, v{lo}, v{hi}")
            a(f"v_lshlrev_b32 v{lo}, 16, v198\n v_and_b32 v{hi}, s78, v198\n v_mul_f32 v{lo}, v{lo}, v197\n v_mul_f32 v{hi}, v{hi}, v197")
            a(f"v_cvt_pk_bf16_f32 v{188+i}, v{lo}, v{hi}")
        a(f"v_lshrrev_b32 v198, 2, v0\n v_mul_u32_u24 v198, {IMG_T}, v198\n v_lshl_add_u32 v198, v94, 6, v198")
        a(f"s_lshl_b32 s82, s3, 4\n s_add_u32 s82, s82, {IMG}\n v_add_u32 v198, s82, v198")
        a("s_mov_b64 exec, vcc")
        a(f"ds_write_b128 v198, v[188:191]\n ds_write_b128 v198, v[192:195] offset:{9*IMG_T}")
        a("s_mov_b64 exec, -1")
        a("L_noln:")
    for n in range(18):
        if n == LNP: layernorm()
        if n == 16: a("s_cmp_eq_u32 s6, 1\n s_cbranch_scc1 L_kld")
        if FE and n in (0, LNP): a("s_cmp_eq_u32 s6, 2\n s_cselect_b64 vcc, -1, 0")
        if WIN and n + KF >= WIN + FUN and FE:
            lab = a.label("L_t"); a(f"s_cbranch_vccnz {lab}\n s_waitcnt vmcnt({WIN + FUN - 1})\n{lab}:")
        elif WIN and n + KF >= WIN + FUN: a(f"s_waitcnt vmcnt({WIN + FUN - 1})")
        a(f"buffer_load_dwordx4 v3, s[16:19], s73 offen {NT} lds")
        if n < 17: a(f"s_add_u32 m0, m0, s{40 + (n == 8)}\n s_add_u32 s73, s73, s{71 + (n == 8)}")
    a("L_kld:")
    nk = KF
    if FE: a("s_cmp_eq_u32 s6, 2\n s_cselect_b64 vcc, -1, 0"); free[0] = True
    for i in range(NK1):
        kvload("k", nk); nk += 1
        if i == 0:
            srd(28, 56, 5308416); srd(32, 58, 5308416); srd(36, 62, 4608)
            a(f"s_mov_b32 s79, {f2u(128 ** -0.5):#x}\n s_mov_b32 s80, {f2u(1.4426950408889634):#x}\n s_getreg_b32 s42, hwreg(HW_REG_XCC_ID, 0, 3)")
        if i == 1:
            a("v_lshrrev_b32 v97, 1, v92\n v_and_b32 v98, 1, v93\n v_lshl_or_b32 v97, v98, 1, v97")
            a("v_lshl_add_u32 v98, v93, 3, v92\n v_lshlrev_b32 v98, 7, v98\n v_lshl_add_u32 v98, v97, 5, v98\n v_lshl_add_u32 v98, v94, 3, v98")
            a("s_lshl_b32 s82, s3, 5\n v_xor_b32 v4, s82, v98\n v_add_u32 v5, 36864, v4\n v_add_u32 v204, 0x10000, v4")
            a("s_lshl_b32 s83, s3, 13\n s_cmp_eq_u32 s6, 2\n s_cselect_b32 s82, s83, s82\n s_cselect_b32 s83, 32, 0x2000")
            a("v_xor_b32 v200, s82, v98\n v_xor_b32 v201, s83, v200\n s_lshl_b32 s83, s83, 1\n v_xor_b32 v202, s83, v200\n v_xor_b32 v203, s83, v201")

    a(f"s_waitcnt vmcnt({NK1}) lgkmcnt(0)\n s_barrier\n s_add_u32 s54, s54, 16\n s_add_u32 s43, s54, s42")
    stamp(1)
    a("s_and_b32 s82, s6, 1\n s_cbranch_scc0 L_etr\n s_cmp_eq_u32 s3, 0\n s_cbranch_scc0 L_etr")
    a(f"s_mul_i32 s82, s4, 9\n s_add_u32 s82, s82, 48\n s_cmp_eq_u32 s6, 1\n s_cselect_b32 s82, s82, 0\n s_add_u32 s82, s82, s7\n s_lshl_b32 s82, s82, 7\n s_add_u32 s82, s82, {WS_FL}")
    line_store("s43", "s82")
    a("L_etr:")
    def trread(dst, base_lo, base_hi, t):
        b, off = (base_lo, t * 4096) if t < 9 else (base_hi, (t - 9) * 4096)
        k, n = dst
        a(f"ds_read_b64_tr_b16 {k}[{n}:{n+1}], v{b} offset:{off}\n ds_read_b64_tr_b16 {k}[{n+2}:{n+3}], v{b} offset:{off+512}")
    for j in range(18):
        if j % 6 == 0: kvload("k", nk); nk += 1
        b, off = (200 + ((j >> 1) & 3), (j & 1) * 4096 + (j >> 3) * 32768) if j < 16 else (204, (j & 1) * 4096)
        a(f"ds_read_b64_tr_b16 v[{100+4*j}:{101+4*j}], v{b} offset:{off}\n ds_read_b64_tr_b16 v[{102+4*j}:{103+4*j}], v{b} offset:{off+512}")
    a("s_cmp_eq_u32 s6, 0\n s_cbranch_scc0 L_k2")
    a(f"v_lshl_add_u32 v198, v93, 2, v94\n v_lshlrev_b32 v198, 4, v198\n v_add_u32 v198, {IMG}, v198")
    for t in range(18): a(f"ds_read_b128 v[{20+4*t}:{23+4*t}], v198 offset:{t*IMG_T}")
    a("s_waitcnt lgkmcnt(0)")
    for t in range(18):
        a(f"{MF} v[16:19], v[{100+4*t}:{103+4*t}], v[{20+4*t}:{23+4*t}], {'0' if t == 0 else 'v[16:19]'}")
    a("v_lshlrev_b32 v198, 8, v94\n v_bfe_u32 v97, v0, 4, 1\n v_lshl_add_u32 v198, v97, 6, v198\n v_bfe_u32 v97, v0, 5, 1\n v_lshl_add_u32 v198, v97, 4, v198")
    a(f"s_lshr_b32 s83, s3, 1\n s_lshl_b32 s83, s83, 7\n s_and_b32 s82, s3, 1\n s_lshl_b32 s82, s82, 5\n s_add_u32 s83, s83, s82\n s_add_u32 s83, s83, {CMB}\n v_add_u32 v198, s83, v198")
    a(f"v_add_u32 v199, {CMB}, v2\n v_and_b32 v97, 15, v0\n v_lshlrev_b32 v97, 4, v97\n v_lshl_add_u32 v97, v93, 14, v97\n s_lshl_b32 s82, s7, 8")
    a("v_cvt_pk_bf16_f32 v16, v16, v17\n v_cvt_pk_bf16_f32 v18, v18, v19\n v_mov_b32 v17, s54\n v_mov_b32 v19, s54")
    a("s_mov_b32 exec_lo, 0x000f000f\n s_mov_b32 exec_hi, 0x000f000f\n ds_write_b128 v198, v[16:19]\n s_mov_b64 exec, -1")
    a("s_cmp_eq_u32 s3, 0\n s_waitcnt lgkmcnt(0)\n s_barrier\n s_cbranch_scc0 L_k2")
    a("ds_read_b128 v[16:19], v199\n s_waitcnt lgkmcnt(0)")
    a("buffer_store_dwordx4 v[16:19], v97, s[20:23], s82 offen sc1")
    stamp(11)
    a("L_k2:")
    a("s_movk_i32 s82, 9216\n v_mad_u32_u24 v6, v96, s82, v95\n s_mov_b32 s18, 5308416\n s_mul_i32 s59, s4, 1152")
    a("s_cmp_eq_u32 s6, 2\n s_cbranch_scc1 L_v6")
    a("v_mul_u32_u24 v6, 7282, v0\n v_lshrrev_b32 v6, 16, v6\n v_mul_u32_u24 v97, 9, v6\n v_sub_u32 v97, v0, v97\n v_mul_u32_u24 v6, 9216, v6\n v_lshl_add_u32 v6, v97, 7, v6")
    a(f"s_sub_u32 s71, s5, 9\n s_cmp_eq_u32 s6, 3\n s_cselect_b32 s71, s71, s5\n s_lshl_b32 s71, s71, 2\n s_add_u32 s71, s71, s3")
    if not QTCH: a("s_sub_u32 s71, s71, 32")
    a("L_v6:")
    def etouch(rd):
        lab = a.label("L_nt")
        if rd == 0 and QTCH: a(f"s_cmp_eq_u32 s6, 2\n s_cbranch_scc1 {lab}")
        else:                a(f"s_and_b32 s82, s6, 1\n s_cbranch_scc0 {lab}")
        if rd == 1: a("s_add_u32 s71, s71, 60")
        m = (1 << (9 * RT)) - 1
        a(f"s_cmp_lt_u32 s71, {576 // RT}\n s_cselect_b64 s[16:17], s[28:29], s[32:33]\n s_cselect_b32 s82, 0, {576 // RT}\n s_sub_u32 s82, s71, s82")
        a(f"s_mul_i32 s82, s82, {RT * 9216}\n s_add_u32 s82, s82, s59\n s_mov_b32 exec_lo, {m & 0xffffffff:#x}\n s_mov_b32 exec_hi, {m >> 32:#x}")
        a(f"buffer_load_dword v{209+rd}, v6, s[16:19], s82 offen {PNT}\n s_mov_b64 exec, -1")
        a(f"{lab}:")
    C = []
    c = C.append
    c("v_bfe_u32 v97, v0, 1, 2\n v_mul_u32_u24 v97, 1152, v97\n v_bfe_u32 v98, v0, 5, 1\n v_lshl_add_u32 v97, v98, 6, v97\n v_bfe_u32 v98, v0, 3, 1\n v_lshl_add_u32 v97, v98, 5, v97")
    c("v_and_b32 v98, 1, v0\n v_lshl_add_u32 v97, v98, 4, v97\n v_bfe_u32 v98, v0, 4, 1\n v_lshl_add_u32 v97, v98, 3, v97\n"
      f"s_lshl_b32 s83, s3, 7\n s_add_u32 s83, s83, {XIM}\n v_add_u32 v97, s83, v97\n" + "\n".join(f"ds_read_b64 v[{192+2*i}:{193+2*i}], v97 offset:{512*i}" for i in range(3)))
    c("v_mov_b32 v184, 0x3f803f80\n v_mov_b32 v185, v184\n v_mov_b32 v186, v184\n v_mov_b32 v187, v184\n"
      f"v_mul_u32_u24 v97, {IMG_T}, v0\n v_add_u32 v97, {IMG + 256}, v97\n s_mov_b64 exec, 0x3ffff\n ds_write_b128 v97, v[184:187]\n s_mov_b64 exec, -1")
    c(f"v_mov_b32 v188, 0\n v_mov_b32 v189, 0\n v_mov_b32 v190, 0\n v_mov_b32 v191, 0\n v_mov_b32 v97, {ZER}\n ds_write_b128 v97, v[188:191]\n ds_write_b128 v97, v[188:191] offset:256")
    c("s_waitcnt lgkmcnt(0)\n s_cmp_eq_u32 s3, 0\n s_cselect_b32 s83, -1, 0\n v_and_b32 v196, s83, v196\n v_and_b32 v197, s83, v197\n" +
      "\n".join(f"v_lshlrev_b32 v{172+2*i}, 16, v{192+i}\n v_and_b32 v{173+2*i}, s78, v{192+i}" for i in range(6)))
    c("v_and_b32 v97, 1, v0\n v_cmp_eq_u32 s[66:67], 1, v97\n v_mov_b32 v98, 0x3f80\n v_mov_b32 v99, 0x3f800000\n v_cndmask_b32 v98, v98, v99, s[66:67]\n v_bfe_u32 v97, v0, 1, 3")
    c("\n".join(f"v_cmp_eq_u32 s[66:67], {d}, v97\n v_cndmask_b32 v{184+d}, 0, v98, s[66:67]" for d in range(4)))
    c("\n".join(f"v_cmp_eq_u32 s[66:67], {d}, v97\n v_cndmask_b32 v{184+d}, 0, v98, s[66:67]" for d in range(4, 8)))
    c(f"v_bfe_u32 v97, v0, 1, 2\n v_bfe_u32 v192, v0, 5, 1\n v_mul_u32_u24 v192, {IMG_T}, v192\n v_bfe_u32 v98, v0, 3, 1\n v_lshl_add_u32 v192, v98, 7, v192\n"
      "v_and_b32 v98, 1, v0\n v_lshl_add_u32 v192, v98, 6, v192\n v_lshl_add_u32 v192, v97, 4, v192\n v_bfe_u32 v98, v0, 4, 1\n v_lshl_add_u32 v192, v98, 3, v192")
    c(f"s_mul_i32 s83, s3, {2*IMG_T}\n s_add_u32 s83, s83, {IMG}\n v_add_u32 v192, s83, v192\n"
      f"v_lshlrev_b32 v193, 7, v97\n v_lshl_add_u32 v193, v93, 3, v193\n s_lshl_b32 s83, s3, 5\n s_add_u32 s83, s83, {HST}\n v_add_u32 v193, s83, v193")
    c(f"v_lshl_add_u32 v194, v93, 2, v92\n v_lshlrev_b32 v194, 4, v194\n v_add_u32 v99, {ACT}, v194\n v_mov_b32 v98, 256\n v_cmp_eq_u32 s[66:67], 1, v94\n v_cndmask_b32 v194, v194, v98, s[66:67]\n v_add_u32 v194, {IMG}, v194\n"
      f"v_lshlrev_b32 v195, 3, v0\n v_add_u32 v195, {HST}, v195")
    c(f"v_mov_b32 v98, {ZER}\n" + "\n".join(f"v_cmp_eq_u32 s[66:67], {e}, v94\n v_cndmask_b32 v{197+e}, v98, v99, s[66:67]" for e in range(4)))
    c("v_bfe_u32 v196, v0, 3, 1\n v_lshlrev_b32 v196, 6, v196\n v_lshl_add_u32 v196, v93, 4, v196\n v_and_b32 v98, 7, v0\n v_lshl_add_u32 v196, v98, 1, v196\n"
      f"s_lshl_b32 s83, s3, 7\n s_add_u32 s83, s83, {ACT}\n v_add_u32 v196, s83, v196\n v_mul_u32_u24 v203, 9216, v96\n v_lshl_add_u32 v203, v98, 4, v203")
    c("v_bfe_u32 v202, v0, 5, 1\n v_lshlrev_b32 v202, 6, v202\n v_lshl_add_u32 v202, v92, 4, v202\n v_bfe_u32 v98, v0, 4, 1\n v_lshl_add_u32 v202, v98, 3, v202\n"
      f"v_bfe_u32 v201, v0, 1, 1\n v_mul_u32_u24 v201, {IMG_T}, v201\n v_and_b32 v98, 1, v0\n v_lshl_add_u32 v201, v98, 7, v201")
    c(f"s_mul_i32 s83, s3, {2*IMG_T}\n s_add_u32 s83, s83, {IMG}\n v_add3_u32 v201, v201, v202, s83\n"
      f"s_lshr_b32 s83, s3, 1\n s_mul_i32 s83, s83, {IMG_T}\n s_and_b32 s75, s3, 1\n s_lshl_b32 s75, s75, 7\n s_add_u32 s83, s83, s75\n s_add_u32 s83, s83, {IMG + 16*IMG_T}\n v_add_u32 v202, s83, v202")
    c(f"v_lshlrev_b32 v204, 5, v92\n v_lshl_add_u32 v204, v93, 3, v204\n v_add_u32 v204, {8*9216}, v204\n v_add_u32 v205, {R1}, v4\n v_add_u32 v206, {R1}, v5\n"
      f"s_cmp_eq_u32 s7, 0\n s_cselect_b32 s75, s78, 0\n v_lshlrev_b32 v207, 7, v93\n v_add_u32 v207, {WS_SB}, v207")
    c(f"s_mul_i32 s62, s3, {9*9216}\n s_sub_u32 s83, s5, 17\n s_lshl_b32 s83, s83, 3\n s_add_u32 s83, s83, s4\n s_lshl_b32 s83, s83, 7\n s_add_u32 s62, s62, s83\n s_add_u32 s62, s62, {WS_C}\n"
      f"s_lshl_b32 s63, s3, 12\n s_add_u32 s63, s63, {WS_B}\n s_add_u32 s64, s63, 16384\n s_mov_b32 s65, {WS_B + 32768}\n s_lshl_b32 s61, s4, 7\n s_add_u32 s61, s61, {WS_SC}")
    c("s_mov_b64 s[16:17], s[28:29]\n s_lshl_b32 s73, s7, 7\n s_mul_i32 s83, s3, 73728\n s_add_u32 s73, s73, s83\n s_mov_b32 s58, s73\n s_lshl_b32 s83, s3, 10\n s_mov_b32 m0, s83")
    Wl = []
    w = Wl.append
    w(f"v_and_b32 v97, 15, v0\n v_and_b32 v172, 7, v0\n v_xor_b32 v172, v172, v93\n v_lshlrev_b32 v172, 4, v172\n v_lshl_add_u32 v172, v97, 8, v172")
    w(f"s_lshl_b32 s83, s3, 12\n s_add_u32 s83, s83, {OIM}\n v_add_u32 v172, s83, v172\n v_xor_b32 v173, 64, v172")
    w(f"v_xor_b32 v174, v97, v93\n v_lshlrev_b32 v174, 4, v174\n v_lshl_add_u32 v174, v93, 8, v174\n v_add_u32 v174, {OIM}, v174\n v_xor_b32 v175, 64, v174")
    w("v_lshlrev_b32 v176, 5, v92\n v_lshl_add_u32 v176, v93, 3, v176")
    w(f"v_lshlrev_b32 v177, 7, v0\n v_lshlrev_b32 v178, 4, v97\n v_add_u32 v178, {WTS}, v178\n s_lshl_b32 s83, s3, 2\n v_add_u32 v179, s83, v178\n v_mov_b32 v180, 0")
    w("s_lshr_b32 s83, s3, 1\n s_lshl_b32 s62, s7, 1\n s_add_u32 s62, s62, s83\n s_lshl_b32 s62, s62, 3\n s_add_u32 s62, s62, s4\n s_lshl_b32 s62, s62, 1")
    w(f"s_and_b32 s75, s3, 1\n s_add_u32 s62, s62, s75\n s_lshl_b32 s62, s62, 7\n s_add_u32 s62, s62, {WS_B}")
    w(f"s_lshl_b32 s63, s4, 2\n s_add_u32 s63, s63, s3\n s_lshl_b32 s63, s63, 12\n s_add_u32 s63, s63, {WS_A}")
    w(f"s_lshl_b32 s64, s4, 1\n s_add_u32 s64, s64, s83\n s_lshl_b32 s64, s64, 11\n s_lshl_b32 s75, s75, 2\n s_add_u32 s64, s64, s75\n s_add_u32 s64, s64, {WS_ST}")
    w(f"s_lshl_b32 s61, s4, 7\n s_add_u32 s61, s61, {WS_SB}")
    hooks = [(2, x) for x in C] + [(1, "\n".join(Wl[i:i+3])) for i in range(0, len(Wl), 3)]
    def late(n):
        if n == 18: a("s_mov_b64 s[16:17], s[32:33]\n s_mov_b32 s73, s58")
        a(f"buffer_load_dwordx4 v6, s[16:19], s73 offen {NT} lds")
        a("s_addk_i32 m0, 0x1000\n s_add_u32 s73, s73, 294912")
    k0 = nk
    while nk < 32:
        if RT and nk == max(TP0, k0): etouch(0)
        if RT and nk == TP1: etouch(1)
        if nk == k0 and NFF: a("s_and_b32 s82, s6, 1\n s_cselect_b64 vcc, 0, -1")
        if nk == k0 + NFF and NQF > NFF: a("s_cmp_eq_u32 s6, 0\n s_cselect_b64 vcc, -1, 0")
        if nk == k0 + NQF and NFF > NQF: a("s_cmp_eq_u32 s6, 2\n s_cselect_b64 vcc, -1, 0")
        free[0] = nk < k0 + max(NQF, NFF)
        kvload("k", nk); nk += 1
        for _ in range(-(-len(hooks) // (32 - nk + 1))):
            role, code = hooks.pop(0)
            lab = a.label("L_h")
            a(f"s_cmp_eq_u32 s6, {role}\n s_cbranch_scc0 {lab}"); a(code); a(f"{lab}:")
    free[0] = bool(FV)
    if FV: a("s_cmp_eq_u32 s6, 2\n s_cselect_b64 vcc, -1, 0")
    for i in range(QPOLL): kvload("v", i)

    a("v_bfe_u32 v62, v0, 2, 1\n v_lshlrev_b32 v62, 9, v62\n v_lshl_add_u32 v62, v93, 7, v62\n v_lshl_add_u32 v62, v94, 4, v62")
    a(f"v_lshlrev_b32 v63, 7, v0\n v_mov_b32 v61, s43\n s_mul_i32 s56, s4, 9\n s_add_u32 s56, s56, 64\n s_lshl_b32 s57, s3, 4")
    a(f"s_cmp_eq_u32 s3, 0\n s_cselect_b32 s56, s56, s57\n s_movk_i32 s40, 0x1ff\n s_cselect_b32 s40, s40, 0xffff\n s_mov_b32 s41, 0\n s_lshl_b32 s56, s56, 7\n s_add_u32 s56, s56, {WS_FL - 16*128}")
    a("s_lshr_b32 s82, s77, 2\n s_lshl_b32 s82, s82, 14\n s_lshl_b32 s83, s76, 10\n s_add_u32 s82, s82, s83")
    def qpass():
        a("s_mov_b64 exec, s[40:41]\n buffer_load_dword v61, v63, s[20:23], s56 offen sc1\n s_mov_b64 exec, -1")
        a("buffer_load_dwordx4 v[52:55], v62, s[20:23], s82 offen sc1\n buffer_load_dwordx4 v[56:59], v62, s[20:23], s82 offen offset:64 sc1")
    stamp(2)
    qpass()
    nv = QPOLL
    for i in range(QL): kvload("v", nv); nv += 1
    a("v_and_b32 v97, 1, v0\n v_cmp_eq_u32 vcc, 1, v97\n v_mov_b32 v98, 0xffff\n v_mov_b32 v99, s78\n v_cndmask_b32 v98, v98, v99, vcc")
    a("v_bfe_u32 v97, v0, 3, 1\n v_bfe_u32 v99, v0, 1, 1\n v_lshl_or_b32 v97, v97, 1, v99")
    for d in range(4): a(f"v_cmp_eq_u32 vcc, {d}, v97\n v_cndmask_b32 v{12+d}, 0, v98, vcc")
    a("v_mov_b32 v7, 0xff800000\n s_mov_b32 s81, 0")
    a(f"s_waitcnt vmcnt({QL})\n s_branch L_qchk")
    a("L_qpoll:")
    qpass()
    a(f"s_add_u32 s81, s81, 1\n s_cmp_gt_u32 s81, {SPIN}\n s_waitcnt vmcnt(0)\n s_cbranch_scc1 L_qgo")
    a("L_qchk:")
    a("v_subrev_u32 v60, s54, v61\n v_lshrrev_b32 v60, 3, v60")
    for r in (53, 55, 57, 59): a(f"v_xor_b32 v{r}, s54, v{r}")
    a("v_or3_b32 v60, v60, v53, v55\n v_or3_b32 v60, v60, v57, v59\n v_cmp_ne_u32 vcc, 0, v60\n s_cbranch_vccnz L_qpoll")
    a("L_qgo:")
    a("v_cmp_ne_u32 vcc, s43, v61\n v_mov_b32 v8, v52\n v_mov_b32 v9, v54\n v_mov_b32 v10, v56\n v_mov_b32 v11, v58\n s_cmp_eq_u64 vcc, 0\n s_cselect_b32 s55, 1, 0")
    if FV: a("s_cmp_eq_u32 s6, 2\n s_cselect_b64 vcc, -1, 0")
    if diag: a("v_writelane_b32 v255, s81, 13")
    stamp(3)

    def qk(gi):
        for q in range(4):
            d = 52 + 16 * (gi & 1) + 4 * q; k = 16 * gi + 4 * q
            a(f"{MF} v[{d}:{d+3}], a[{k}:{k+3}], v[8:11], 0")
    qk(0)
    for gi in range(8):
        if gi < 7: qk(gi + 1)
        D = 52 + 16 * (gi & 1); T = 20 + 4 * gi
        for u in range(4):
            for q in range(4):
                if u == 0: a(f"v_mov_b32_dpp v{T+q}, v{D+4*q} quad_perm:[0,0,0,0] {DPP}")
                else:      a(f"v_add_f32_dpp v{T+q}, v{D+4*q+u}, v{T+q} quad_perm:[{u},{u},{u},{u}] {DPP}")
        a(f"v_max3_f32 v7, v{T}, v{T+1}, v7\n v_max3_f32 v7, v{T+2}, v{T+3}, v7")
        for rep in range(2):
            a(f"v_cvt_pk_bf16_f32 v97, v{T}, v{T+1}\n v_cvt_pk_bf16_f32 v98, v{T+2}, v{T+3}")
            a(f"v_lshlrev_b32 v{T}, 16, v97\n v_and_b32 v{T+1}, s78, v97\n v_lshlrev_b32 v{T+2}, 16, v98\n v_and_b32 v{T+3}, s78, v98")
            if rep == 0:
                for q in range(4): a(f"v_mul_f32 v{T+q}, s79, v{T+q}")
        kvload("v", nv); nv += 1
    xrow(7, 97, "v_max_f32")
    rnd(7); a("v_mul_f32 v7, s79, v7"); rnd(7)
    a("v_mul_f32 v52, s80, v7")
    for i in range(32): a(f"v_fma_f32 v{20+i}, v{20+i}, s80, -v52")
    kvload("v", nv); nv += 1
    for i in range(32):
        a(f"v_exp_f32 v{20+i}, v{20+i}")
        if i == 2: a("v_add_f32 v53, v20, v21")
        if i > 2:  a(f"v_add_f32 v53, v53, v{19+i}")
        if i == 15: kvload("v", nv); nv += 1
    a("v_add_f32 v53, v53, v51")
    kvload("v", nv); nv += 1
    xrow(53, 97, "v_add_f32")
    a(f"v_bfe_u32 v97, v0, 2, 1\n v_lshlrev_b32 v97, 5, v97\n s_lshl_b32 s82, s3, 3\n s_add_u32 s82, s82, {ST}\n v_add_u32 v97, s82, v97")
    a("s_mov_b64 exec, 0x11\n ds_write_b64 v97, v[52:53]\n s_mov_b64 exec, -1")
    stamp(4); flush()
    PB = {}
    def pbuild(i):
        if i in PB and PB[i][1]: return
        P = PB[i][0] if i in PB else 84 + 4 * (i & 1)
        a(f"v_cvt_pk_bf16_f32 v99, v{20+i}, v{20+i}")
        for d in range(4): a(f"v_and_b32 v{P+d}, v99, v{12+d}")
    def pv(i):
        P = PB[i][0] if i in PB else 84 + 4 * (i & 1)
        a(f"{MF} v[16:19], v[{P}:{P+3}], a[{128+4*i}:{131+4*i}], {'0' if i == 0 else 'v[16:19]'}")
    done = nv - LAG
    a(f"s_waitcnt vmcnt({LAG})")
    pbuild(0)
    for i in range(done):
        pbuild(i + 1); pv(i)
        if i % 5 == 4 and nv < 29: kvload("v", nv); nv += 1
    a("s_waitcnt lgkmcnt(0)\n s_barrier")
    a(f"v_and_b32 v97, 1, v93\n v_lshlrev_b32 v97, 5, v97\n v_add_u32 v98, s82, v97\n v_add_u32 v97, {ST}, v97")
    a("ds_read_b128 v[56:59], v97\n ds_read_b128 v[60:63], v97 offset:16\n ds_read_b32 v64, v98")
    kvload("v", nv); nv += 1
    a("s_waitcnt lgkmcnt(0)")
    a("v_max3_f32 v65, v56, v58, v60\n v_max_f32 v65, v65, v62")
    for r in (56, 58, 60, 62, 64): a(f"v_sub_f32 v{r}, v{r}, v65")
    for r in (56, 58, 60, 62, 64): a(f"v_exp_f32 v{r}, v{r}")
    a("v_mul_f32 v66, v56, v57\n v_fmac_f32 v66, v58, v59\n v_fmac_f32 v66, v60, v61\n v_fmac_f32 v66, v62, v63")
    a("v_rcp_f32 v67, v66\n v_log_f32 v66, v66")
    a("v_mul_f32 v7, v64, v67")
    a("v_add_f32 v66, v66, v65\n v_min_u32 v66, -2, v66")
    a("s_cmp_eq_u32 s3, 0\n s_cbranch_scc0 L_nolse")
    a(f"s_lshl_b32 s82, s4, 5\n s_add_u32 s82, s82, s5\n s_lshl_b32 s82, s82, 7\n s_add_u32 s82, s82, {WS_ST}")
    a("v_and_b32 v67, 15, v0\n v_lshlrev_b32 v67, 3, v67\n v_lshl_add_u32 v67, v93, 2, v67\n s_mov_b32 exec_hi, 0")
    near_store("buffer_store_dword v66, v67, s[20:23], s82 offen")
    a("s_mov_b32 exec_hi, -1")
    a("L_nolse:")
    if NM:
        a("s_cmp_eq_u32 s6, 2\n s_cbranch_scc0 L_md")
        for n in range(NM): late(n)
        a("L_md:")
    a(f"s_waitcnt vmcnt({LAG})"); pv(done); done += 1
    while done < nv - LAG:
        pbuild(done); pv(done); done += 1
    a(f"s_lshl_b32 s82, s76, 13\n s_lshl_b32 s83, s77, 8\n s_add_u32 s82, s82, s83\n s_add_u32 s57, s82, {WS_A}")
    a("v_and_b32 v97, 15, v0\n v_lshlrev_b32 v97, 4, v97\n v_lshl_add_u32 v97, v93, 12, v97")
    a(f"s_lshl_b32 s82, s3, 10\n s_add_u32 s82, s82, {CMB}\n v_add_u32 v98, s82, v2")
    todo = list(range(32 - LAG, 32))
    while nv < 32:
        kvload("v", nv); nv += 1
        k = -(-len(todo) // (32 - nv + 1))
        for i in todo[:k]:
            PB[i] = [212 + 4 * (31 - i), False]; pbuild(i); PB[i][1] = True
        todo = todo[k:]
        pbuild(done); a(f"s_waitcnt vmcnt({LAG})"); pv(done); done += 1
    if "c" in X:
        a("s_waitcnt vmcnt(0)"); stamp(5); flush(); dump(); a("s_endpgm")
    a("s_cmp_eq_u32 s6, 2\n s_cbranch_scc1 L_ft")
    def lsepass(): a("s_mov_b64 exec, 0xffff\n buffer_load_dword v180, v177, s[20:23], s64 offen sc1\n s_mov_b64 exec, -1")
    def ltouch():
        a(f"s_mul_i32 s82, s70, {7*9216}\n s_add_u32 s82, s82, s59\n s_add_u32 s82, s82, {N1U*9216}\n s_mov_b32 exec_hi, 0x7fffffff")
        a(f"buffer_load_dword v211, v6, s[32:35], s82 offen {PNT}\n s_mov_b32 exec_hi, -1")
    a("s_cmp_eq_u32 s6, 1\n s_cbranch_scc0 L_nw")
    lsepass()
    a("L_x1:")
    for i in range(done, 32):
        a(f"s_waitcnt vmcnt({32 - i})"); pv(i)
    a("s_nop 6\n s_branch L_comb")
    a("L_nw:")
    def rtouch(j):
        if j == 0:  a(f"s_mul_i32 s73, s70, 9216\n s_add_u32 s58, s73, s59\n s_add_u32 s73, s58, {(576 - 56*KG)*9216}")
        if j == KG: a("s_mov_b32 s73, s58")
        sr = 28 if j < KG else 32
        a(f"s_mov_b64 exec, 0x1ff\n buffer_load_dword v{172+j}, v6, s[{sr}:{sr+3}], s73 offen {PNT}\n s_mov_b64 exec, -1\n s_add_u32 s73, s73, {56*9216}")
    nh = 0
    if LH == 2:
        ltouch(); a("s_branch L_x1")
    elif LH == 3:
        for i in range(done, 32):
            if nh < NTH: rtouch(nh); nh += 1
            a(f"s_waitcnt vmcnt({31 - i + nh})"); pv(i)
        a("s_nop 6\n s_branch L_comb")
    else:
        for i in range(done, 32):
            a(f"s_waitcnt vmcnt({31 - i})"); pv(i)
        a("s_nop 6\n s_branch L_comb")
    a("L_ft:")
    nl = NM
    for i in range(done, 32):
        if nl < 36 and nl - NM < NTF: late(nl); nl += 1
        a(f"s_waitcnt vmcnt({31 - i + nl - NM})"); pv(i)
    a("s_nop 7")
    a("L_comb:")
    stamp(5)
    for i in range(4): a(f"v_mul_f32 v{16+i}, v{16+i}, v7")
    a("ds_write_b128 v98, v[16:19]\n s_cmp_eq_u32 s3, 0\n s_waitcnt lgkmcnt(0)\n s_barrier\n s_cbranch_scc0 L_pubd")
    for w in range(1, 4): a(f"ds_read_b128 v[{52+4*w}:{55+4*w}], v98 offset:{1024*w}")
    for w in range(1, 4):
        a(f"s_waitcnt lgkmcnt({3 - w})")
        a(f"v_pk_add_f32 v[16:17], v[16:17], v[{52+4*w}:{53+4*w}]\n v_pk_add_f32 v[18:19], v[18:19], v[{54+4*w}:{55+4*w}]")
    a("v_cvt_pk_bf16_f32 v16, v16, v17\n v_cvt_pk_bf16_f32 v17, v18, v19\n v_min_u32 v16, -2, v16\n v_min_u32 v17, -2, v17")
    a("v_permlane32_swap_b32 v16, v18\n v_permlane32_swap_b32 v17, v19\n s_mov_b32 exec_hi, 0")
    near_store("buffer_store_dwordx4 v[16:19], v97, s[20:23], s57 offen")
    a("s_mov_b32 exec_hi, -1")
    a("L_pubd:")
    stamp(6)
    base_pend = list(pend)
    a("s_mov_b32 s81, 0\n s_cmp_eq_u32 s6, 2\n s_cbranch_scc1 L_F\n s_cmp_eq_u32 s6, 1\n s_cbranch_scc0 L_R")

    def apass():
        for i in range(4): a(f"buffer_load_dwordx4 v[{20+4*i}:{23+4*i}], v2, s[20:23], s63 offen offset:{1024*i} sc1")
    apass()
    a("s_waitcnt vmcnt(5)\n s_cmp_eq_u32 s3, 0\n s_cbranch_scc1 L_tab1\n s_waitcnt vmcnt(4)\n s_branch L_tab1")
    a("L_tab:")
    lsepass(); a("s_waitcnt vmcnt(0)")
    a("L_tab1:")
    spin_end(180, "L_tab")
    a(f"v_max_f32_dpp v181, v180, v180 quad_perm:[1,0,3,2] {DPP}\n v_max_f32_dpp v181, v181, v181 quad_perm:[2,3,0,1] {DPP}")
    a("v_sub_f32 v180, v180, v181\n v_exp_f32 v180, v180")
    a(f"v_add_f32_dpp v181, v180, v180 quad_perm:[1,0,3,2] {DPP}\n v_add_f32_dpp v181, v181, v181 quad_perm:[2,3,0,1] {DPP}")
    a("v_rcp_f32 v181, v181\n v_mul_f32 v180, v180, v181\n s_mov_b64 exec, 0xffff\n ds_write_b32 v179, v180\n s_mov_b64 exec, -1")
    a("v_mov_b32 v97, s54\n v_lshlrev_b32 v98, 2, v0\n s_add_u32 s82, s3, s7")
    a("s_branch L_wchk")
    a("L_wa:")
    a("s_mov_b64 exec, vcc"); apass(); a("s_mov_b64 exec, -1")
    a("L_wchk:")
    for i in range(4):
        a(f"s_waitcnt vmcnt({3 - i})\n ds_write_b128 v{172 + (i & 1)}, v[{20+4*i}:{23+4*i}] offset:{128 * (i >> 1)}")
        chk4(99, 20 + 4*i, i == 0)
    a("s_waitcnt lgkmcnt(0)")
    spin_end(99, "L_wa")
    stamp(7)
    if diag: a("s_waitcnt lgkmcnt(0)")
    a("s_cmp_eq_u32 s82, 0\n s_barrier")
    if SIGB:
        a("s_cbranch_scc0 L_wns\n s_mov_b32 exec_hi, 0\n buffer_store_dword v97, v98, s[20:23], s61 offen sc1\n s_mov_b32 exec_hi, -1")
        a("L_wns:")
    for tt in range(16):
        a(f"ds_read_b128 v[{188+4*tt}:{191+4*tt}], v{174 + (tt & 1)} offset:{1024*tt}")
        if tt == 7: a("ds_read_b128 v[20:23], v178")
    def wfma(hh, i):
        a(f"v_mul_f32 v{52+i}, v{36+i}, v20" if hh == 0 else f"v_fmac_f32 v{52+i}, v{36+4*hh+i}, v{20+hh}")
    for tt in range(16):
        hh, t = tt >> 2, tt & 3
        a(f"s_waitcnt lgkmcnt({min(15, 15 - tt + (tt < 8))})")
        a(f"{MF} v[{36+4*hh}:{39+4*hh}], v[{100+4*tt}:{103+4*tt}], v[{188+4*tt}:{191+4*tt}], {'0' if t == 0 else f'v[{36+4*hh}:{39+4*hh}]'}")
        if hh >= 2: wfma(hh - 2, t)
    a("s_mov_b32 s82, 0x11111111\n s_mov_b32 s83, 0x11111111")
    for hh in (2, 3):
        for i in range(4): wfma(hh, i)
    for ctl in ("quad_perm:[1,0,3,2]", "quad_perm:[2,3,0,1]"):
        for i in range(4): a(f"v_add_f32_dpp v{52+i}, v{52+i}, v{52+i} {ctl} {DPP}")
    a("v_cvt_pk_bf16_f32 v52, v52, v53\n v_cvt_pk_bf16_f32 v53, v54, v55\n v_min_u32 v52, -2, v52\n v_min_u32 v53, -2, v53")
    a("s_mov_b64 exec, s[82:83]")
    a("buffer_store_dwordx2 v[52:53], v176, s[20:23], s62 offen sc1")
    stamp(8); flush(); dump()
    a("s_endpgm")

    pend[:] = base_pend
    a("L_R:")
    if LH == 3:
        a("s_barrier")
        for j in range(nh, KG + 11):
            if WINL: a(f"s_waitcnt vmcnt({WINL-1})")
            rtouch(j)
        a("s_waitcnt vmcnt(0)")
    if LH == 1:
        a("s_barrier")
        if LH2:
            NG = (392 - N1U) // 7
            assert NG * 7 == 392 - N1U
            a(f"s_cmp_lt_u32 s70, {NG}\n s_cselect_b64 s[16:17], s[28:29], s[32:33]\n s_cselect_b32 s82, s18, 0\n s_mul_i32 s83, s70, {7*9216}\n s_add_u32 s82, s82, s83\n s_add_u32 s82, s82, s59\n s_sub_u32 s82, s82, {NG*7*9216}")
            a(f"s_mov_b32 exec_hi, 0x7fffffff\n buffer_load_dword v210, v6, s[16:19], s82 offen {PNT}\n s_mov_b32 exec_hi, -1")
        ltouch()
    a("s_cmp_eq_u32 s3, 0\n s_cbranch_scc0 L_fin")
    a("v_and_b32 v97, 1, v0\n v_cmp_eq_u32 vcc, 1, v97\n v_mov_b32 v98, 0x3f80\n v_mov_b32 v99, 0x3f800000\n v_cndmask_b32 v98, v98, v99, vcc\n v_bfe_u32 v97, v0, 1, 3")
    for d in range(4): a(f"v_cmp_eq_u32 vcc, {d}, v97\n v_cndmask_b32 v{8+d}, 0, v98, vcc")
    a("s_cmp_eq_u32 s6, 0\n s_cbranch_scc1 L_r8\n s_cmp_lt_u32 s7, 32\n s_cbranch_scc0 L_fin")
    a("v_bfe_u32 v28, v0, 2, 1\n v_mul_u32_u24 v28, 1152, v28\n v_lshl_add_u32 v28, v94, 5, v28\n v_lshl_add_u32 v28, v93, 9, v28")
    a("s_lshr_b32 s82, s4, 1\n s_and_b32 s83, s4, 1\n s_sub_u32 s59, s5, 26")
    a("s_mul_i32 s7, s82, 9\n s_add_u32 s7, s7, s83\n s_lshl_b32 s58, s59, 1\n s_add_u32 s7, s7, s58")
    a("s_mul_i32 s58, s83, 2304\n s_lshl_b32 s82, s82, 7\n s_add_u32 s58, s58, s82\n s_lshl_b32 s59, s59, 3\n s_add_u32 s58, s58, s59\n s_branch L_r9")
    a("L_r8:")
    a("s_cmp_lt_u32 s7, 4\n s_cbranch_scc0 L_fin")
    a("v_bfe_u32 v28, v0, 1, 2\n v_mul_u32_u24 v28, 1152, v28\n v_and_b32 v98, 1, v0\n v_lshl_add_u32 v28, v98, 4, v28\n v_lshl_add_u32 v28, v93, 3, v28")
    a("s_lshl_b32 s58, s7, 5\n s_add_u32 s58, s58, 1024\n s_mul_i32 s7, s7, 9\n s_add_u32 s7, s7, 8")
    a("L_r9:")
    a(f"s_mul_i32 s82, s7, 9216\n s_add_u32 s82, s82, {WS_C}\n s_add_u32 s83, s82, 4096\n s_add_u32 s59, s82, 8192")
    if SIGC:
        a(f"v_lshlrev_b32 v29, 7, v0\n s_mov_b32 s61, {WS_SC}\n s_mov_b32 s60, 0\n s_mov_b64 exec, 0xff")
        a("L_rs:")
        a(f"buffer_load_dword v30, v29, s[20:23], s61 offen sc1\n s_add_u32 s60, s60, 1\n s_cmp_gt_u32 s60, {SPIN}\n s_cbranch_scc1 L_rs1")
        a("s_waitcnt vmcnt(0)\n v_cmp_ne_u32 vcc, s54, v30\n s_cbranch_vccnz L_rs")
        a("L_rs1:")
        stamp(12)
    a("s_mov_b64 vcc, -1")
    a("L_ra:")
    a("s_mov_b64 exec, vcc")
    for i in range(9): a(f"buffer_load_dwordx4 v[{172+4*i}:{175+4*i}], v2, s[20:23], {('s82','s83','s59')[i>>2]} offen offset:{1024*(i&3)} sc1")
    a("s_mov_b64 exec, -1")
    for i in range(9):
        a(f"s_waitcnt vmcnt({8 - i})")
        a(f"{MF} v[52:55], v[8:11], v[{172+4*i}:{175+4*i}], {'0' if i == 0 else 'v[52:55]'}")
        chk4(99, 172 + 4*i, i == 0)
    a("s_nop 3")
    spin_end(99, "L_ra")
    stamp(7)
    for i in range(4): a(f"v_add_f32_dpp v{52+i}, v{52+i}, v{52+i} row_ror:8 {DPP}")
    a("v_cvt_pk_bf16_f32 v52, v52, v53\n v_cvt_pk_bf16_f32 v53, v54, v55")
    a("s_mov_b64 exec, 0x00ff00ff\n buffer_store_dwordx2 v[52:53], v28, s[36:39], s58 offen")
    a(f"s_cmp_eq_u32 s7, 0\n s_cbranch_scc0 L_rend\n s_mov_b32 exec_lo, -1\n v_mov_b32 v54, s54\n v_lshlrev_b32 v55, 2, v0\n s_mov_b32 s82, {WS_EP}\n buffer_store_dword v54, v55, s[20:23], s82 offen sc1")
    a("L_rend:")
    if probe >= 0:
        if probe == 99: a("s_memrealtime s[86:87]")
        a("s_memrealtime s[88:89]\n s_waitcnt lgkmcnt(0)\n s_sub_u32 s86, s86, s84")
        a("L_probe:")
        a("s_memrealtime s[90:91]\n s_waitcnt lgkmcnt(0)\n s_sub_u32 s90, s90, s88\n s_cmp_lt_u32 s90, s86\n s_cbranch_scc1 L_probe")
    stamp(8); flush(); dump()
    a("s_endpgm")
    pend[:] = base_pend
    a("L_fin:")
    flush(); dump()
    a("s_endpgm")
    pend[:] = base_pend
    if AL: a(".p2align 12")
    a("L_F:")
    if nl < 36:
        a("s_barrier")
        for n in range(nl, 36):
            if WINF: a(f"s_waitcnt vmcnt({WINF-1})")
            late(n)
    def sigld(): a("buffer_load_dword v88, v207, s[20:23], 0 offen sc1\n buffer_load_dword v89, v207, s[20:23], 0 offen offset:512 sc1")
    if SIGB: sigld()
    def frag(n): trread(("a", 4*n), 4, 5, n) if n < 18 else trread(("a", 4*n), 205, 206, n - 18)
    for n in range(NM): frag(n)
    for i in range(16): a(f"v_mov_b32 v{52+i}, 0")
    rest = list(range(NM, 36))
    if len(rest) > 12:
        a(f"s_waitcnt vmcnt({11 if SIGB else 9})\n s_barrier")
        for n in rest[:-9]: frag(n)
        rest = rest[-9:]
    if not SIGB:
        a("s_waitcnt vmcnt(0)\n s_barrier")
        for n in rest: frag(n)
        stamp(7)
    BL = {0: 20, 1: 36, 2: 52}
    def bloads(ps):
        lab = a.label("L_fb")
        a(f"s_cmp_eq_u32 s3, 0\n s_cbranch_scc0 {lab}")
        for p in ps: a(f"buffer_load_dwordx4 v[{52+4*p}:{55+4*p}], v2, s[20:23], s65 offen offset:{1024*p} sc1")
        a(f"{lab}:")
        for blk, so in ((0, "s63"), (1, "s64")):
            for p in ps: a(f"buffer_load_dwordx4 v[{BL[blk]+4*p}:{BL[blk]+3+4*p}], v2, s[20:23], {so} offen offset:{1024*p} sc1")
    if SIGB:
        def sigstep():
            l1, l2 = a.label("L_fs"), a.label("L_fs")
            a("v_cmp_eq_u32 s[48:49], s54, v88\n v_cmp_eq_u32 s[50:51], s54, v89")
            a(f"s_andn2_b64 exec, s[48:49], s[44:45]\n s_cbranch_execz {l1}")
            bloads((0, 2))
            a(f"{l1}:\n s_andn2_b64 exec, s[50:51], s[46:47]\n s_cbranch_execz {l2}")
            bloads((1, 3))
            a(f"{l2}:\n s_mov_b64 exec, -1\n s_mov_b64 s[44:45], s[48:49]\n s_mov_b64 s[46:47], s[50:51]")
        a("s_mov_b64 s[44:45], 0\n s_mov_b64 s[46:47], 0\n s_mov_b32 s60, 0\n s_waitcnt vmcnt(0)")
        sigstep()
        a("s_barrier")
        stamp(7)
        for n in rest: frag(n)
        a("s_branch L_fst")
        a("L_fs:")
        sigld()
        a(f"s_add_u32 s60, s60, 1\n s_cmp_gt_u32 s60, {SPIN}\n s_cbranch_scc1 L_fall\n s_waitcnt vmcnt(0)")
        sigstep()
        a("L_fst:")
        a("s_and_b64 s[48:49], s[48:49], s[50:51]\n s_cmp_eq_u64 s[48:49], -1\n s_cbranch_scc0 L_fs")
        stamp(12)
        a("s_waitcnt vmcnt(0)\n s_branch L_fchk")
    a("L_fall:")
    a("s_mov_b64 vcc, -1")
    a("L_fa:")
    a("s_mov_b64 exec, vcc"); bloads((0, 1, 2, 3)); a("s_mov_b64 exec, -1")
    a("L_fchk:")
    HD = 68
    k = 0
    for blk in (2, 0, 1):
        for p in range(4):
            r = BL[blk] + 4 * p; d = HD + 4 * blk
            a(f"s_waitcnt vmcnt({11 - k})")
            a(f"{MF} v[{d}:{d+3}], v[{184+4*(p>>1)}:{187+4*(p>>1)}], v[{r}:{r+3}], " + (f"v[{172+4*blk}:{175+4*blk}]" if p == 0 else f"v[{d}:{d+3}]"))
            chk4(99, r, k == 0); k += 1
    for blk in (2, 0):
        d = HD + 4 * blk
        a(f"v_cvt_pk_bf16_f32 v{80+2*blk}, v{d}, v{d+1}\n v_cvt_pk_bf16_f32 v{81+2*blk}, v{d+2}, v{d+3}")
    spin_end(99, "L_fa")
    stamp(8)
    a("ds_write_b64 v192, v[80:81]")
    a(f"v_cvt_pk_bf16_f32 v82, v{HD+4}, v{HD+5}\n v_cvt_pk_bf16_f32 v83, v{HD+6}, v{HD+7}")
    a(f"s_cmp_eq_u32 s3, 0\n ds_write_b64 v192, v[82:83] offset:{8*IMG_T}\n s_cbranch_scc0 L_fw8\n ds_write_b64 v192, v[84:85] offset:{16*IMG_T}")
    a("L_fw8:")
    a("s_waitcnt lgkmcnt(0)\n s_barrier")
    hreg = lambda t: 20 + 4 * t if t < 12 else 208 + 4 * (t - 12)
    def hread(t): a(f"ds_read_b128 v[{hreg(t)}:{hreg(t)+3}], v194 offset:{t*IMG_T}")
    for t in range(12): hread(t)
    a(f"v_add_f32 v86, v{HD}, v{HD+1}\n v_mul_f32 v87, v{HD}, v{HD}")
    st1 = []
    for i in range(1, 12):
        st1.append(([f"v_add_f32 v86, v86, v{HD+i}"] if i >= 2 else []) + [f"v_fmac_f32 v87, v{HD+i}, v{HD+i}"])
    for s in st1[:7]:
        for x in s: a(x)
    dp = lambda ctl: [f"v_add_f32_dpp v{r}, v{r}, v{r} {ctl} {DPP}" for r in (86, 87)]
    side = {0: st1[7] + st1[8], 1: st1[9] + st1[10], 2: dp("quad_perm:[1,0,3,2]"), 3: dp("row_ror:8")}
    side[4] = ["v_mov_b32 v97, s54", "v_lshlrev_b32 v98, 2, v0", "s_sub_u32 s82, s5, 17", "s_add_u32 s82, s82, s3"]
    side[5] = ["ds_write_b64 v193, v[86:87]"] + [f"ds_read_b64 v[{80+2*k}:{81+2*k}], v201 offset:{8*IMG_T*k}" for k in range(2)] + ["ds_read_b64 v[84:85], v202"]
    side[8] = ["s_waitcnt lgkmcnt(0)", "s_barrier", "ds_read_b64 v[86:87], v195"]
    side[9] = [f"v_lshlrev_b32 v{HD+2*i}, 16, v{80+i}" for i in range(3)]
    side[10] = [f"v_lshlrev_b32 v{HD+2*i}, 16, v{80+i}" for i in range(3, 6)]
    side[11] = [f"v_and_b32 v{HD+1+2*i}, s75, v{80+i}" for i in range(3)]
    side[12] = ["s_waitcnt lgkmcnt(0)"] + dp("quad_perm:[1,0,3,2]") + [f"v_and_b32 v{HD+7}, s75, v83"]
    side[13] = dp("quad_perm:[2,3,0,1]") + [f"v_and_b32 v{HD+9}, s75, v84"]
    side[14] = dp("row_half_mirror") + [f"v_and_b32 v{HD+11}, s75, v85"]
    side[15] = dp("row_mirror")
    side[16] = [f"v_mul_f32 v86, {f2u(1/576):#x}, v86", f"v_mul_f32 v87, {f2u(1/576):#x}, v87", "v_fma_f32 v87, -v86, v86, v87"]
    side[17] = [f"v_add_f32 v87, {f2u(1e-5):#x}, v87", "v_rsq_f32 v87, v87"] + [f"v_and_b32 v{HD+2*i}, s75, v{HD+2*i}" for i in range(6)]
    def csig():
        a("s_cmp_eq_u32 s82, 0\n s_cbranch_scc0 L_fns\n s_mov_b32 exec_hi, 0\n buffer_store_dword v97, v98, s[20:23], s61 offen sc1\n s_mov_b32 exec_hi, -1")
        a("L_fns:")
    for t in range(18):
        h = hreg(t)
        if t <= 5:   a("s_waitcnt lgkmcnt(11)")
        elif t <= 8: a(f"s_waitcnt lgkmcnt({17 - t + 4})")
        a(f"{MF} v[8:11], v[{h}:{h+3}], a[{4*t}:{4*t+3}], {'0' if t == 0 else 'v[8:11]'}")
        a(f"{MF} v[12:15], v[{h}:{h+3}], a[{72+4*t}:{75+4*t}], {'0' if t == 0 else 'v[12:15]'}")
        if t + 12 < 18: hread(t + 12)
        for s in side.get(t, []): a(s)
        if SIGC and t == CPOS: csig()
    c1 = -2 * 0.7978845608028654 * 1.4426950408889634
    a("v_fma_f32 v8, -v86, v9, v8\n v_fma_f32 v12, -v86, v13, v12\n v_mul_f32 v8, v8, v87")
    a(f"v_mov_b32 v10, {f2u(c1):#x}\n v_mul_f32 v9, v8, v8\n v_mul_f32 v12, v12, v87\n v_fmamk_f32 v9, v9, {f2u(c1 * 0.044715):#x}, v10\n v_mul_f32 v9, v9, v8")
    a("v_exp_f32 v9, v9\n v_mul_f32 v8, v8, v12\n v_add_f32 v9, 1.0, v9\n v_rcp_f32 v9, v9\n v_mul_f32 v8, v8, v9")
    a("v_cvt_pk_bf16_f32 v8, v8, v8\n ds_write_b16 v196, v8")
    if SIGC and CPOS == 18: csig()
    a("s_waitcnt lgkmcnt(0)\n s_barrier")
    stamp(9)
    for e in range(4):
        for t in range(2): a(f"ds_read_b128 v[{20+8*e+4*t}:{23+8*e+4*t}], v{197+e} offset:{256*t}")
    if SIGC and CPOS == 19: csig()
    if diag: a("s_waitcnt lgkmcnt(0)")
    for e in range(4):
        for t in range(2):
            if not diag: a(f"s_waitcnt lgkmcnt({7 - 2*e - t})")
            for acc in range(3):
                if acc == 2 and e > 0: continue
                w = 100 + 4 * (8 * acc + 2 * e + t)
                a(f"{MF} v[{HD+4*acc}:{HD+3+4*acc}], v[{w}:{w+3}], v[{20+8*e+4*t}:{23+8*e+4*t}], v[{HD+4*acc}:{HD+3+4*acc}]")
        if e == 2:
            a(f"v_cvt_pk_bf16_f32 v84, v{HD+8}, v{HD+9}\n v_cvt_pk_bf16_f32 v85, v{HD+10}, v{HD+11}\n v_min_u32 v84, -2, v84\n v_min_u32 v85, -2, v85")
    a("s_mov_b32 exec_lo, 0x11111111\n s_mov_b32 exec_hi, 0x11111111")
    a("buffer_store_dwordx2 v[84:85], v204, s[20:23], s62 offen sc1\n s_mov_b64 exec, -1")
    for i in range(4): a(f"v_cvt_pk_bf16_f32 v{80+i}, v{HD+2*i}, v{HD+1+2*i}")
    for i in range(4): a(f"v_min_u32 v{80+i}, -2, v{80+i}")
    a("buffer_store_dwordx4 v[80:83], v203, s[20:23], s62 offen sc1")
    stamp(10); flush(); dump()
    a("s_endpgm")

    a("L_end:")
    body = a.finish().replace("CODE_REST", "L_end-L_pc")
    return f"""{HEADER}; @launch grid=(256,1,1) block=(256,1,1) lds={LDS_BYTES}
.amdgcn_target "amdgcn-amd-amdhsa--gfx950"
.text
.globl {KN}
.p2align 8
.type {KN},@function
{KN}:
{body}
    s_endpgm
.section .rodata,"a"
.p2align 6
.amdhsa_kernel {KN}
  .amdhsa_next_free_vgpr 512
  .amdhsa_next_free_sgpr 102
  .amdhsa_accum_offset 256
  .amdhsa_group_segment_fixed_size 0
  .amdhsa_kernarg_size 96
  .amdhsa_user_sgpr_count 2
  .amdhsa_user_sgpr_kernarg_segment_ptr 1
  .amdhsa_system_sgpr_workgroup_id_x 1
.end_amdhsa_kernel
"""

if __name__ == "__main__":
    out = sys.argv[1]
    kw = {}
    for x in sys.argv[2:]:
        k, v = x.split("=")
        kw[k] = int(v) if v.lstrip("-").isdigit() else v
    open(out, "w").write(gen(**kw))
```

```python
import sys, struct
from asmlib import Asm

KN = "sequential_preLN__sliding_block_cached__geglu_ffn__decode_kernel"
HEADER = open("sequential_preLN__sliding_block_cached__geglu_ffn__decode.s.ref").read().split("; Override launch")[0]

def f2u(x): return struct.unpack("<I", struct.pack("<f", x))[0]

WS_Q   = 0x0
WS_EP  = 0x10000
WS_FL  = 0x10400
WS_SB  = 0x1A000
WS_SC  = 0x1C000
WS_X   = 0x1E000
WS_ST  = WS_X + 294912
WS_A   = WS_ST + 32768
WS_B   = WS_A + 131072
WS_CT  = WS_B + 36864
WS_C   = WS_CT + 1024
WS_END = WS_C + 663552
WS_DIAG = 0x180000
R0, R1 = 0, 73728
IMG = 147456; IMG_T = 272
CMB = 152576
ST  = 156672
HST = 156800
ACT = 157440
ZER = ACT + 512
XIM = ZER + 512
LDS_BYTES = XIM + 5120
OIM = R1
WTS = HST
SPIN = 1 << 18
DPP = "row_mask:0xf bank_mask:0xf"
MF = "v_mfma_f32_16x16x32_bf16"

def gen(diag=False, probe=-1, NT="nt", PNT="none", KF=2, NK1=7, QPOLL=2, QL=7, LAG=9, STEP=13,
        WIN=6, WINV=0, FUN=2, NQF=17, NWF=12, N3F=22, LNP=5, PFC=1, FR=4, RR=0, PW=1, NFF=0, QV=0, QI=1, CNT=3, R72=1, SP=4, PIPE=1, SAN=0,
        LOC=1, CPOS=10, NTF=6, AL=1, WINF=0, X=""):
    a = Asm()
    pend = []
    NT, PNT = [("" if x == "none" else x) for x in (NT, PNT)]
    def stamp(i):
        if probe >= 0:
            if i == 0: a("s_memrealtime s[84:85]")
            if i == probe: a("s_memrealtime s[86:87]")
        if not diag: return
        p = 84 + 2 * (len(pend))
        assert p <= 100
        a(f"s_memrealtime s[{p}:{p+1}]"); pend.append((i, p))
    def flush():
        if not diag: return
        a("s_waitcnt lgkmcnt(0)")
        for i, p in pend: a(f"v_writelane_b32 v255, s{p}, {i}")
        pend.clear()
    def dump():
        if not diag: return
        a("s_mov_b64 exec, -1\n v_writelane_b32 v255, s81, 14")
        a("s_lshl_b32 s74, s2, 2\n s_add_u32 s74, s74, s3\n s_lshl_b32 s74, s74, 8")
        a(f"s_add_u32 s74, s74, {WS_DIAG}")
        a("v_lshlrev_b32 v254, 2, v0")
        a("s_mov_b32 s22, 0x200000")
        a("buffer_store_dword v255, v254, s[20:23], s74 offen")
    def srd(d, p, n):
        a(f"s_mov_b64 s[{d}:{d+1}], s[{p}:{p+1}]\n s_mov_b32 s{d+2}, {n}\n s_mov_b32 s{d+3}, 0x20000")
    def rowred(regs, op):
        for ctl in ("quad_perm:[1,0,3,2]", "quad_perm:[2,3,0,1]", "row_half_mirror", "row_mirror"):
            for r in regs: a(f"{op}_dpp v{r}, v{r}, v{r} {ctl} {DPP}")
    def xrow(r, t, op):
        for sw in ("v_permlane16_swap_b32", "v_permlane32_swap_b32"):
            a(f"v_mov_b32 v{t}, v{r}\n {sw} v{r}, v{t}\n {op} v{r}, v{r}, v{t}")
    def rnd(r):
        a(f"v_cvt_pk_bf16_f32 v{r}, v{r}, v{r}\n v_and_b32 v{r}, s78, v{r}")
    def chk4(acc, r, first):
        if first: a(f"v_max3_u32 v{acc}, v{r}, v{r+1}, v{r+2}\n v_max_u32 v{acc}, v{r+3}, v{acc}")
        else:     a(f"v_max3_u32 v{acc}, v{r}, v{r+1}, v{acc}\n v_max3_u32 v{acc}, v{r+2}, v{r+3}, v{acc}")
    def spin_end(acc, again):
        lab, stub = a.label("L_ok"), a.label("L_again")
        a(f"v_cmp_eq_u32 vcc, -1, v{acc}\n s_cbranch_vccnz {stub}\n{lab}:")
        stubs.append(f"{stub}:\n s_add_u32 s81, s81, 1\n s_cmp_lt_u32 s81, {SPIN}\n s_cbranch_scc1 {again}\n s_branch {lab}")
    stubs = []
    def emit_stubs():
        for x in stubs: a(x)
        stubs.clear()
    def line_store(val, so):
        a(f"v_mov_b32 v97, {val}\n v_lshlrev_b32 v98, 2, v0\n s_mov_b32 exec_hi, 0\n buffer_store_dword v97, v98, s[20:23], {so} offen sc1\n s_mov_b32 exec_hi, -1")
    def near_store(text, flag="s55"):
        if not LOC: a(text + " sc1"); return
        l1, l2 = a.label("L_far"), a.label("L_st")
        a(f"s_cmp_eq_u32 {flag}, 1\n s_cbranch_scc0 {l1}\n {text}\n s_branch {l2}\n{l1}:\n {text} sc1\n{l2}:")
    free = [False]
    def kvload(kind, i):
        w = WIN if (kind == "k" and i >= KF or kind == "v" and i < QPOLL + QL) else (WINV if kind == "v" else 0)
        if w and free[0]:
            lab = a.label("L_t")
            a(f"s_cbranch_vccnz {lab}\n s_waitcnt vmcnt({w-1})\n{lab}:")
        elif w: a(f"s_waitcnt vmcnt({w-1})")
        if kind in "kK": a(f"buffer_load_dwordx4 a[{4*i}:{4*i+3}], v1, s[8:11], s68 offen {NT}")
        else:           a(f"buffer_load_dwordx4 a[{128+4*i}:{131+4*i}], v2, s[12:15], s68 offen {NT}")
        a(f"s_addk_i32 s68, {STEP*1024}\n s_and_b32 s68, s68, s69")

    a("s_cmp_ge_u32 s2, 256\n s_cbranch_scc1 L_end")
    a("s_load_dwordx16 s[44:59], s[0:1], 0\n s_load_dwordx8 s[60:67], s[0:1], 64")
    if diag:
        for r in range(86, 102, 2): a(f"s_mov_b64 s[{r}:{r+1}], 0")
    stamp(0)
    a("v_lshrrev_b32 v1, 6, v0\n s_and_b32 s4, s2, 7\n s_lshr_b32 s5, s2, 3\n v_readfirstlane_b32 s3, v1")
    if PFC:
        a("s_cmp_eq_u32 s5, 31\n s_cbranch_scc0 L_nopfc")
        a("s_getpc_b64 s[82:83]")
        a("L_pc:")
        a("v_lshlrev_b32 v97, 7, v0\n v_cmp_gt_u32 vcc, CODE_REST, v97\n s_and_saveexec_b64 s[70:71], vcc\n s_cbranch_execz L_pc2\n global_load_dword v206, v97, s[82:83]")
        a("L_pc2:\n s_mov_b64 exec, -1")
        a("L_nopfc:")
    a("v_and_b32 v0, 63, v0")
    if diag: a("v_mov_b32 v255, 0")
    a("s_lshr_b32 s76, s5, 4\n s_lshl_b32 s74, s4, 1\n s_add_u32 s76, s76, s74")
    a("s_and_b32 s77, s5, 15")
    a("s_movk_i32 s69, 0x7fff")
    a("s_lshl_b32 s68, s2, 2\n s_add_u32 s68, s68, s3\n s_mul_i32 s68, s68, 0x9E3779B1\n s_lshr_b32 s68, s68, 27\n s_lshl_b32 s68, s68, 10")
    a("v_bfe_u32 v92, v0, 2, 2\n v_lshrrev_b32 v93, 4, v0\n v_and_b32 v94, 3, v0")
    a("v_lshlrev_b32 v1, 8, v92\n v_lshl_add_u32 v1, v93, 6, v1\n v_lshl_add_u32 v1, v94, 4, v1")
    a("v_lshrrev_b32 v96, 3, v0\n v_and_b32 v95, 7, v0\n v_lshlrev_b32 v97, 7, v95\n v_lshl_add_u32 v97, v96, 13, v97")
    a("s_lshr_b32 s82, s77, 2\n s_lshl_b32 s82, s82, 4\n s_add_u32 s82, s82, s76\n s_lshl_b32 s82, s82, 21")
    a(f"s_and_b32 s83, s77, 3\n s_lshl_b32 s83, s83, 2\n s_add_u32 s83, s83, s3\n s_lshl_b32 s83, s83, 15\n s_add_u32 s82, s82, s83\n s_add_u32 s82, s82, {6144*256}")
    a("s_mov_b32 s10, 32768\n s_mov_b32 s11, 0x20000\n s_mov_b32 s18, 4718592\n s_mov_b32 s19, 0x20000")
    R0ROW = 576 - 20 * (8 + RR)
    assert R0ROW - 32 * (8 + FR) >= 0
    a(f"s_lshl_b32 s73, s5, 2\n s_add_u32 s73, s73, s3\n s_mul_i32 s74, s73, {8 + FR}\n s_add_u32 s74, s74, {(R0ROW - 40*(8 + FR)) & 0xffffffff:#x}\n s_lshl_b32 s73, s73, 3\n s_add_u32 s73, s73, {(R0ROW - 864) & 0xffffffff:#x}")
    a("s_cmp_lt_u32 s5, 10\n s_cselect_b32 s73, s74, s73\n s_lshl_b32 s73, s73, 13\n s_lshl_b32 s74, s4, 10\n s_add_u32 s73, s73, s74")
    a("v_lshlrev_b32 v2, 4, v0")
    a("v_mov_b32 v184, -1\n v_mov_b32 v185, -1\n v_mov_b32 v186, -1\n v_mov_b32 v187, -1")
    a("s_sub_u32 s7, s5, 27\n s_lshl_b32 s7, s7, 3\n s_add_u32 s7, s7, s4")
    a(f"s_lshl_b32 s75, s7, 2\n s_add_u32 s75, s75, s3\n s_mul_i32 s75, s75, 6144\n s_add_u32 s75, s75, {WS_ST}")
    a(f"s_mov_b32 s22, {WS_END}\n s_mov_b32 s23, 0x20000")
    a("s_lshr_b32 s70, s5, 1\n s_lshl_b32 s70, s70, 3\n s_add_u32 s70, s70, s4")
    a("s_sub_u32 s74, s5, 10\n s_cmp_lt_u32 s74, 17\n s_cselect_b32 s74, 0, s70\n s_cmp_lt_u32 s74, 9")
    a("s_waitcnt lgkmcnt(0)")
    a(f"s_load_dword s54, s[66:67], {WS_EP}")
    a("s_mov_b64 s[16:17], s[50:51]\n s_mov_b64 s[20:21], s[66:67]\n s_cbranch_scc1 L_notq")
    a(f"buffer_load_dword v207, v97, s[16:19], s73 offen {PNT}")
    a("s_cmp_lt_u32 s5, 27\n s_cbranch_scc0 L_rc")
    if FR:
        m = (1 << (8 * FR)) - 1
        a(f"s_add_u32 s73, s73, 65536\n s_mov_b32 exec_lo, {m & 0xffffffff:#x}\n s_mov_b32 exec_hi, {m >> 32:#x}\n buffer_load_dword v208, v97, s[16:19], s73 offen {PNT}\n s_mov_b64 exec, -1")
    a("s_branch L_notq")
    a("L_rc:")
    if RR:
        m = (1 << (8 * RR)) - 1
        a(f"s_sub_u32 s73, s5, 27\n s_lshl_b32 s73, s73, 2\n s_add_u32 s73, s73, s3\n s_mul_i32 s73, s73, {RR*8192}\n s_lshl_b32 s74, s4, 10\n s_add_u32 s73, s73, s74\n s_add_u32 s73, s73, {(R0ROW + 160)*8192}")
        a(f"s_mov_b32 exec_lo, {m & 0xffffffff:#x}\n s_mov_b32 exec_hi, {m >> 32:#x}\n buffer_load_dword v208, v97, s[16:19], s73 offen {PNT}\n s_mov_b64 exec, -1")
    for i in range(6):
        if i == 3: a("s_add_u32 s75, s75, 3072")
        a(f"buffer_store_dwordx4 v[184:187], v2, s[20:23], s75 offen offset:{1024*(i%3)} sc1")
    a("L_notq:")
    a("s_add_u32 s8, s46, s82\n s_addc_u32 s9, s47, 0")
    for i in range(KF): kvload("k", i)
    a("s_add_u32 s12, s48, s82\n s_addc_u32 s13, s49, 0\n s_mov_b32 s14, 32768\n s_mov_b32 s15, 0x20000")
    srd(24, 44, 4608)
    a("s_and_b32 s82, s3, 1\n s_lshl_b32 s82, s82, 2")
    a("v_and_b32 v97, 2, v96\n v_or_b32 v97, s82, v97\n v_xor_b32 v95, v95, v97\n v_lshlrev_b32 v95, 4, v95")
    a("s_lshl_b32 s83, s3, 10\n s_mov_b32 m0, s83\n s_mov_b32 s78, 0xffff0000")
    a("s_cmp_lt_u32 s5, 18\n s_cbranch_scc1 L_df\n s_cmp_lt_u32 s5, 27\n s_cbranch_scc1 L_dw")
    a("s_mov_b32 s6, 3\n s_branch L_kld")
    a("L_dw:")
    a("s_mov_b32 s6, 1\n s_sub_u32 s7, s5, 18\n s_mov_b32 s71, 36864\n s_mul_i32 s73, s4, 589824\n s_lshl_b32 s82, s7, 7\n s_add_u32 s73, s73, s82")
    a("s_mul_i32 s75, s3, 9216\n s_movk_i32 s74, 1152\n s_mov_b64 s[16:17], s[52:53]\n s_branch L_dma")
    a("L_df:")
    a(f"s_mov_b32 s6, 2\n s_mul_i32 s82, s3, 1152\n s_add_u32 m0, s82, {XIM}\n s_mov_b32 exec_hi, 15")
    a("buffer_load_dwordx4 v2, s[24:27], s82 offen lds\n buffer_load_dwordx4 v2, s[24:27], s82 offen offset:576 lds\n s_mov_b32 exec_hi, -1\n s_mov_b32 m0, s83")
    a(f"s_and_b32 s51, s5, 1\n s_lshl_b32 s52, s70, 2\n s_add_u32 s52, s52, s3\n s_lshl_b32 s52, s52, 10\n s_add_u32 s52, s52, {WS_X}")
    a("s_lshr_b32 s74, s3, 1\n s_cmp_eq_u32 s74, s51\n s_cselect_b32 s53, 1, 0\n s_cbranch_scc0 L_nib")
    a("buffer_store_dwordx4 v[184:187], v2, s[20:23], s52 offen sc1")
    a("L_nib:")
    a("s_cmp_lt_u32 s5, 10\n s_cbranch_scc1 L_kld")
    a("s_mov_b32 s6, 0\n s_lshl_b32 s7, s4, 3\n s_add_u32 s7, s7, s5\n s_sub_u32 s7, s7, 10\n s_movk_i32 s74, 8192\n s_mov_b32 s71, 262144")
    a("s_lshl_b32 s73, s7, 7\n s_lshl_b32 s75, s3, 16")
    for i in range(8): a(f"v_mov_b32 v{188+i}, 0")
    a("s_mov_b32 exec_hi, 15")
    a("buffer_load_dwordx4 v[188:191], v2, s[24:27], s82 offen\n buffer_load_dwordx4 v[192:195], v2, s[24:27], s82 offen offset:576\n s_mov_b32 exec_hi, -1")
    a("L_dma:")
    a("s_add_u32 s73, s73, s75\n v_mad_u32_u24 v3, v96, s74, v95")
    def layernorm():
        a("s_cmp_eq_u32 s6, 0\n s_cbranch_scc0 L_noln")
        a(f"s_waitcnt vmcnt({LNP})")
        for i in range(8):
            a(f"v_lshlrev_b32 v{172+2*i}, 16, v{188+i}\n v_and_b32 v{173+2*i}, s78, v{188+i}")
        a("v_add_f32 v196, v172, v173")
        for i in range(2, 16): a(f"v_add_f32 v196, v196, v{172+i}")
        rowred([196], "v_add_f32"); xrow(196, 197, "v_add_f32")
        a(f"v_mul_f32 v196, {f2u(1/576):#x}, v196")
        a("v_sub_f32 v198, v172, v196\n v_mul_f32 v197, v198, v198")
        for i in range(1, 16): a(f"v_sub_f32 v198, v{172+i}, v196\n v_fmac_f32 v197, v198, v198")
        a("v_cmp_gt_u32 vcc, 36, v0\n v_cndmask_b32 v197, 0, v197, vcc")
        rowred([197], "v_add_f32"); xrow(197, 198, "v_add_f32")
        a(f"v_mul_f32 v197, {f2u(1/576):#x}, v197")
        rnd(196); rnd(197)
        a(f"v_add_f32 v197, {f2u(1e-5):#x}, v197"); rnd(197)
        a("v_sqrt_f32 v197, v197"); rnd(197)
        a("v_rcp_f32 v197, v197")
        for i in range(8):
            lo, hi = 172 + 2*i, 173 + 2*i
            a(f"v_sub_f32 v{lo}, v{lo}, v196\n v_sub_f32 v{hi}, v{hi}, v196\n v_cvt_pk_bf16_f32 v198, v{lo}, v{hi}")
            a(f"v_lshlrev_b32 v{lo}, 16, v198\n v_and_b32 v{hi}, s78, v198\n v_mul_f32 v{lo}, v{lo}, v197\n v_mul_f32 v{hi}, v{hi}, v197")
            a(f"v_cvt_pk_bf16_f32 v{188+i}, v{lo}, v{hi}")
        a(f"v_lshrrev_b32 v198, 2, v0\n v_mul_u32_u24 v198, {IMG_T}, v198\n v_lshl_add_u32 v198, v94, 6, v198")
        a(f"s_lshl_b32 s82, s3, 4\n s_add_u32 s82, s82, {IMG}\n v_add_u32 v198, s82, v198")
        a("s_mov_b64 exec, vcc")
        a(f"ds_write_b128 v198, v[188:191]\n ds_write_b128 v198, v[192:195] offset:{9*IMG_T}")
        a("s_mov_b64 exec, -1")
        a("L_noln:")
    for n in range(18):
        if n == LNP: layernorm()
        if n == 16: a("s_cmp_eq_u32 s6, 1\n s_cbranch_scc1 L_kld")
        if WIN and n + KF >= WIN + FUN: a(f"s_waitcnt vmcnt({WIN + FUN - 1})")
        a(f"buffer_load_dwordx4 v3, s[16:19], s73 offen {NT} lds")
        if n < 17: a("s_addk_i32 m0, 0x1000\n s_add_u32 s73, s73, s71")
    a("L_kld:")
    nk = KF
    for i in range(NK1):
        kvload("k", nk); nk += 1
        if i == 0:
            srd(28, 56, 5308416); srd(32, 58, 5308416); srd(36, 62, 4608); srd(24, 60, 5308416)
            a(f"s_mov_b32 s79, {f2u(128 ** -0.5):#x}\n s_mov_b32 s80, {f2u(1.4426950408889634):#x}\n s_getreg_b32 s42, hwreg(HW_REG_XCC_ID, 0, 3)")
        if i == 1:
            a("v_lshrrev_b32 v97, 1, v92\n v_and_b32 v98, 1, v93\n v_lshl_or_b32 v97, v98, 1, v97\n v_xor_b32 v97, s3, v97")
            a("v_lshl_add_u32 v4, v93, 3, v92\n v_lshlrev_b32 v4, 7, v4\n v_lshl_add_u32 v4, v97, 5, v4\n v_lshl_add_u32 v4, v94, 3, v4\n v_add_u32 v5, 36864, v4")

    a(f"s_waitcnt vmcnt({NK1}) lgkmcnt(0)\n s_barrier\n s_add_u32 s54, s54, 16\n s_add_u32 s43, s54, s42")
    stamp(1)
    a("s_cmp_eq_u32 s3, 0\n s_cbranch_scc0 L_etr")
    a(f"s_lshl_b32 s82, s4, 5\n s_add_u32 s82, s82, s5\n s_add_u32 s83, s7, 256\n s_cmp_eq_u32 s6, 3\n s_cselect_b32 s82, s83, s82\n s_lshl_b32 s82, s82, 7\n s_add_u32 s82, s82, {WS_FL}")
    line_store("s43", "s82")
    a("L_etr:")
    def trread(dst, base_lo, base_hi, t):
        b, off = (base_lo, t * 4096) if t < 9 else (base_hi, (t - 9) * 4096)
        k, n = dst
        a(f"ds_read_b64_tr_b16 {k}[{n}:{n+1}], v{b} offset:{off}\n ds_read_b64_tr_b16 {k}[{n+2}:{n+3}], v{b} offset:{off+512}")
    for j in range(18):
        if j % 6 == 0:
            kvload("K", nk); nk += 1
            lab = a.label("L_ne"); a(f"s_cmp_lt_u32 s6, 2\n s_cbranch_scc0 {lab}")
        trread(("v", 100 + 4*j), 4, 5, j)
        if j % 6 == 5: a(f"{lab}:")
    a(f"s_cmp_eq_u32 s6, 0\n s_cbranch_scc0 {'L_k1' if QI else 'L_k2'}")
    a(f"v_lshl_add_u32 v198, v93, 2, v94\n v_lshlrev_b32 v198, 4, v198\n v_add_u32 v198, {IMG}, v198")
    for t in range(18): a(f"ds_read_b128 v[{20+4*t}:{23+4*t}], v198 offset:{t*IMG_T}")
    if QI: kvload("K", nk)
    a("s_waitcnt lgkmcnt(0)")
    for t in range(18):
        a(f"{MF} v[16:19], v[{100+4*t}:{103+4*t}], v[{20+4*t}:{23+4*t}], {'0' if t == 0 else 'v[16:19]'}")
        if QI and t in (8, 17): kvload("K", nk + 1 + t // 9)
    a("v_lshlrev_b32 v198, 8, v94\n v_bfe_u32 v97, v0, 4, 1\n v_lshl_add_u32 v198, v97, 6, v198\n v_bfe_u32 v97, v0, 5, 1\n v_lshl_add_u32 v198, v97, 4, v198")
    a(f"s_lshr_b32 s83, s3, 1\n s_lshl_b32 s83, s83, 7\n s_and_b32 s82, s3, 1\n s_lshl_b32 s82, s82, 5\n s_add_u32 s83, s83, s82\n s_add_u32 s83, s83, {CMB}\n v_add_u32 v198, s83, v198")
    a(f"v_add_u32 v199, {CMB}, v2\n v_and_b32 v97, 15, v0\n v_lshlrev_b32 v97, 4, v97\n v_lshl_add_u32 v97, v93, 14, v97\n s_lshl_b32 s82, s7, 8")
    a("v_cvt_pk_bf16_f32 v16, v16, v17\n v_cvt_pk_bf16_f32 v18, v18, v19\n v_mov_b32 v17, s54\n v_mov_b32 v19, s54")
    a("s_mov_b32 exec_lo, 0x000f000f\n s_mov_b32 exec_hi, 0x000f000f\n ds_write_b128 v198, v[16:19]\n s_mov_b64 exec, -1")
    a("s_cmp_eq_u32 s3, 0\n s_waitcnt lgkmcnt(0)\n s_barrier\n s_cbranch_scc0 L_k2")
    a("ds_read_b128 v[16:19], v199\n s_waitcnt lgkmcnt(0)")
    a("buffer_store_dwordx4 v[16:19], v97, s[20:23], s82 offen sc1")
    stamp(11)
    if QI:
        a("s_branch L_k2\nL_k1:")
        for i in range(3): kvload("k", nk); nk += 1
    a("L_k2:")
    C = []
    c = C.append
    M = "s[66:67]"
    c("s_sub_u32 s83, s70, 9\n s_mul_i32 s50, s83, 9363\n s_lshr_b32 s50, s50, 16\n s_mul_i32 s75, s50, 7\n s_sub_u32 s83, s83, s75\n s_cmp_gt_u32 s83, 2\n s_addc_u32 s83, s83, 0\n"
      "s_cmp_lt_u32 s70, 9\n s_cselect_b32 s50, s70, s50\n s_cselect_b32 s83, 3, s83\n s_lshl_b32 s50, s50, 3\n s_add_u32 s50, s50, s83")
    c(f"s_lshl_b32 s58, s50, 7\n s_mul_i32 s83, s3, 73728\n s_add_u32 s58, s58, s83\n s_mul_i32 s83, s51, {288*9216}\n s_add_u32 s58, s58, s83\n s_mov_b32 s73, s58\n"
      "s_lshl_b32 s59, s50, 1\n s_add_u32 s59, s59, s51\n s_lshl_b32 s59, s59, 2\n s_add_u32 s59, s59, s3\n s_mul_i32 s59, s59, 9216\n s_lshl_b32 s83, s3, 10\n s_mov_b32 m0, s83")
    c("s_movk_i32 s83, 9216\n v_mad_u32_u24 v6, v96, s83, v95\n s_movk_i32 s83, 1152\n v_mad_u32_u24 v3, v96, s83, v95\n"
      "v_bfe_u32 v97, v0, 1, 2\n v_mul_u32_u24 v97, 1152, v97\n v_bfe_u32 v98, v0, 5, 1\n v_lshl_add_u32 v97, v98, 6, v97\n v_bfe_u32 v98, v0, 3, 1\n v_lshl_add_u32 v97, v98, 5, v97")
    c("v_and_b32 v98, 1, v0\n v_lshl_add_u32 v97, v98, 4, v97\n v_bfe_u32 v98, v0, 4, 1\n v_lshl_add_u32 v97, v98, 3, v97\n"
      f"s_lshl_b32 s83, s3, 7\n s_mul_i32 s75, s51, 576\n s_add_u32 s83, s83, s75\n s_add_u32 s83, s83, {XIM}\n v_add_u32 v97, s83, v97\n ds_read_b64 v[192:193], v97\n ds_read_b64 v[194:195], v97 offset:512")
    c("v_mov_b32 v184, 0x3f803f80\n v_mov_b32 v185, v184\n v_mov_b32 v186, v184\n v_mov_b32 v187, v184\n"
      f"v_mul_u32_u24 v97, {IMG_T}, v0\n v_add_u32 v97, {IMG + 256}, v97\n s_mov_b64 exec, 0x1ff\n ds_write_b128 v97, v[184:187]\n s_mov_b64 exec, -1")
    c(f"v_mov_b32 v188, 0\n v_mov_b32 v189, 0\n v_mov_b32 v190, 0\n v_mov_b32 v191, 0\n v_mov_b32 v97, {ZER}\n ds_write_b128 v97, v[188:191]")
    c("s_waitcnt lgkmcnt(0)\n s_cmp_eq_u32 s3, 0\n s_cselect_b32 s66, -1, 0\n s_mov_b32 s67, 0\n"
      f"v_cndmask_b32 v194, 0, v194, {M}\n v_cndmask_b32 v195, 0, v195, {M}\n" +
      "\n".join(f"v_lshlrev_b32 v{172+2*i}, 16, v{192+i}\n v_and_b32 v{173+2*i}, s78, v{192+i}" for i in range(4)))
    c(f"v_and_b32 v97, 1, v0\n v_cmp_eq_u32 {M}, 1, v97\n v_mov_b32 v98, 0x3f80\n v_mov_b32 v99, 0x3f800000\n v_cndmask_b32 v98, v98, v99, {M}\n v_bfe_u32 v97, v0, 1, 3")
    c("\n".join(f"v_cmp_eq_u32 {M}, {d}, v97\n v_cndmask_b32 v{184+d}, 0, v98, {M}" for d in range(4)))
    c("\n".join(f"v_cmp_eq_u32 {M}, {d}, v97\n v_cndmask_b32 v{184+d}, 0, v98, {M}" for d in range(4, 8)))
    c(f"v_bfe_u32 v97, v0, 1, 2\n v_bfe_u32 v192, v0, 5, 1\n v_mul_u32_u24 v192, {IMG_T}, v192\n v_bfe_u32 v98, v0, 3, 1\n v_lshl_add_u32 v192, v98, 7, v192\n"
      "v_and_b32 v98, 1, v0\n v_lshl_add_u32 v192, v98, 6, v192\n v_lshl_add_u32 v192, v97, 4, v192\n v_bfe_u32 v98, v0, 4, 1\n v_lshl_add_u32 v192, v98, 3, v192")
    c(f"s_mul_i32 s83, s3, {2*IMG_T}\n s_add_u32 s83, s83, {IMG}\n v_add_u32 v192, s83, v192\n"
      f"v_lshlrev_b32 v193, 7, v97\n v_lshl_add_u32 v193, v93, 3, v193\n s_lshl_b32 s83, s3, 5\n s_add_u32 s83, s83, {HST}\n v_add_u32 v193, s83, v193")
    c(f"v_lshl_add_u32 v194, v93, 2, v92\n v_lshlrev_b32 v194, 4, v194\n v_add_u32 v99, {ACT}, v194\n v_mov_b32 v98, 256\n v_cmp_eq_u32 {M}, 1, v94\n v_cndmask_b32 v194, v194, v98, {M}\n v_add_u32 v194, {IMG}, v194\n"
      f"v_lshlrev_b32 v195, 3, v0\n v_add_u32 v195, {HST}, v195")
    c(f"v_mov_b32 v98, {ZER}\n" + "\n".join(f"v_cmp_eq_u32 {M}, {e}, v94\n v_cndmask_b32 v{197+e}, v98, v99, {M}" for e in range(4)))
    c("v_bfe_u32 v196, v0, 3, 1\n v_lshlrev_b32 v196, 6, v196\n v_lshl_add_u32 v196, v93, 4, v196\n v_and_b32 v98, 7, v0\n v_lshl_add_u32 v196, v98, 1, v196\n"
      f"s_and_b32 s83, s3, 1\n s_lshl_b32 s83, s83, 7\n s_add_u32 s83, s83, {ACT}\n v_add_u32 v196, s83, v196\n v_mul_u32_u24 v203, 18432, v96\n v_lshl_add_u32 v203, v98, 4, v203\n"
      f"v_lshlrev_b32 v204, 5, v92\n v_lshl_add_u32 v204, v93, 3, v204\n v_add_u32 v204, {8*18432}, v204")
    c(f"v_bfe_u32 v97, v0, 5, 1\n v_lshlrev_b32 v97, 6, v97\n v_lshl_add_u32 v97, v92, 4, v97\n v_bfe_u32 v98, v0, 4, 1\n v_lshl_add_u32 v97, v98, 3, v97\n v_add_u32 v97, {IMG}, v97\n"
      "s_mul_i32 s75, s51, 9\n s_cmp_eq_u32 s70, 0\n s_cselect_b32 s75, s75, 64\n s_lshl_b32 s83, s3, 1\n s_sub_u32 s83, s83, s75\n v_bfe_u32 v98, v0, 1, 1\n v_add_u32 v98, s83, v98")
    c(f"v_and_b32 v99, 1, v0\n v_lshl_add_u32 v99, v99, 7, v97\n s_movk_i32 s83, {IMG_T}\n v_mov_b32 v183, {ZER}\n"
      f"v_mad_i32_i24 v180, v98, s83, v99\n v_cmp_gt_u32 {M}, 9, v98\n v_add_u32 v98, 8, v98\n v_cndmask_b32 v180, v183, v180, {M}\n"
      f"v_mad_i32_i24 v181, v98, s83, v99\n v_cmp_gt_u32 {M}, 9, v98\n v_cndmask_b32 v181, v183, v181, {M}")
    c(f"s_lshr_b32 s83, s3, 1\n s_add_u32 s83, s83, 16\n s_sub_u32 s83, s83, s75\n s_cmp_lt_u32 s83, 9\n s_cselect_b64 {M}, -1, 0\n s_mul_i32 s83, s83, {IMG_T}\n s_and_b32 s75, s3, 1\n s_lshl_b32 s75, s75, 7\n s_add_u32 s83, s83, s75\n"
      f"v_add_u32 v182, s83, v97\n v_cndmask_b32 v182, v183, v182, {M}")
    c(f"s_lshl_b32 s83, s3, 5\n v_xor_b32 v248, s83, v4\n s_lshl_b32 s83, s3, 12\n s_add_u32 s83, s83, {R1}\n v_add_u32 v248, s83, v248\n v_xor_b32 v249, 32, v248\n v_xor_b32 v250, 64, v248\n v_xor_b32 v251, 64, v249\n v_add_u32 v252, {R1 + 32768}, v4\n"
      f"s_lshl_b32 s83, s4, 10\n s_add_u32 s83, s83, {WS_SB}\n v_lshlrev_b32 v207, 7, v93\n v_add_u32 v207, s83, v207")
    c(f"s_mul_i32 s62, s3, {9*18432}\n s_lshl_b32 s83, s2, 7\n s_add_u32 s62, s62, s83\n s_add_u32 s62, s62, {WS_C}\n"
      f"s_mul_i32 s65, s51, 18432\n s_add_u32 s65, s65, {WS_B}\n s_lshl_b32 s63, s3, 12\n s_add_u32 s63, s63, s65\n s_add_u32 s65, s65, 16384\n s_lshl_b32 s61, s4, 7\n s_add_u32 s61, s61, {WS_SC}")
    Wl = []
    w = Wl.append
    w(f"v_and_b32 v97, 15, v0\n v_and_b32 v172, 7, v0\n v_xor_b32 v172, v172, v93\n v_lshlrev_b32 v172, 4, v172\n v_lshl_add_u32 v172, v97, 8, v172")
    w(f"s_lshl_b32 s83, s3, 12\n s_add_u32 s83, s83, {OIM}\n v_add_u32 v172, s83, v172\n v_xor_b32 v173, 64, v172")
    w(f"v_xor_b32 v174, v97, v93\n v_lshlrev_b32 v174, 4, v174\n v_lshl_add_u32 v174, v93, 8, v174\n v_add_u32 v174, {OIM}, v174\n v_xor_b32 v175, 64, v174")
    w("v_lshlrev_b32 v176, 5, v92\n v_lshl_add_u32 v176, v93, 3, v176")
    w(f"v_lshlrev_b32 v177, 7, v0\n v_lshlrev_b32 v178, 4, v97\n v_add_u32 v178, {WTS}, v178\n s_lshl_b32 s83, s3, 2\n v_add_u32 v179, s83, v178\n v_mov_b32 v180, 0")
    w("s_lshr_b32 s83, s3, 1\n s_lshl_b32 s62, s7, 1\n s_add_u32 s62, s62, s83\n s_lshl_b32 s62, s62, 3\n s_add_u32 s62, s62, s4\n s_lshl_b32 s62, s62, 1")
    w(f"s_and_b32 s75, s3, 1\n s_add_u32 s62, s62, s75\n s_lshl_b32 s62, s62, 7\n s_add_u32 s62, s62, {WS_B}")
    w(f"s_lshl_b32 s63, s4, 2\n s_add_u32 s63, s63, s3\n s_lshl_b32 s63, s63, 12\n s_add_u32 s63, s63, {WS_A}")
    w(f"s_lshl_b32 s64, s4, 1\n s_add_u32 s64, s64, s83\n s_lshl_b32 s64, s64, 11\n s_lshl_b32 s75, s75, 2\n s_add_u32 s64, s64, s75\n s_add_u32 s64, s64, {WS_ST}")
    w(f"s_lshl_b32 s61, s4, 7\n s_add_u32 s61, s61, {WS_SB}")
    hooks = [(2, x) for x in C] + [(1, "\n".join(Wl[i:i+5])) for i in range(0, len(Wl), 5)]
    def late(n):
        if n == 9:  a("s_mov_b32 s73, s58")
        if n == 18: a("s_mov_b32 s73, s59")
        sr = (28, 32, 24)[n // 9]
        a(f"buffer_load_dwordx4 v{3 if n >= 18 else 6}, s[{sr}:{sr+3}], s73 offen {NT} lds")
        a("s_addk_i32 m0, 0x1000\n " + ("s_addk_i32 s73, 128" if n >= 18 else "s_add_u32 s73, s73, 294912"))
    a(f"s_cmp_lt_u32 s70, 9\n s_cselect_b32 s72, {N3F}, {NFF}\n s_cmp_eq_u32 s6, 3\n s_cselect_b32 s72, 0, s72\n s_cmp_eq_u32 s6, 0\n s_cselect_b32 s72, {NQF}, s72\n s_cmp_eq_u32 s6, 1\n s_cselect_b32 s72, {NWF}, s72")
    a("v_and_b32 v205, 7, v0\n v_lshlrev_b32 v205, 4, v205\n v_lshl_add_u32 v205, v96, 10, v205")
    k0 = nk
    while nk < 32:
        if WIN and nk - k0 < max(NQF, NWF, N3F, NFF):
            lab = a.label("L_t")
            a(f"s_cmp_gt_u32 s72, {nk - k0}\n s_cbranch_scc1 {lab}\n s_waitcnt vmcnt({WIN-1})\n{lab}:")
            kvload("K", nk)
        else: kvload("k", nk)
        nk += 1
        for _ in range(-(-len(hooks) // (32 - nk + 1))):
            role, code = hooks.pop(0)
            lab = a.label("L_h")
            a(f"s_cmp_eq_u32 s6, 1\n s_cbranch_scc0 {lab}" if role == 1 else f"s_bitcmp1_b32 s6, 0\n s_cbranch_scc1 {lab}"); a(code); a(f"{lab}:")
    def vfree(i):
        if QV:
            lab = a.label("L_t")
            a(f"s_cmp_gt_u32 s72, {32 - k0 + i}\n s_cbranch_scc1 {lab}\n s_waitcnt vmcnt({WIN-1})\n{lab}:")
            kvload("V", i)
        else: kvload("v", i)
    for i in range(QPOLL): vfree(i)

    a("v_bfe_u32 v62, v0, 2, 1\n v_lshlrev_b32 v62, 9, v62\n v_lshl_add_u32 v62, v93, 7, v62\n v_lshl_add_u32 v62, v94, 4, v62")
    a("s_lshl_b32 s56, s4, 5\n s_add_u32 s57, s56, s5\n s_xor_b32 s57, s57, 1\n s_add_u32 s56, s56, 18\n s_cmp_lt_u32 s5, 18\n s_cselect_b32 s57, s57, s56\n s_lshl_b32 s57, s57, 7")
    a("s_mul_i32 s83, s3, 14\n s_add_u32 s83, s83, 242\n s_movk_i32 s40, 0x3fff\n s_cmp_eq_u32 s3, 3\n s_cselect_b32 s40, 0xfff, s40\n s_cmp_eq_u32 s3, 0\n s_cselect_b32 s56, s56, s83\n s_cselect_b32 s40, 0x1ff, s40\n s_brev_b32 s41, 1")
    a(f"v_add_u32 v63, s56, v0\n v_lshlrev_b32 v63, 7, v63\n v_writelane_b32 v63, s57, 63\n v_mov_b32 v61, s43\n s_mov_b32 s56, {WS_FL}")
    a("s_lshr_b32 s82, s77, 2\n s_lshl_b32 s82, s82, 14\n s_lshl_b32 s83, s76, 10\n s_add_u32 s82, s82, s83")
    def qpass():
        a("s_mov_b64 exec, s[40:41]\n buffer_load_dword v61, v63, s[20:23], s56 offen sc1\n s_mov_b64 exec, -1")
        a("buffer_load_dwordx4 v[52:55], v62, s[20:23], s82 offen sc1\n buffer_load_dwordx4 v[56:59], v62, s[20:23], s82 offen offset:64 sc1")
    stamp(2)
    qpass()
    nv = QPOLL
    for i in range(QL): vfree(nv); nv += 1
    a("v_and_b32 v97, 1, v0\n v_cmp_eq_u32 vcc, 1, v97\n v_mov_b32 v98, 0xffff\n v_mov_b32 v99, s78\n v_cndmask_b32 v98, v98, v99, vcc")
    a("v_bfe_u32 v97, v0, 3, 1\n v_bfe_u32 v99, v0, 1, 1\n v_lshl_or_b32 v97, v97, 1, v99")
    for d in range(4): a(f"v_cmp_eq_u32 vcc, {d}, v97\n v_cndmask_b32 v{12+d}, 0, v98, vcc")
    a("v_mov_b32 v7, 0xff800000\n s_mov_b32 s81, 0")
    a(f"s_waitcnt vmcnt({QL})\n s_branch L_qchk")
    a("L_qpoll:")
    qpass()
    a(f"s_add_u32 s81, s81, 1\n s_cmp_gt_u32 s81, {SPIN}\n s_waitcnt vmcnt(0)\n s_cbranch_scc1 L_qgo")
    a("L_qchk:")
    a("v_subrev_u32 v60, s54, v61\n v_lshrrev_b32 v60, 3, v60")
    for r in (53, 55, 57, 59): a(f"v_xor_b32 v{r}, s54, v{r}")
    a("v_or3_b32 v60, v60, v53, v55\n v_or3_b32 v60, v60, v57, v59\n v_cmp_ne_u32 vcc, 0, v60\n s_cbranch_vccnz L_qpoll")
    a("L_qgo:")
    a("v_cmp_ne_u32 vcc, s43, v61\n v_mov_b32 v8, v52\n v_mov_b32 v9, v54\n v_mov_b32 v10, v56\n v_mov_b32 v11, v58\n s_cmp_eq_u32 vcc_lo, 0\n s_cselect_b32 s55, 1, 0\n s_cmp_eq_u32 vcc_hi, 0\n s_cselect_b32 s49, 1, 0")
    if diag: a("v_writelane_b32 v255, s81, 13")
    stamp(3)

    def qk(gi):
        for q in range(4):
            d = 52 + 16 * (gi & 1) + 4 * q; k = 16 * gi + 4 * q
            a(f"{MF} v[{d}:{d+3}], a[{k}:{k+3}], v[8:11], 0")
    qk(0)
    for gi in range(8):
        if gi < 7: qk(gi + 1)
        D = 52 + 16 * (gi & 1); T = 20 + 4 * gi
        for u in range(4):
            for q in range(4):
                if u == 0: a(f"v_mov_b32_dpp v{T+q}, v{D+4*q} quad_perm:[0,0,0,0] {DPP}")
                else:      a(f"v_add_f32_dpp v{T+q}, v{D+4*q+u}, v{T+q} quad_perm:[{u},{u},{u},{u}] {DPP}")
        a(f"v_max3_f32 v7, v{T}, v{T+1}, v7\n v_max3_f32 v7, v{T+2}, v{T+3}, v7")
        for rep in range(2):
            a(f"v_cvt_pk_bf16_f32 v97, v{T}, v{T+1}\n v_cvt_pk_bf16_f32 v98, v{T+2}, v{T+3}")
            a(f"v_lshlrev_b32 v{T}, 16, v97\n v_and_b32 v{T+1}, s78, v97\n v_lshlrev_b32 v{T+2}, 16, v98\n v_and_b32 v{T+3}, s78, v98")
            if rep == 0:
                for q in range(4): a(f"v_mul_f32 v{T+q}, s79, v{T+q}")
        kvload("v", nv); nv += 1
    xrow(7, 97, "v_max_f32")
    rnd(7); a("v_mul_f32 v7, s79, v7"); rnd(7)
    a("v_mul_f32 v52, s80, v7")
    for i in range(32): a(f"v_fma_f32 v{20+i}, v{20+i}, s80, -v52")
    kvload("v", nv); nv += 1
    for i in range(32):
        a(f"v_exp_f32 v{20+i}, v{20+i}")
        if i == 2: a("v_add_f32 v53, v20, v21")
        if i > 2:  a(f"v_add_f32 v53, v53, v{19+i}")
        if i == 15: kvload("v", nv); nv += 1
    a("v_add_f32 v53, v53, v51")
    kvload("v", nv); nv += 1
    xrow(53, 97, "v_add_f32")
    a(f"v_bfe_u32 v97, v0, 2, 1\n v_lshlrev_b32 v97, 5, v97\n s_lshl_b32 s82, s3, 3\n s_add_u32 s82, s82, {ST}\n v_add_u32 v97, s82, v97")
    a("s_mov_b64 exec, 0x11\n ds_write_b64 v97, v[52:53]\n s_mov_b64 exec, -1")
    stamp(4); flush()
    PB = {}
    def pbuild(i):
        if i in PB and PB[i][1]: return
        P = PB[i][0] if i in PB else 84 + 4 * (i & 1)
        a(f"v_cvt_pk_bf16_f32 v99, v{20+i}, v{20+i}")
        for d in range(4): a(f"v_and_b32 v{P+d}, v99, v{12+d}")
    def pv(i):
        P = PB[i][0] if i in PB else 84 + 4 * (i & 1)
        a(f"{MF} v[16:19], v[{P}:{P+3}], a[{128+4*i}:{131+4*i}], {'0' if i == 0 else 'v[16:19]'}")
    done = nv - LAG
    a(f"s_waitcnt vmcnt({LAG})")
    pbuild(0)
    for i in range(done):
        pbuild(i + 1); pv(i)
        if i % 5 == 4 and nv < 29: kvload("v", nv); nv += 1
    a("s_waitcnt lgkmcnt(0)\n s_barrier")
    a(f"v_and_b32 v97, 1, v93\n v_lshlrev_b32 v97, 5, v97\n v_add_u32 v98, s82, v97\n v_add_u32 v97, {ST}, v97")
    a("ds_read_b128 v[56:59], v97\n ds_read_b128 v[60:63], v97 offset:16\n ds_read_b32 v64, v98")
    kvload("v", nv); nv += 1
    a("s_waitcnt lgkmcnt(0)")
    a("v_max3_f32 v65, v56, v58, v60\n v_max_f32 v65, v65, v62")
    for r in (56, 58, 60, 62, 64): a(f"v_sub_f32 v{r}, v{r}, v65")
    for r in (56, 58, 60, 62, 64): a(f"v_exp_f32 v{r}, v{r}")
    a("v_mul_f32 v66, v56, v57\n v_fmac_f32 v66, v58, v59\n v_fmac_f32 v66, v60, v61\n v_fmac_f32 v66, v62, v63")
    a("v_rcp_f32 v67, v66\n v_log_f32 v66, v66")
    a("v_mul_f32 v7, v64, v67")
    a("v_add_f32 v66, v66, v65\n v_min_u32 v66, -2, v66")
    a("s_cmp_eq_u32 s3, 0\n s_cbranch_scc0 L_nolse")
    a(f"s_lshl_b32 s82, s4, 5\n s_add_u32 s82, s82, s5\n s_lshl_b32 s82, s82, 7\n s_add_u32 s82, s82, {WS_ST}")
    a("v_and_b32 v67, 15, v0\n v_lshlrev_b32 v67, 3, v67\n v_lshl_add_u32 v67, v93, 2, v67\n s_mov_b32 exec_hi, 0")
    near_store("buffer_store_dword v66, v67, s[20:23], s82 offen")
    a("s_mov_b32 exec_hi, -1")
    a("L_nolse:")
    a(f"s_waitcnt vmcnt({LAG})"); pv(done); done += 1
    while done < nv - LAG:
        pbuild(done); pv(done); done += 1
    a(f"s_lshl_b32 s82, s76, 13\n s_lshl_b32 s83, s77, 8\n s_add_u32 s82, s82, s83\n s_add_u32 s57, s82, {WS_A}")
    a("v_and_b32 v97, 15, v0\n v_lshlrev_b32 v97, 4, v97\n v_lshl_add_u32 v97, v93, 12, v97")
    a(f"s_lshl_b32 s82, s3, 10\n s_add_u32 s82, s82, {CMB}\n v_add_u32 v98, s82, v2")
    todo = list(range(32 - LAG, 32))
    while nv < 32:
        kvload("v", nv); nv += 1
        k = -(-len(todo) // (32 - nv + 1))
        for i in todo[:k]:
            PB[i] = [212 + 4 * (31 - i), False]; pbuild(i); PB[i][1] = True
        todo = todo[k:]
        pbuild(done); a(f"s_waitcnt vmcnt({LAG})"); pv(done); done += 1
    if "c" in X:
        a("s_waitcnt vmcnt(0)"); stamp(5); flush(); dump(); a("s_endpgm")
    a("s_bitcmp1_b32 s6, 0\n s_cbranch_scc0 L_ft")
    def lsepass(): a("s_mov_b64 exec, 0xffff\n buffer_load_dword v180, v177, s[20:23], s64 offen sc1\n s_mov_b64 exec, -1")
    a("s_cmp_eq_u32 s6, 1\n s_cbranch_scc0 L_nw")
    lsepass()
    a("L_x1:")
    for i in range(done, 32):
        a(f"s_waitcnt vmcnt({32 - i})"); pv(i)
    a("s_nop 6\n s_branch L_comb")
    a("L_nw:")
    for i in range(done, 32):
        a(f"s_waitcnt vmcnt({31 - i})"); pv(i)
    a("s_nop 6\n s_branch L_comb")
    a("L_ft:")
    nl = 0
    for i in range(done, 32):
        if nl < NTF: late(nl); nl += 1
        a(f"s_waitcnt vmcnt({31 - i + nl})"); pv(i)
    a("s_nop 7")
    a("L_comb:")
    stamp(5)
    for i in range(4): a(f"v_mul_f32 v{16+i}, v{16+i}, v7")
    a("ds_write_b128 v98, v[16:19]\n s_cmp_eq_u32 s3, 0\n s_waitcnt lgkmcnt(0)\n s_barrier\n s_cbranch_scc0 L_pubd")
    for w in range(1, 4): a(f"ds_read_b128 v[{52+4*w}:{55+4*w}], v98 offset:{1024*w}")
    for w in range(1, 4):
        a(f"s_waitcnt lgkmcnt({3 - w})")
        a(f"v_pk_add_f32 v[16:17], v[16:17], v[{52+4*w}:{53+4*w}]\n v_pk_add_f32 v[18:19], v[18:19], v[{54+4*w}:{55+4*w}]")
    a("v_cvt_pk_bf16_f32 v16, v16, v17\n v_cvt_pk_bf16_f32 v17, v18, v19\n v_min_u32 v16, -2, v16\n v_min_u32 v17, -2, v17")
    a("v_permlane32_swap_b32 v16, v18\n v_permlane32_swap_b32 v17, v19\n s_mov_b32 exec_hi, 0")
    near_store("buffer_store_dwordx4 v[16:19], v97, s[20:23], s57 offen")
    a("s_mov_b32 exec_hi, -1")
    a("L_pubd:")
    stamp(6)
    base_pend = list(pend)
    a("s_mov_b32 s81, 0\n s_bitcmp1_b32 s6, 0\n s_cbranch_scc0 L_F\n s_cmp_eq_u32 s6, 1\n s_cbranch_scc0 L_R")

    def apass():
        for i in range(4): a(f"buffer_load_dwordx4 v[{20+4*i}:{23+4*i}], v2, s[20:23], s63 offen offset:{1024*i} sc1")
    apass()
    a("s_waitcnt vmcnt(5)\n s_cmp_eq_u32 s3, 0\n s_cbranch_scc1 L_tab1\n s_waitcnt vmcnt(4)\n s_branch L_tab1")
    a("L_tab:")
    lsepass(); a("s_waitcnt vmcnt(0)")
    a("L_tab1:")
    spin_end(180, "L_tab")
    a(f"v_max_f32_dpp v181, v180, v180 quad_perm:[1,0,3,2] {DPP}\n v_max_f32_dpp v181, v181, v181 quad_perm:[2,3,0,1] {DPP}")
    a("v_sub_f32 v180, v180, v181\n v_exp_f32 v180, v180")
    a(f"v_add_f32_dpp v181, v180, v180 quad_perm:[1,0,3,2] {DPP}\n v_add_f32_dpp v181, v181, v181 quad_perm:[2,3,0,1] {DPP}")
    a("v_rcp_f32 v181, v181\n v_mul_f32 v180, v180, v181\n s_mov_b64 exec, 0xffff\n ds_write_b32 v179, v180\n s_mov_b64 exec, -1")
    a("v_mov_b32 v8, s54\n v_mov_b32 v9, s54\n v_mov_b32 v10, s54\n v_mov_b32 v11, s54\n v_mov_b32 v12, v205\n s_add_u32 s82, s3, s7")
    a("s_branch L_wchk")
    a("L_wa:")
    a("s_mov_b64 exec, vcc"); apass(); a("s_mov_b64 exec, -1")
    a("L_wchk:")
    for i in range(4):
        a(f"s_waitcnt vmcnt({3 - i})\n ds_write_b128 v{172 + (i & 1)}, v[{20+4*i}:{23+4*i}] offset:{128 * (i >> 1)}")
        chk4(99, 20 + 4*i, i == 0)
    a("s_waitcnt lgkmcnt(0)")
    spin_end(99, "L_wa")
    stamp(10)
    if diag: a("s_waitcnt lgkmcnt(0)")
    a("s_cmp_eq_u32 s82, 0\n s_barrier")
    a("s_cbranch_scc0 L_wns\n buffer_store_dwordx4 v[8:11], v12, s[20:23], s61 offen sc1")
    a("L_wns:")
    for tt in range(16):
        a(f"ds_read_b128 v[{188+4*tt}:{191+4*tt}], v{174 + (tt & 1)} offset:{1024*tt}")
        if tt == 7: a("ds_read_b128 v[20:23], v178")
    def wfma(hh, i):
        a(f"v_mul_f32 v{52+i}, v{36+i}, v20" if hh == 0 else f"v_fmac_f32 v{52+i}, v{36+4*hh+i}, v{20+hh}")
    for tt in range(16):
        hh, t = tt >> 2, tt & 3
        a(f"s_waitcnt lgkmcnt({min(15, 15 - tt + (tt < 8))})")
        a(f"{MF} v[{36+4*hh}:{39+4*hh}], v[{100+4*tt}:{103+4*tt}], v[{188+4*tt}:{191+4*tt}], {'0' if t == 0 else f'v[{36+4*hh}:{39+4*hh}]'}")
        if hh >= 2: wfma(hh - 2, t)
    a("s_mov_b32 s82, 0x11111111\n s_mov_b32 s83, 0x11111111")
    for hh in (2, 3):
        for i in range(4): wfma(hh, i)
    for ctl in ("quad_perm:[1,0,3,2]", "quad_perm:[2,3,0,1]"):
        for i in range(4): a(f"v_add_f32_dpp v{52+i}, v{52+i}, v{52+i} {ctl} {DPP}")
    a("v_cvt_pk_bf16_f32 v52, v52, v53\n v_cvt_pk_bf16_f32 v53, v54, v55\n v_min_u32 v52, -2, v52\n v_min_u32 v53, -2, v53")
    a("s_mov_b64 exec, s[82:83]")
    a("buffer_store_dwordx2 v[52:53], v176, s[20:23], s62 offen sc1\n s_mov_b64 exec, -1\n s_mov_b32 s81, 0")
    stamp(9); flush()

    if diag:
        a("s_branch L_R2")
        pend[:] = base_pend
    a("L_R:")
    flush()
    a("L_R2:")
    a("s_cmp_eq_u32 s3, 0\n s_cbranch_scc0 L_fin")
    a("v_and_b32 v97, 1, v0\n v_cmp_eq_u32 vcc, 1, v97\n v_mov_b32 v98, 0x3f80\n v_mov_b32 v99, 0x3f800000\n v_cndmask_b32 v98, v98, v99, vcc\n v_bfe_u32 v97, v0, 1, 3")
    for d in range(4): a(f"v_cmp_eq_u32 vcc, {d}, v97\n v_cndmask_b32 v{8+d}, 0, v98, vcc")
    if R72:
        a("s_sub_u32 s59, s5, 27\n s_cmp_eq_u32 s6, 1\n s_cselect_b32 s59, s7, s59\n s_cselect_b32 s57, 1, 0\n s_cmp_lt_u32 s59, 4\n s_cbranch_scc0 L_r8")
        a("v_lshlrev_b32 v28, 5, v94\n v_lshl_add_u32 v28, v93, 9, v28")
        a("s_lshr_b32 s82, s4, 1\n s_and_b32 s83, s4, 1")
        a("s_mul_i32 s7, s82, 9\n s_add_u32 s7, s7, s83\n s_lshl_b32 s58, s59, 1\n s_add_u32 s7, s7, s58")
        a("s_lshl_b32 s83, s83, 1\n s_add_u32 s83, s83, s57\n s_mul_i32 s58, s83, 1152\n s_lshl_b32 s82, s82, 7\n s_add_u32 s58, s58, s82\n s_lshl_b32 s59, s59, 3\n s_add_u32 s58, s58, s59\n s_branch L_r9")
        a("L_r8:")
        a("s_cmp_eq_u32 s57, 1\n s_cbranch_scc0 L_fin\n s_cmp_lt_u32 s59, 8\n s_cbranch_scc0 L_fin\n s_cmp_lt_u32 s4, 2\n s_cbranch_scc0 L_fin")
        a("v_bfe_u32 v28, v0, 1, 1\n v_mul_u32_u24 v28, 1152, v28\n v_and_b32 v98, 1, v0\n v_lshl_add_u32 v28, v98, 4, v28\n v_lshl_add_u32 v28, v93, 3, v28")
        a("s_sub_u32 s7, s59, 4\n s_mov_b32 s57, s4\n s_lshl_b32 s58, s7, 5\n s_mul_i32 s82, s57, 2304\n s_add_u32 s58, s58, s82\n s_add_u32 s58, s58, 1024\n s_mul_i32 s7, s7, 9\n s_add_u32 s7, s7, 8")
        a("L_r9:")
        a(f"s_mul_i32 s44, s7, 18432\n s_lshl_b32 s82, s57, 6\n s_add_u32 s44, s44, s82\n s_add_u32 s44, s44, {WS_C}\n s_add_u32 s7, s7, s57")
        a("v_lshrrev_b32 v31, 2, v0\n v_lshlrev_b32 v31, 7, v31\n v_lshl_add_u32 v31, v94, 4, v31")
        for i in range(1, 5): a(f"s_add_u32 s{44+i}, s44, {4096*i}")
    else:
        a("s_cmp_eq_u32 s6, 1\n s_cbranch_scc1 L_r8\n s_cmp_lt_u32 s7, 32\n s_cbranch_scc0 L_fin")
        a("v_bfe_u32 v28, v0, 2, 1\n v_mul_u32_u24 v28, 1152, v28\n v_lshl_add_u32 v28, v94, 5, v28\n v_lshl_add_u32 v28, v93, 9, v28")
        a("s_lshr_b32 s82, s4, 1\n s_and_b32 s83, s4, 1\n s_sub_u32 s59, s5, 27")
        a("s_mul_i32 s7, s82, 9\n s_add_u32 s7, s7, s83\n s_lshl_b32 s58, s59, 1\n s_add_u32 s7, s7, s58")
        a("s_mul_i32 s58, s83, 2304\n s_lshl_b32 s82, s82, 7\n s_add_u32 s58, s58, s82\n s_lshl_b32 s59, s59, 3\n s_add_u32 s58, s58, s59\n s_branch L_r9")
        a("L_r8:")
        a("s_lshl_b32 s82, s4, 2\n s_add_u32 s82, s82, s7\n s_cmp_lt_u32 s82, 4\n s_cbranch_scc0 L_fin")
        a("v_bfe_u32 v28, v0, 1, 2\n v_mul_u32_u24 v28, 1152, v28\n v_and_b32 v98, 1, v0\n v_lshl_add_u32 v28, v98, 4, v28\n v_lshl_add_u32 v28, v93, 3, v28")
        a("s_lshl_b32 s58, s7, 5\n s_add_u32 s58, s58, 1024\n s_mul_i32 s7, s7, 9\n s_add_u32 s7, s7, 8")
        a("L_r9:")
        a(f"s_mul_i32 s44, s7, 18432\n s_add_u32 s44, s44, {WS_C}")
        for i in range(1, 5): a(f"s_add_u32 s{44+i}, s44, {4096*i}")
    a(f"v_lshlrev_b32 v29, 7, v0\n s_lshl_b32 s61, s4, 10\n s_add_u32 s61, s61, {WS_SC}\n s_mov_b32 s60, 0\n s_mov_b64 exec, 0xff")
    if PIPE: a("buffer_load_dword v30, v29, s[20:23], s61 offen sc1")
    a("L_rs:")
    a(f"buffer_load_dword v30, v29, s[20:23], s61 offen sc1\n s_add_u32 s60, s60, 1\n s_cmp_gt_u32 s60, {SPIN}\n s_cbranch_scc1 L_rs1")
    a(f"s_waitcnt vmcnt({PIPE})\n v_cmp_ne_u32 vcc, s54, v30\n s_cbranch_vccnz L_rs")
    a("L_rs1:")
    stamp(12)
    a("s_mov_b64 vcc, -1")
    a("L_ra:")
    a("s_mov_b64 exec, vcc")
    NR = 9 if R72 else 18
    for i in range(NR):
        if R72: a(f"buffer_load_dwordx4 v[{100+4*i}:{103+4*i}], v31, s[20:23], s{44+(i>>1)} offen offset:{2048*(i&1)} sc1")
        else:   a(f"buffer_load_dwordx4 v[{100+4*i}:{103+4*i}], v2, s[20:23], s{44+(i>>2)} offen offset:{1024*(i&3)} sc1")
    a("s_mov_b64 exec, -1")
    for i in range(NR):
        a(f"s_waitcnt vmcnt({NR - 1 - i})")
        a(f"{MF} v[52:55], v[8:11], v[{100+4*i}:{103+4*i}], {'0' if i == 0 else 'v[52:55]'}")
        chk4(99, 100 + 4*i, i == 0)
    spin_end(99, "L_ra")
    stamp(7)
    for i in range(4): a(f"v_add_f32_dpp v{52+i}, v{52+i}, v{52+i} row_ror:8 {DPP}")
    if R72:
        for i in range(4): a(f"v_add_f32_dpp v{52+i}, v{52+i}, v{52+i} row_ror:4 {DPP}")
    a("v_cvt_pk_bf16_f32 v52, v52, v53\n v_cvt_pk_bf16_f32 v53, v54, v55")
    a(f"s_mov_b64 exec, {0x000f000f if R72 else 0x00ff00ff:#x}\n buffer_store_dwordx2 v[52:53], v28, s[36:39], s58 offen")
    a(f"s_cmp_eq_u32 s7, 0\n s_cbranch_scc0 L_rend\n s_mov_b32 exec_lo, -1\n v_mov_b32 v54, s54\n v_lshlrev_b32 v55, 2, v0\n s_mov_b32 s82, {WS_EP}\n buffer_store_dword v54, v55, s[20:23], s82 offen sc1")
    a("L_rend:")
    if probe >= 0:
        if probe == 99: a("s_memrealtime s[86:87]")
        a("s_memrealtime s[88:89]\n s_waitcnt lgkmcnt(0)\n s_sub_u32 s86, s86, s84")
        a("L_probe:")
        a("s_memrealtime s[90:91]\n s_waitcnt lgkmcnt(0)\n s_sub_u32 s90, s90, s88\n s_cmp_lt_u32 s90, s86\n s_cbranch_scc1 L_probe")
    stamp(8); flush(); dump()
    a("s_endpgm")
    emit_stubs()
    a("L_fin:")
    dump()
    a("s_endpgm")
    pend[:] = base_pend
    if AL: a(".p2align 12")
    a("L_F:")
    a("s_barrier")
    def sigld(): a("buffer_load_dword v88, v207, s[20:23], 0 offen sc1\n buffer_load_dword v89, v207, s[20:23], 0 offen offset:512 sc1")
    for n in range(nl, 28):
        if n == 27 - SP:
            if PW: a("buffer_load_dwordx4 v[56:59], v2, s[20:23], s52 offen sc1")
            sigld()
        if n < 27: late(n)
    for i in range(8): a(f"v_mov_b32 v{36+i}, 0")
    a("v_mov_b32 v60, s54\n v_mov_b32 v61, s54\n v_mov_b32 v62, s54\n v_mov_b32 v63, s54")
    a("s_mul_i32 s48, s51, 3\n s_add_u32 s48, s48, s3" if CNT == 1 else "s_sub_u32 s48, s3, s51\n s_add_u32 s48, s48, 2")
    a(f"s_lshl_b32 s64, s4, 7\n s_add_u32 s64, s64, {WS_CT}\n v_mov_b32 v66, 1\n v_mov_b32 v67, 0")
    a(f"s_mov_b32 s66, 0xaaaaaaaa\n s_mov_b32 s67, 0xaaaaaaaa\n v_mov_b32 v64, {f2u(1/576):#x}\n v_mov_b32 v65, {f2u(-2 * 0.7978845608028654 * 1.4426950408889634):#x}")
    a(f"s_waitcnt vmcnt({11 + PW})\n s_barrier")
    for n in range(18): trread(("a", 4*n), 4, 5, n)
    def bloads(par):
        lab = a.label("L_fb")
        a(f"s_cmp_eq_u32 s3, 0\n s_cbranch_scc0 {lab}")
        for p in par: a(f"buffer_load_dwordx4 v[{36+4*p}:{39+4*p}], v2, s[20:23], s65 offen offset:{1024*p} sc1")
        a(f"{lab}:")
        for p in par:
            for hf in range(2): a(f"buffer_load_dwordx4 v[{20+8*hf+4*p}:{23+8*hf+4*p}], v2, s[20:23], s63 offen offset:{2048*hf+1024*p} sc1")
    def sigstep():
        l1, l2 = a.label("L_fs"), a.label("L_fs")
        a("v_cmp_eq_u32 s[40:41], s54, v88\n v_cmp_eq_u32 s[42:43], s54, v89")
        a(f"s_andn2_b64 exec, s[40:41], s[44:45]\n s_cbranch_execz {l1}")
        bloads((0,))
        a(f"{l1}:\n s_andn2_b64 exec, s[42:43], s[46:47]\n s_cbranch_execz {l2}")
        bloads((1,))
        a(f"{l2}:\n s_mov_b64 exec, -1\n s_mov_b64 s[44:45], s[40:41]\n s_mov_b64 s[46:47], s[42:43]")
    def dfrag(j):
        b, off = (248 + (j & 3), (j >> 2) * 16384) if j < 8 else (252, 0)
        a(f"ds_read_b64_tr_b16 v[{100+4*j}:{101+4*j}], v{b} offset:{off}\n ds_read_b64_tr_b16 v[{102+4*j}:{103+4*j}], v{b} offset:{off+512}")
    a(f"s_mov_b64 s[44:45], 0\n s_mov_b64 s[46:47], 0\n s_mov_b32 s60, 0\n s_waitcnt vmcnt({SP})")
    stamp(7)
    a("s_branch L_fs1")
    a("L_fs:")
    sigld()
    a(f"s_add_u32 s60, s60, 1\n s_cmp_gt_u32 s60, {SPIN}\n s_cbranch_scc1 L_fall\n s_waitcnt vmcnt(0)")
    a("L_fs1:")
    sigstep()
    a("s_and_b64 s[40:41], s[40:41], s[42:43]\n s_cmp_eq_u64 s[40:41], -1\n s_cbranch_scc0 L_fs")
    stamp(12)
    a("L_fdn:")
    a("s_cmp_eq_u32 s48, 3\n s_cbranch_scc0 L_fna\n s_mov_b64 exec, 1\n buffer_atomic_add v66, v67, s[20:23], s64 offen sc0 sc1\n s_mov_b64 exec, -1")
    a("s_waitcnt vmcnt(1)\n s_branch L_fchk")
    a("L_fall:")
    bloads((0, 1)); a("s_branch L_fdn")
    a("L_fa:")
    a("s_mov_b64 exec, vcc"); bloads((0, 1)); a("s_mov_b64 exec, -1")
    a("L_fna:")
    a("s_waitcnt vmcnt(0)")
    a("L_fchk:")
    HD = 68
    for k, (d, r, sel, cin) in enumerate(((HD+4, 36, 184, 176), (HD, 20, 184, 172), (HD+4, 40, 184, 0), (HD, 24, 184, 0), (HD, 28, 188, 0), (HD, 32, 188, 0))):
        cc = f"v[{cin}:{cin+3}]" if cin else f"v[{d}:{d+3}]"
        a(f"{MF} v[{d}:{d+3}], v[{sel}:{sel+3}], v[{r}:{r+3}], {cc}")
        chk4(99, r, k == 0)
    a(f"v_cvt_pk_bf16_f32 v82, v{HD+4}, v{HD+5}\n v_cvt_pk_bf16_f32 v83, v{HD+6}, v{HD+7}")
    spin_end(99, "L_fa")
    stamp(8)
    a(f"v_cvt_pk_bf16_f32 v80, v{HD}, v{HD+1}\n v_cvt_pk_bf16_f32 v81, v{HD+2}, v{HD+3}")
    a(f"s_cmp_eq_u32 s3, 0\n ds_write_b64 v192, v[80:81]\n s_cbranch_scc0 L_fw8\n ds_write_b64 v192, v[82:83] offset:{8*IMG_T}")
    a("L_fw8:")
    a(f"v_add_f32 v86, v{HD}, v{HD+1}\n v_mul_f32 v87, v{HD}, v{HD}\n v_fmac_f32 v87, v{HD+1}, v{HD+1}")
    for i in range(2, 5): a(f"v_add_f32 v86, v86, v{HD+i}\n v_fmac_f32 v87, v{HD+i}, v{HD+i}")
    a("s_waitcnt lgkmcnt(0)\n s_barrier")
    for t in range(9): a(f"ds_read_b128 v[{20+4*t}:{23+4*t}], v194 offset:{t*IMG_T}")
    dp = lambda ctl: [f"v_add_f32_dpp v{r}, v{r}, v{r} {ctl} {DPP}" for r in (86, 87)]
    for i in range(5, 8): a(f"v_add_f32 v86, v86, v{HD+i}\n v_fmac_f32 v87, v{HD+i}, v{HD+i}")
    for x in dp("quad_perm:[1,0,3,2]") + dp("row_ror:8"): a(x)
    a("ds_write_b64 v193, v[86:87]")
    for k in range(3): a(f"ds_read_b64 v[{80+2*k}:{81+2*k}], v{180+k}")
    side = {2: ["s_waitcnt lgkmcnt(0)", "s_barrier", "ds_read_b64 v[86:87], v195"],
            3: [f"v_lshlrev_b32 v{HD+2*i}, 16, v{80+i}" for i in range(3)],
            4: [f"v_lshlrev_b32 v{HD+2*i}, 16, v{80+i}" for i in range(3, 6)],
            5: ["s_waitcnt lgkmcnt(0)"] + dp("quad_perm:[1,0,3,2]"),
            6: dp("quad_perm:[2,3,0,1]") + [f"v_and_b32 v{HD+1}, s78, v80"],
            7: dp("row_half_mirror") + [f"v_and_b32 v{HD+3}, s78, v81"],
            8: dp("row_mirror") + [f"v_and_b32 v{HD+1+2*i}, s78, v{80+i}" for i in range(2, 6)]}
    xld = "buffer_load_dwordx4 v[56:59], v2, s[20:23], s52 offen sc1"
    for t in range(9):
        h = 20 + 4 * t
        if t <= 2: a(f"s_waitcnt lgkmcnt({12 - t})")
        a(f"{MF} v[8:11], v[{h}:{h+3}], a[{4*t}:{4*t+3}], {'0' if t == 0 else 'v[8:11]'}")
        a(f"{MF} v[12:15], v[{h}:{h+3}], a[{36+4*t}:{39+4*t}], {'0' if t == 0 else 'v[12:15]'}")
        for x in side.get(t, []): a(x)
    a("s_cmp_eq_u32 s53, 1\n s_cbranch_scc1 L_frx")
    a("v_cndmask_b32 v11, v86, v87, s[66:67]\n v_cvt_pk_bf16_f32 v10, v9, v13\n v_min_u32 v8, -2, v8\n v_min_u32 v9, -2, v12\n v_min_u32 v10, -2, v10\n v_min_u32 v11, -2, v11")
    near_store("buffer_store_dwordx4 v[8:11], v2, s[20:23], s52 offen", "s49")
    for j in range(9): dfrag(j)
    a("s_branch L_fact")
    a("L_frx:")
    if PIPE: a(xld)
    for j in range(9): dfrag(j)
    a("L_frx1:")
    a(f"{xld}\n s_waitcnt vmcnt({PIPE})")
    def lastsig():
        a("s_cmp_eq_u32 s82, 16\n s_cbranch_scc0 L_fnc\n buffer_store_dwordx4 v[60:63], v205, s[20:23], s61 offen sc1\nL_fnc:")
    chk4(99, 56, True); spin_end(99, "L_frx1")
    a("v_readfirstlane_b32 s82, v66")
    if CNT == 2: lastsig()
    c1 = -2 * 0.7978845608028654 * 1.4426950408889634
    a(f"v_add_f32_dpp v86, v59, v86 quad_perm:[0,0,2,2] {DPP}\n v_add_f32_dpp v87, v59, v87 quad_perm:[1,1,3,3] {DPP}")
    a("v_lshlrev_b32 v10, 16, v58\n v_and_b32 v11, s78, v58")
    a(f"v_mul_f32 v86, {f2u(1/576):#x}, v86\n v_fmaak_f32 v87, v87, v64, {f2u(1e-5):#x}")
    a("v_add_f32 v9, v9, v10\n v_fma_f32 v87, -v86, v86, v87\n v_add_f32 v8, v8, v56\n v_rsq_f32 v87, v87")
    a("v_fma_f32 v8, -v86, v9, v8\n v_add_f32 v13, v13, v11\n v_mul_f32 v8, v8, v87\n v_add_f32 v12, v12, v57")
    a(f"v_mul_f32 v9, v8, v8\n v_fma_f32 v12, -v86, v13, v12\n v_fmamk_f32 v9, v9, {f2u(c1 * 0.044715):#x}, v65\n v_mul_f32 v12, v12, v87\n v_mul_f32 v9, v9, v8")
    a("v_exp_f32 v9, v9\n v_mul_f32 v8, v8, v12\n v_add_f32 v9, 1.0, v9\n v_rcp_f32 v9, v9\n v_mul_f32 v8, v8, v9")
    a("v_cvt_pk_bf16_f32 v8, v8, v8\n ds_write_b16 v196, v8")
    if CNT == 3: lastsig()
    a("s_waitcnt lgkmcnt(0)")
    a("L_fact:")
    a("s_barrier")
    stamp(9)
    if diag: a("s_waitcnt lgkmcnt(0)")
    for e in range(4): a(f"ds_read_b128 v[{20+4*e}:{23+4*e}], v{197+e}")
    for e in range(4):
        a(f"s_waitcnt lgkmcnt({3 - e})")
        for acc in (2, 0, 1):
            if acc == 2 and e > 0: continue
            w = 100 + 4 * (4 * acc + e)
            a(f"{MF} v[{HD+4*acc}:{HD+3+4*acc}], v[{w}:{w+3}], v[{20+4*e}:{23+4*e}], v[{HD+4*acc}:{HD+3+4*acc}]")
    a(f"v_cvt_pk_bf16_f32 v84, v{HD+8}, v{HD+9}\n v_cvt_pk_bf16_f32 v85, v{HD+10}, v{HD+11}\n v_min_u32 v84, -2, v84\n v_min_u32 v85, -2, v85")
    a("s_mov_b32 exec_lo, 0x11111111\n s_mov_b32 exec_hi, 0x11111111")
    a("buffer_store_dwordx2 v[84:85], v204, s[20:23], s62 offen sc1\n s_mov_b64 exec, -1")
    for i in range(4): a(f"v_cvt_pk_bf16_f32 v{80+i}, v{HD+2*i}, v{HD+1+2*i}")
    for i in range(4): a(f"v_min_u32 v{80+i}, -2, v{80+i}")
    a("buffer_store_dwordx4 v[80:83], v203, s[20:23], s62 offen sc1")
    stamp(10); flush(); dump()
    a("s_endpgm")
    emit_stubs()

    a("L_end:")
    if not SAN:
        from asmlib import Ins
        for i, it in enumerate(a.items):
            if isinstance(it, Ins) and it.op == "v_min_u32" and it.ops[1] == "-2":
                a.items[i] = Ins(f"v_mov_b32 {it.ops[0]}, {it.ops[2]}") if it.ops[0] != it.ops[2] else None
        a.items = [x for x in a.items if x is not None]
    body = a.finish().replace("CODE_REST", "L_end-L_pc")
    return f"""{HEADER}; @launch grid=(256,1,1) block=(256,1,1) lds={LDS_BYTES}
.amdgcn_target "amdgcn-amd-amdhsa--gfx950"
.text
.globl {KN}
.p2align 8
.type {KN},@function
{KN}:
{body}
    s_endpgm
.section .rodata,"a"
.p2align 6
.amdhsa_kernel {KN}
  .amdhsa_next_free_vgpr 512
  .amdhsa_next_free_sgpr 102
  .amdhsa_accum_offset 256
  .amdhsa_group_segment_fixed_size 0
  .amdhsa_kernarg_size 96
  .amdhsa_user_sgpr_count 2
  .amdhsa_user_sgpr_kernarg_segment_ptr 1
  .amdhsa_system_sgpr_workgroup_id_x 1
.end_amdhsa_kernel
"""

if __name__ == "__main__":
    out = sys.argv[1]
    kw = {}
    for x in sys.argv[2:]:
        k, v = x.split("=")
        kw[k] = int(v) if v.lstrip("-").isdigit() else v
    open(out, "w").write(gen(**kw))
```

```python
import sys, struct
from asmlib import Asm

KN = "sequential_preLN__sliding_block_cached__geglu_ffn__decode_kernel"
HEADER = open("sequential_preLN__sliding_block_cached__geglu_ffn__decode.s.ref").read().split("; Override launch")[0]

def f2u(x): return struct.unpack("<I", struct.pack("<f", x))[0]

WS_Q   = 0x0
WS_EP  = 0x10000
WS_FL  = 0x10400
WS_SB  = 0x1A000
WS_SC  = 0x1C000
WS_X   = 0x1E000
WS_ST  = WS_X + 294912
WS_A   = WS_ST + 32768
WS_B   = WS_A + 131072
WS_CT  = WS_B + 36864
WS_C   = WS_CT + 1024
WS_END = WS_C + 663552
WS_DIAG = 0x180000
R0, R1 = 0, 73728
IMG = 147456; IMG_T = 272
CMB = 152576
ST  = 156672
HST = 156800
ACT = 157440
ZER = ACT + 512
XIM = ZER + 512
LDS_BYTES = XIM + 5120
OIM = R1
WTS = HST
SPIN = 1 << 18
DPP = "row_mask:0xf bank_mask:0xf"
MF = "v_mfma_f32_16x16x32_bf16"

def gen(diag=False, probe=-1, NT="nt", PNT="none", KF=2, NK1=7, QPOLL=2, QL=7, LAG=9, STEP=13,
        WIN=6, WINV=0, FUN=2, NQF=17, NWF=17, N3F=22, LNP=5, PFC=1, FR=4, RR=0, PW=1, NFF=0, QV=0, QI=1, CNT=3, R72=1, SP=0, PIPE=1, SAN=0, DIRTY=0, DFL='',
        LOC=1, CPOS=10, NTF=6, AL=1, WINF=0, X=""):
    a = Asm()
    pend = []
    NT, PNT = [("" if x == "none" else x) for x in (NT, PNT)]
    def stamp(i):
        if probe >= 0:
            if i == 0: a("s_memrealtime s[84:85]")
            if i == probe: a("s_memrealtime s[86:87]")
        if not diag: return
        p = 84 + 2 * (len(pend))
        assert p <= 100
        a(f"s_memrealtime s[{p}:{p+1}]"); pend.append((i, p))
    def flush():
        if not diag: return
        a("s_waitcnt lgkmcnt(0)")
        for i, p in pend: a(f"v_writelane_b32 v255, s{p}, {i}")
        pend.clear()
    def dump():
        if not diag: return
        a("s_mov_b64 exec, -1\n v_writelane_b32 v255, s81, 14")
        a("s_lshl_b32 s74, s2, 2\n s_add_u32 s74, s74, s3\n s_lshl_b32 s74, s74, 8")
        a(f"s_add_u32 s74, s74, {WS_DIAG}")
        a("v_lshlrev_b32 v254, 2, v0")
        a("s_mov_b32 s22, 0x200000")
        a("buffer_store_dword v255, v254, s[20:23], s74 offen")
    def srd(d, p, n):
        a(f"s_mov_b64 s[{d}:{d+1}], s[{p}:{p+1}]\n s_mov_b32 s{d+2}, {n}\n s_mov_b32 s{d+3}, 0x20000")
    def rowred(regs, op):
        for ctl in ("quad_perm:[1,0,3,2]", "quad_perm:[2,3,0,1]", "row_half_mirror", "row_mirror"):
            for r in regs: a(f"{op}_dpp v{r}, v{r}, v{r} {ctl} {DPP}")
    def xrow(r, t, op):
        for sw in ("v_permlane16_swap_b32", "v_permlane32_swap_b32"):
            a(f"v_mov_b32 v{t}, v{r}\n {sw} v{r}, v{t}\n {op} v{r}, v{r}, v{t}")
    def rnd(r):
        a(f"v_cvt_pk_bf16_f32 v{r}, v{r}, v{r}\n v_and_b32 v{r}, s78, v{r}")
    def chk4(acc, r, first):
        if first: a(f"v_max3_u32 v{acc}, v{r}, v{r+1}, v{r+2}\n v_max_u32 v{acc}, v{r+3}, v{acc}")
        else:     a(f"v_max3_u32 v{acc}, v{r}, v{r+1}, v{acc}\n v_max3_u32 v{acc}, v{r+2}, v{r+3}, v{acc}")
    def spin_end(acc, again):
        lab, stub = a.label("L_ok"), a.label("L_again")
        a(f"v_cmp_eq_u32 vcc, -1, v{acc}\n s_cbranch_vccnz {stub}\n{lab}:")
        stubs.append(f"{stub}:\n s_add_u32 s81, s81, 1\n s_cmp_lt_u32 s81, {SPIN}\n s_cbranch_scc1 {again}\n s_branch {lab}")
    stubs = []
    def emit_stubs():
        for x in stubs: a(x)
        stubs.clear()
    def line_store(val, so):
        a(f"v_mov_b32 v97, {val}\n v_lshlrev_b32 v98, 2, v0\n s_mov_b32 exec_hi, 0\n buffer_store_dword v97, v98, s[20:23], {so} offen sc1\n s_mov_b32 exec_hi, -1")
    def near_store(text, flag="s55"):
        if not LOC: a(text + " sc1"); return
        l1, l2 = a.label("L_far"), a.label("L_st")
        a(f"s_cmp_eq_u32 {flag}, 1\n s_cbranch_scc0 {l1}\n {text}\n s_branch {l2}\n{l1}:\n {text} sc1\n{l2}:")
    free = [False]
    def kvload(kind, i):
        w = WIN if (kind == "k" and i >= KF or kind == "v" and i < QPOLL + QL) else (WINV if kind == "v" else 0)
        if w and free[0]:
            lab = a.label("L_t")
            a(f"s_cbranch_vccnz {lab}\n s_waitcnt vmcnt({w-1})\n{lab}:")
        elif w: a(f"s_waitcnt vmcnt({w-1})")
        if kind in "kK": a(f"buffer_load_dwordx4 a[{4*i}:{4*i+3}], v1, s[8:11], s68 offen {NT}")
        else:           a(f"buffer_load_dwordx4 a[{128+4*i}:{131+4*i}], v2, s[12:15], s68 offen {NT}")
        a(f"s_addk_i32 s68, {STEP*1024}\n s_and_b32 s68, s68, s69")

    a("s_cmp_ge_u32 s2, 256\n s_cbranch_scc1 L_end")
    a("s_load_dwordx16 s[44:59], s[0:1], 0\n s_load_dwordx8 s[60:67], s[0:1], 64")
    if diag:
        for r in range(86, 102, 2): a(f"s_mov_b64 s[{r}:{r+1}], 0")
    stamp(0)
    a("v_lshrrev_b32 v1, 6, v0\n s_and_b32 s4, s2, 7\n s_lshr_b32 s5, s2, 3\n v_readfirstlane_b32 s3, v1")
    if PFC:
        a("s_cmp_eq_u32 s5, 31\n s_cbranch_scc0 L_nopfc")
        a("s_getpc_b64 s[82:83]")
        a("L_pc:")
        a("v_lshlrev_b32 v97, 7, v0\n v_cmp_gt_u32 vcc, CODE_REST, v97\n s_and_saveexec_b64 s[70:71], vcc\n s_cbranch_execz L_pc2\n global_load_dword v206, v97, s[82:83]")
        a("L_pc2:\n s_mov_b64 exec, -1")
        a("L_nopfc:")
    a("v_and_b32 v0, 63, v0")
    if diag: a("v_mov_b32 v255, 0")
    a("s_lshr_b32 s76, s5, 4\n s_lshl_b32 s74, s4, 1\n s_add_u32 s76, s76, s74")
    a("s_and_b32 s77, s5, 15")
    a("s_movk_i32 s69, 0x7fff")
    a("s_lshl_b32 s68, s2, 2\n s_add_u32 s68, s68, s3\n s_mul_i32 s68, s68, 0x9E3779B1\n s_lshr_b32 s68, s68, 27\n s_lshl_b32 s68, s68, 10")
    a("v_bfe_u32 v92, v0, 2, 2\n v_lshrrev_b32 v93, 4, v0\n v_and_b32 v94, 3, v0")
    a("v_lshlrev_b32 v1, 8, v92\n v_lshl_add_u32 v1, v93, 6, v1\n v_lshl_add_u32 v1, v94, 4, v1")
    a("v_lshrrev_b32 v96, 3, v0\n v_and_b32 v95, 7, v0\n v_lshlrev_b32 v97, 7, v95\n v_lshl_add_u32 v97, v96, 13, v97")
    a("s_lshr_b32 s82, s77, 2\n s_lshl_b32 s82, s82, 4\n s_add_u32 s82, s82, s76\n s_lshl_b32 s82, s82, 21")
    a(f"s_and_b32 s83, s77, 3\n s_lshl_b32 s83, s83, 2\n s_add_u32 s83, s83, s3\n s_lshl_b32 s83, s83, 15\n s_add_u32 s82, s82, s83\n s_add_u32 s82, s82, {6144*256}")
    a("s_mov_b32 s10, 32768\n s_mov_b32 s11, 0x20000\n s_mov_b32 s18, 4718592\n s_mov_b32 s19, 0x20000")
    R0ROW = 576 - 20 * (8 + RR)
    assert R0ROW - 32 * (8 + FR) >= 0
    a(f"s_lshl_b32 s73, s5, 2\n s_add_u32 s73, s73, s3\n s_mul_i32 s74, s73, {8 + FR}\n s_add_u32 s74, s74, {(R0ROW - 40*(8 + FR)) & 0xffffffff:#x}\n s_lshl_b32 s73, s73, 3\n s_add_u32 s73, s73, {(R0ROW - 864) & 0xffffffff:#x}")
    a("s_cmp_lt_u32 s5, 10\n s_cselect_b32 s73, s74, s73\n s_lshl_b32 s73, s73, 13\n s_lshl_b32 s74, s4, 10\n s_add_u32 s73, s73, s74")
    a("v_lshlrev_b32 v2, 4, v0")
    a("v_mov_b32 v184, -1\n v_mov_b32 v185, -1\n v_mov_b32 v186, -1\n v_mov_b32 v187, -1")
    a("s_sub_u32 s7, s5, 27\n s_lshl_b32 s7, s7, 3\n s_add_u32 s7, s7, s4")
    a(f"s_lshl_b32 s75, s7, 2\n s_add_u32 s75, s75, s3\n s_mul_i32 s75, s75, 6144\n s_add_u32 s75, s75, {WS_ST}")
    a(f"s_mov_b32 s22, {WS_END}\n s_mov_b32 s23, 0x20000")
    a("s_lshr_b32 s70, s5, 1\n s_lshl_b32 s70, s70, 3\n s_add_u32 s70, s70, s4")
    a("s_sub_u32 s74, s5, 10\n s_cmp_lt_u32 s74, 17\n s_cselect_b32 s74, 0, s70\n s_cmp_lt_u32 s74, 9")
    a("s_waitcnt lgkmcnt(0)")
    a(f"s_load_dword s54, s[66:67], {WS_EP}")
    a("s_mov_b64 s[16:17], s[50:51]\n s_mov_b64 s[20:21], s[66:67]\n s_cbranch_scc1 L_notq")
    a(f"buffer_load_dword v207, v97, s[16:19], s73 offen {PNT}")
    a("s_cmp_lt_u32 s5, 27\n s_cbranch_scc0 L_rc")
    if FR:
        m = (1 << (8 * FR)) - 1
        a(f"s_add_u32 s73, s73, 65536\n s_mov_b32 exec_lo, {m & 0xffffffff:#x}\n s_mov_b32 exec_hi, {m >> 32:#x}\n buffer_load_dword v208, v97, s[16:19], s73 offen {PNT}\n s_mov_b64 exec, -1")
    a("s_branch L_notq")
    a("L_rc:")
    if RR:
        m = (1 << (8 * RR)) - 1
        a(f"s_sub_u32 s73, s5, 27\n s_lshl_b32 s73, s73, 2\n s_add_u32 s73, s73, s3\n s_mul_i32 s73, s73, {RR*8192}\n s_lshl_b32 s74, s4, 10\n s_add_u32 s73, s73, s74\n s_add_u32 s73, s73, {(R0ROW + 160)*8192}")
        a(f"s_mov_b32 exec_lo, {m & 0xffffffff:#x}\n s_mov_b32 exec_hi, {m >> 32:#x}\n buffer_load_dword v208, v97, s[16:19], s73 offen {PNT}\n s_mov_b64 exec, -1")
    for i in range(6):
        if i == 3: a("s_add_u32 s75, s75, 3072")
        a(f"buffer_store_dwordx4 v[184:187], v2, s[20:23], s75 offen offset:{1024*(i%3)} sc1")
    a("L_notq:")
    a("s_add_u32 s8, s46, s82\n s_addc_u32 s9, s47, 0")
    for i in range(KF): kvload("k", i)
    a("s_add_u32 s12, s48, s82\n s_addc_u32 s13, s49, 0\n s_mov_b32 s14, 32768\n s_mov_b32 s15, 0x20000")
    srd(24, 44, 4608)
    a("s_and_b32 s82, s3, 1\n s_lshl_b32 s82, s82, 2")
    a("v_and_b32 v97, 2, v96\n v_or_b32 v97, s82, v97\n v_xor_b32 v95, v95, v97\n v_lshlrev_b32 v95, 4, v95")
    a("s_lshl_b32 s83, s3, 10\n s_mov_b32 m0, s83\n s_mov_b32 s78, 0xffff0000")
    a("s_cmp_lt_u32 s5, 18\n s_cbranch_scc1 L_df\n s_cmp_lt_u32 s5, 27\n s_cbranch_scc1 L_dw")
    a("s_mov_b32 s6, 3\n s_branch L_kld")
    a("L_dw:")
    a("s_mov_b32 s6, 1\n s_sub_u32 s7, s5, 18\n s_mov_b32 s71, 36864\n s_mul_i32 s73, s4, 589824\n s_lshl_b32 s82, s7, 7\n s_add_u32 s73, s73, s82")
    a("s_mul_i32 s75, s3, 9216\n s_movk_i32 s74, 1152\n s_mov_b64 s[16:17], s[52:53]\n s_branch L_dma")
    a("L_df:")
    a(f"s_mov_b32 s6, 2\n s_mul_i32 s82, s3, 1152\n s_add_u32 m0, s82, {XIM}\n s_mov_b32 exec_hi, 15")
    a("buffer_load_dwordx4 v2, s[24:27], s82 offen lds\n buffer_load_dwordx4 v2, s[24:27], s82 offen offset:576 lds\n s_mov_b32 exec_hi, -1\n s_mov_b32 m0, s83")
    a(f"s_and_b32 s51, s5, 1\n s_lshl_b32 s52, s70, 2\n s_add_u32 s52, s52, s3\n s_lshl_b32 s52, s52, 10\n s_add_u32 s52, s52, {WS_X}")
    a("s_lshr_b32 s74, s3, 1\n s_cmp_eq_u32 s74, s51\n s_cselect_b32 s53, 1, 0\n s_cbranch_scc0 L_nib")
    a("buffer_store_dwordx4 v[184:187], v2, s[20:23], s52 offen sc1")
    a("L_nib:")
    a("s_cmp_lt_u32 s5, 10\n s_cbranch_scc1 L_kld")
    a("s_mov_b32 s6, 0\n s_lshl_b32 s7, s4, 3\n s_add_u32 s7, s7, s5\n s_sub_u32 s7, s7, 10\n s_movk_i32 s74, 8192\n s_mov_b32 s71, 262144")
    a("s_lshl_b32 s73, s7, 7\n s_lshl_b32 s75, s3, 16")
    for i in range(8): a(f"v_mov_b32 v{188+i}, 0")
    a("s_mov_b32 exec_hi, 15")
    a("buffer_load_dwordx4 v[188:191], v2, s[24:27], s82 offen\n buffer_load_dwordx4 v[192:195], v2, s[24:27], s82 offen offset:576\n s_mov_b32 exec_hi, -1")
    a("L_dma:")
    a("s_add_u32 s73, s73, s75\n v_mad_u32_u24 v3, v96, s74, v95")
    def layernorm():
        a("s_cmp_eq_u32 s6, 0\n s_cbranch_scc0 L_noln")
        a(f"s_waitcnt vmcnt({LNP})")
        for i in range(8):
            a(f"v_lshlrev_b32 v{172+2*i}, 16, v{188+i}\n v_and_b32 v{173+2*i}, s78, v{188+i}")
        a("v_add_f32 v196, v172, v173")
        for i in range(2, 16): a(f"v_add_f32 v196, v196, v{172+i}")
        rowred([196], "v_add_f32"); xrow(196, 197, "v_add_f32")
        a(f"v_mul_f32 v196, {f2u(1/576):#x}, v196")
        a("v_sub_f32 v198, v172, v196\n v_mul_f32 v197, v198, v198")
        for i in range(1, 16): a(f"v_sub_f32 v198, v{172+i}, v196\n v_fmac_f32 v197, v198, v198")
        a("v_cmp_gt_u32 vcc, 36, v0\n v_cndmask_b32 v197, 0, v197, vcc")
        rowred([197], "v_add_f32"); xrow(197, 198, "v_add_f32")
        a(f"v_mul_f32 v197, {f2u(1/576):#x}, v197")
        rnd(196); rnd(197)
        a(f"v_add_f32 v197, {f2u(1e-5):#x}, v197"); rnd(197)
        a("v_sqrt_f32 v197, v197"); rnd(197)
        a("v_rcp_f32 v197, v197")
        for i in range(8):
            lo, hi = 172 + 2*i, 173 + 2*i
            a(f"v_sub_f32 v{lo}, v{lo}, v196\n v_sub_f32 v{hi}, v{hi}, v196\n v_cvt_pk_bf16_f32 v198, v{lo}, v{hi}")
            a(f"v_lshlrev_b32 v{lo}, 16, v198\n v_and_b32 v{hi}, s78, v198\n v_mul_f32 v{lo}, v{lo}, v197\n v_mul_f32 v{hi}, v{hi}, v197")
            a(f"v_cvt_pk_bf16_f32 v{188+i}, v{lo}, v{hi}")
        a(f"v_lshrrev_b32 v198, 2, v0\n v_mul_u32_u24 v198, {IMG_T}, v198\n v_lshl_add_u32 v198, v94, 6, v198")
        a(f"s_lshl_b32 s82, s3, 4\n s_add_u32 s82, s82, {IMG}\n v_add_u32 v198, s82, v198")
        a("s_mov_b64 exec, vcc")
        a(f"ds_write_b128 v198, v[188:191]\n ds_write_b128 v198, v[192:195] offset:{9*IMG_T}")
        a("s_mov_b64 exec, -1")
        a("L_noln:")
    for n in range(18):
        if n == LNP: layernorm()
        if n == 16: a("s_cmp_eq_u32 s6, 1\n s_cbranch_scc1 L_kld")
        if WIN and n + KF >= WIN + FUN: a(f"s_waitcnt vmcnt({WIN + FUN - 1})")
        a(f"buffer_load_dwordx4 v3, s[16:19], s73 offen {NT} lds")
        if n < 17: a("s_addk_i32 m0, 0x1000\n s_add_u32 s73, s73, s71")
    a("L_kld:")
    nk = KF
    for i in range(NK1):
        kvload("k", nk); nk += 1
        if i == 0:
            srd(28, 56, 5308416); srd(32, 58, 5308416); srd(36, 62, 4608); srd(24, 60, 5308416)
            a(f"s_mov_b32 s79, {f2u(128 ** -0.5):#x}\n s_mov_b32 s80, {f2u(1.4426950408889634):#x}\n s_getreg_b32 s42, hwreg(HW_REG_XCC_ID, 0, 3)")
        if i == 1:
            a("v_lshrrev_b32 v97, 1, v92\n v_and_b32 v98, 1, v93\n v_lshl_or_b32 v97, v98, 1, v97\n v_xor_b32 v97, s3, v97")
            a("v_lshl_add_u32 v4, v93, 3, v92\n v_lshlrev_b32 v4, 7, v4\n v_lshl_add_u32 v4, v97, 5, v4\n v_lshl_add_u32 v4, v94, 3, v4\n v_add_u32 v5, 36864, v4")

    a(f"s_waitcnt vmcnt({NK1}) lgkmcnt(0)\n s_barrier\n s_add_u32 s54, s54, 16\n s_add_u32 s43, s54, s42")
    stamp(1)
    a("s_cmp_eq_u32 s3, 0\n s_cbranch_scc0 L_etr")
    a(f"s_lshl_b32 s82, s4, 5\n s_add_u32 s82, s82, s5\n s_add_u32 s83, s7, 256\n s_cmp_eq_u32 s6, 3\n s_cselect_b32 s82, s83, s82\n s_lshl_b32 s82, s82, 7\n s_add_u32 s82, s82, {WS_FL}")
    line_store("s43", "s82")
    a("L_etr:")
    def trread(dst, base_lo, base_hi, t):
        b, off = (base_lo, t * 4096) if t < 9 else (base_hi, (t - 9) * 4096)
        k, n = dst
        a(f"ds_read_b64_tr_b16 {k}[{n}:{n+1}], v{b} offset:{off}\n ds_read_b64_tr_b16 {k}[{n+2}:{n+3}], v{b} offset:{off+512}")
    for j in range(18):
        if j % 6 == 0:
            kvload("K", nk); nk += 1
            lab = a.label("L_ne"); a(f"s_cmp_lt_u32 s6, 2\n s_cbranch_scc0 {lab}")
        trread(("v", 100 + 4*j), 4, 5, j)
        if j % 6 == 5: a(f"{lab}:")
    a(f"s_cmp_eq_u32 s6, 0\n s_cbranch_scc0 {'L_k1' if QI else 'L_k2'}")
    a(f"v_lshl_add_u32 v198, v93, 2, v94\n v_lshlrev_b32 v198, 4, v198\n v_add_u32 v198, {IMG}, v198")
    for t in range(18): a(f"ds_read_b128 v[{20+4*t}:{23+4*t}], v198 offset:{t*IMG_T}")
    if QI: kvload("K", nk)
    a("s_waitcnt lgkmcnt(0)")
    for t in range(18):
        a(f"{MF} v[16:19], v[{100+4*t}:{103+4*t}], v[{20+4*t}:{23+4*t}], {'0' if t == 0 else 'v[16:19]'}")
        if QI and t in (8, 17): kvload("K", nk + 1 + t // 9)
    a("v_lshlrev_b32 v198, 8, v94\n v_bfe_u32 v97, v0, 4, 1\n v_lshl_add_u32 v198, v97, 6, v198\n v_bfe_u32 v97, v0, 5, 1\n v_lshl_add_u32 v198, v97, 4, v198")
    a(f"s_lshr_b32 s83, s3, 1\n s_lshl_b32 s83, s83, 7\n s_and_b32 s82, s3, 1\n s_lshl_b32 s82, s82, 5\n s_add_u32 s83, s83, s82\n s_add_u32 s83, s83, {CMB}\n v_add_u32 v198, s83, v198")
    a(f"v_add_u32 v199, {CMB}, v2\n v_and_b32 v97, 15, v0\n v_lshlrev_b32 v97, 4, v97\n v_lshl_add_u32 v97, v93, 14, v97\n s_lshl_b32 s82, s7, 8")
    a("v_cvt_pk_bf16_f32 v16, v16, v17\n v_cvt_pk_bf16_f32 v18, v18, v19\n v_mov_b32 v17, s54\n v_mov_b32 v19, s54")
    a("s_mov_b32 exec_lo, 0x000f000f\n s_mov_b32 exec_hi, 0x000f000f\n ds_write_b128 v198, v[16:19]\n s_mov_b64 exec, -1")
    a("s_cmp_eq_u32 s3, 0\n s_waitcnt lgkmcnt(0)\n s_barrier\n s_cbranch_scc0 L_k2")
    a("ds_read_b128 v[16:19], v199\n s_waitcnt lgkmcnt(0)")
    a("buffer_store_dwordx4 v[16:19], v97, s[20:23], s82 offen sc1")
    stamp(11)
    if QI:
        a("s_branch L_k2\nL_k1:")
        for i in range(3): kvload("k", nk); nk += 1
    a("L_k2:")
    C = []
    c = C.append
    M = "s[66:67]"
    c("s_sub_u32 s83, s70, 9\n s_mul_i32 s50, s83, 9363\n s_lshr_b32 s50, s50, 16\n s_mul_i32 s75, s50, 7\n s_sub_u32 s83, s83, s75\n s_cmp_gt_u32 s83, 2\n s_addc_u32 s83, s83, 0\n"
      "s_cmp_lt_u32 s70, 9\n s_cselect_b32 s50, s70, s50\n s_cselect_b32 s83, 3, s83\n s_lshl_b32 s50, s50, 3\n s_add_u32 s50, s50, s83")
    c(f"s_lshl_b32 s58, s50, 7\n s_mul_i32 s83, s3, 73728\n s_add_u32 s58, s58, s83\n s_mul_i32 s83, s51, {288*9216}\n s_add_u32 s58, s58, s83\n s_mov_b32 s73, s58\n"
      "s_lshl_b32 s59, s50, 1\n s_add_u32 s59, s59, s51\n s_lshl_b32 s59, s59, 2\n s_add_u32 s59, s59, s3\n s_mul_i32 s59, s59, 9216\n s_lshl_b32 s83, s3, 10\n s_mov_b32 m0, s83")
    c("s_movk_i32 s83, 9216\n v_mad_u32_u24 v6, v96, s83, v95\n s_movk_i32 s83, 1152\n v_mad_u32_u24 v3, v96, s83, v95\n"
      "v_bfe_u32 v97, v0, 1, 2\n v_mul_u32_u24 v97, 1152, v97\n v_bfe_u32 v98, v0, 5, 1\n v_lshl_add_u32 v97, v98, 6, v97\n v_bfe_u32 v98, v0, 3, 1\n v_lshl_add_u32 v97, v98, 5, v97")
    c("v_and_b32 v98, 1, v0\n v_lshl_add_u32 v97, v98, 4, v97\n v_bfe_u32 v98, v0, 4, 1\n v_lshl_add_u32 v97, v98, 3, v97\n"
      f"s_lshl_b32 s83, s3, 7\n s_mul_i32 s75, s51, 576\n s_add_u32 s83, s83, s75\n s_add_u32 s83, s83, {XIM}\n v_add_u32 v97, s83, v97\n ds_read_b64 v[192:193], v97\n ds_read_b64 v[194:195], v97 offset:512")
    c("v_mov_b32 v184, 0x3f803f80\n v_mov_b32 v185, v184\n v_mov_b32 v186, v184\n v_mov_b32 v187, v184\n"
      f"v_mul_u32_u24 v97, {IMG_T}, v0\n v_add_u32 v97, {IMG + 256}, v97\n s_mov_b64 exec, 0x1ff\n ds_write_b128 v97, v[184:187]\n s_mov_b64 exec, -1")
    c(f"v_mov_b32 v188, 0\n v_mov_b32 v189, 0\n v_mov_b32 v190, 0\n v_mov_b32 v191, 0\n v_mov_b32 v97, {ZER}\n ds_write_b128 v97, v[188:191]")
    c("s_waitcnt lgkmcnt(0)\n s_cmp_eq_u32 s3, 0\n s_cselect_b32 s66, -1, 0\n s_mov_b32 s67, 0\n"
      f"v_cndmask_b32 v194, 0, v194, {M}\n v_cndmask_b32 v195, 0, v195, {M}\n" +
      "\n".join(f"v_lshlrev_b32 v{172+2*i}, 16, v{192+i}\n v_and_b32 v{173+2*i}, s78, v{192+i}" for i in range(4)))
    c(f"v_and_b32 v97, 1, v0\n v_cmp_eq_u32 {M}, 1, v97\n v_mov_b32 v98, 0x3f80\n v_mov_b32 v99, 0x3f800000\n v_cndmask_b32 v98, v98, v99, {M}\n v_bfe_u32 v97, v0, 1, 3")
    c("\n".join(f"v_cmp_eq_u32 {M}, {d}, v97\n v_cndmask_b32 v{184+d}, 0, v98, {M}" for d in range(4)))
    c("\n".join(f"v_cmp_eq_u32 {M}, {d}, v97\n v_cndmask_b32 v{184+d}, 0, v98, {M}" for d in range(4, 8)))
    c(f"v_bfe_u32 v97, v0, 1, 2\n v_bfe_u32 v192, v0, 5, 1\n v_mul_u32_u24 v192, {IMG_T}, v192\n v_bfe_u32 v98, v0, 3, 1\n v_lshl_add_u32 v192, v98, 7, v192\n"
      "v_and_b32 v98, 1, v0\n v_lshl_add_u32 v192, v98, 6, v192\n v_lshl_add_u32 v192, v97, 4, v192\n v_bfe_u32 v98, v0, 4, 1\n v_lshl_add_u32 v192, v98, 3, v192")
    c(f"s_mul_i32 s83, s3, {2*IMG_T}\n s_add_u32 s83, s83, {IMG}\n v_add_u32 v192, s83, v192\n"
      f"v_lshlrev_b32 v193, 7, v97\n v_lshl_add_u32 v193, v93, 3, v193\n s_lshl_b32 s83, s3, 5\n s_add_u32 s83, s83, {HST}\n v_add_u32 v193, s83, v193")
    c(f"v_lshl_add_u32 v194, v93, 2, v92\n v_lshlrev_b32 v194, 4, v194\n v_add_u32 v99, {ACT}, v194\n v_mov_b32 v98, 256\n v_cmp_eq_u32 {M}, 1, v94\n v_cndmask_b32 v194, v194, v98, {M}\n v_add_u32 v194, {IMG}, v194\n"
      f"v_lshlrev_b32 v195, 3, v0\n v_add_u32 v195, {HST}, v195")
    c(f"v_mov_b32 v98, {ZER}\n" + "\n".join(f"v_cmp_eq_u32 {M}, {e}, v94\n v_cndmask_b32 v{197+e}, v98, v99, {M}" for e in range(4)))
    c("v_bfe_u32 v196, v0, 3, 1\n v_lshlrev_b32 v196, 6, v196\n v_lshl_add_u32 v196, v93, 4, v196\n v_and_b32 v98, 7, v0\n v_lshl_add_u32 v196, v98, 1, v196\n"
      f"s_and_b32 s83, s3, 1\n s_lshl_b32 s83, s83, 7\n s_add_u32 s83, s83, {ACT}\n v_add_u32 v196, s83, v196\n v_mul_u32_u24 v203, 18432, v96\n v_lshl_add_u32 v203, v98, 4, v203\n"
      f"v_lshlrev_b32 v204, 5, v92\n v_lshl_add_u32 v204, v93, 3, v204\n v_add_u32 v204, {8*18432}, v204")
    c(f"v_bfe_u32 v97, v0, 5, 1\n v_lshlrev_b32 v97, 6, v97\n v_lshl_add_u32 v97, v92, 4, v97\n v_bfe_u32 v98, v0, 4, 1\n v_lshl_add_u32 v97, v98, 3, v97\n v_add_u32 v97, {IMG}, v97\n"
      "s_mul_i32 s75, s51, 9\n s_cmp_eq_u32 s70, 0\n s_cselect_b32 s75, s75, 64\n s_lshl_b32 s83, s3, 1\n s_sub_u32 s83, s83, s75\n v_bfe_u32 v98, v0, 1, 1\n v_add_u32 v98, s83, v98")
    c(f"v_and_b32 v99, 1, v0\n v_lshl_add_u32 v99, v99, 7, v97\n s_movk_i32 s83, {IMG_T}\n v_mov_b32 v183, {ZER}\n"
      f"v_mad_i32_i24 v180, v98, s83, v99\n v_cmp_gt_u32 {M}, 9, v98\n v_add_u32 v98, 8, v98\n v_cndmask_b32 v180, v183, v180, {M}\n"
      f"v_mad_i32_i24 v181, v98, s83, v99\n v_cmp_gt_u32 {M}, 9, v98\n v_cndmask_b32 v181, v183, v181, {M}")
    c(f"s_lshr_b32 s83, s3, 1\n s_add_u32 s83, s83, 16\n s_sub_u32 s83, s83, s75\n s_cmp_lt_u32 s83, 9\n s_cselect_b64 {M}, -1, 0\n s_mul_i32 s83, s83, {IMG_T}\n s_and_b32 s75, s3, 1\n s_lshl_b32 s75, s75, 7\n s_add_u32 s83, s83, s75\n"
      f"v_add_u32 v182, s83, v97\n v_cndmask_b32 v182, v183, v182, {M}")
    c(f"s_lshl_b32 s83, s3, 5\n v_xor_b32 v248, s83, v4\n s_lshl_b32 s83, s3, 12\n s_add_u32 s83, s83, {R1}\n v_add_u32 v248, s83, v248\n v_xor_b32 v249, 32, v248\n v_xor_b32 v250, 64, v248\n v_xor_b32 v251, 64, v249\n v_add_u32 v252, {R1 + 32768}, v4\n"
      f"s_lshl_b32 s83, s4, 10\n s_add_u32 s83, s83, {WS_SB}\n v_lshlrev_b32 v207, 7, v93\n v_add_u32 v207, s83, v207")
    c(f"s_mul_i32 s62, s3, {9*18432}\n s_lshl_b32 s83, s2, 7\n s_add_u32 s62, s62, s83\n s_add_u32 s62, s62, {WS_C}\n"
      f"s_mul_i32 s65, s51, 18432\n s_add_u32 s65, s65, {WS_B}\n s_lshl_b32 s63, s3, 12\n s_add_u32 s63, s63, s65\n s_add_u32 s65, s65, 16384\n s_lshl_b32 s61, s4, 7\n s_add_u32 s61, s61, {WS_SC}")
    Wl = []
    w = Wl.append
    w(f"v_and_b32 v97, 15, v0\n v_and_b32 v172, 7, v0\n v_xor_b32 v172, v172, v93\n v_lshlrev_b32 v172, 4, v172\n v_lshl_add_u32 v172, v97, 8, v172")
    w(f"s_lshl_b32 s83, s3, 12\n s_add_u32 s83, s83, {OIM}\n v_add_u32 v172, s83, v172\n v_xor_b32 v173, 64, v172")
    w(f"v_xor_b32 v174, v97, v93\n v_lshlrev_b32 v174, 4, v174\n v_lshl_add_u32 v174, v93, 8, v174\n v_add_u32 v174, {OIM}, v174\n v_xor_b32 v175, 64, v174")
    w("v_lshlrev_b32 v176, 5, v92\n v_lshl_add_u32 v176, v93, 3, v176")
    w(f"v_lshlrev_b32 v177, 7, v0\n v_lshlrev_b32 v178, 4, v97\n v_add_u32 v178, {WTS}, v178\n s_lshl_b32 s83, s3, 2\n v_add_u32 v179, s83, v178\n v_mov_b32 v180, 0")
    w("s_lshr_b32 s83, s3, 1\n s_lshl_b32 s62, s7, 1\n s_add_u32 s62, s62, s83\n s_lshl_b32 s62, s62, 3\n s_add_u32 s62, s62, s4\n s_lshl_b32 s62, s62, 1")
    w(f"s_and_b32 s75, s3, 1\n s_add_u32 s62, s62, s75\n s_lshl_b32 s62, s62, 7\n s_add_u32 s62, s62, {WS_B}")
    w(f"s_lshl_b32 s63, s4, 2\n s_add_u32 s63, s63, s3\n s_lshl_b32 s63, s63, 12\n s_add_u32 s63, s63, {WS_A}")
    w(f"s_lshl_b32 s64, s4, 1\n s_add_u32 s64, s64, s83\n s_lshl_b32 s64, s64, 11\n s_lshl_b32 s75, s75, 2\n s_add_u32 s64, s64, s75\n s_add_u32 s64, s64, {WS_ST}")
    w(f"s_lshl_b32 s61, s4, 7\n s_add_u32 s61, s61, {WS_SB}")
    hooks = [(2, x) for x in C] + [(1, "\n".join(Wl[i:i+5])) for i in range(0, len(Wl), 5)]
    def late(n):
        if n == 9:  a("s_mov_b32 s73, s58")
        if n == 18: a("s_mov_b32 s73, s59")
        sr = (28, 32, 24)[n // 9]
        a(f"buffer_load_dwordx4 v{3 if n >= 18 else 6}, s[{sr}:{sr+3}], s73 offen {NT} lds")
        a("s_addk_i32 m0, 0x1000\n " + ("s_addk_i32 s73, 128" if n >= 18 else "s_add_u32 s73, s73, 294912"))
    a(f"s_cmp_lt_u32 s70, 9\n s_cselect_b32 s72, {N3F}, {NFF}\n s_cmp_eq_u32 s6, 3\n s_cselect_b32 s72, 0, s72\n s_cmp_eq_u32 s6, 0\n s_cselect_b32 s72, {NQF}, s72\n s_cmp_eq_u32 s6, 1\n s_cselect_b32 s72, {NWF}, s72")
    a("v_and_b32 v205, 7, v0\n v_lshlrev_b32 v205, 4, v205\n v_lshl_add_u32 v205, v96, 10, v205")
    k0 = nk
    while nk < 32:
        if WIN and nk - k0 < max(NQF, NWF, N3F, NFF):
            lab = a.label("L_t")
            a(f"s_cmp_gt_u32 s72, {nk - k0}\n s_cbranch_scc1 {lab}\n s_waitcnt vmcnt({WIN-1})\n{lab}:")
            kvload("K", nk)
        else: kvload("k", nk)
        nk += 1
        for _ in range(-(-len(hooks) // (32 - nk + 1))):
            role, code = hooks.pop(0)
            lab = a.label("L_h")
            a(f"s_cmp_eq_u32 s6, 1\n s_cbranch_scc0 {lab}" if role == 1 else f"s_bitcmp1_b32 s6, 0\n s_cbranch_scc1 {lab}"); a(code); a(f"{lab}:")
    def vfree(i):
        if QV:
            lab = a.label("L_t")
            a(f"s_cmp_gt_u32 s72, {32 - k0 + i}\n s_cbranch_scc1 {lab}\n s_waitcnt vmcnt({WIN-1})\n{lab}:")
            kvload("V", i)
        else: kvload("v", i)
    for i in range(QPOLL): vfree(i)

    a("v_bfe_u32 v62, v0, 2, 1\n v_lshlrev_b32 v62, 9, v62\n v_lshl_add_u32 v62, v93, 7, v62\n v_lshl_add_u32 v62, v94, 4, v62")
    a("s_lshl_b32 s56, s4, 5\n s_add_u32 s57, s56, s5\n s_xor_b32 s57, s57, 1\n s_add_u32 s56, s56, 18\n s_cmp_lt_u32 s5, 18\n s_cselect_b32 s57, s57, s56\n s_lshl_b32 s57, s57, 7")
    a("s_mul_i32 s83, s3, 14\n s_add_u32 s83, s83, 242\n s_movk_i32 s40, 0x3fff\n s_cmp_eq_u32 s3, 3\n s_cselect_b32 s40, 0xfff, s40\n s_cmp_eq_u32 s3, 0\n s_cselect_b32 s56, s56, s83\n s_cselect_b32 s40, 0x1ff, s40\n s_brev_b32 s41, 1")
    a(f"v_add_u32 v63, s56, v0\n v_lshlrev_b32 v63, 7, v63\n v_writelane_b32 v63, s57, 63\n v_mov_b32 v61, s43\n s_mov_b32 s56, {WS_FL}")
    a("s_lshr_b32 s82, s77, 2\n s_lshl_b32 s82, s82, 14\n s_lshl_b32 s83, s76, 10\n s_add_u32 s82, s82, s83")
    def qpass():
        a("s_mov_b64 exec, s[40:41]\n buffer_load_dword v61, v63, s[20:23], s56 offen sc1\n s_mov_b64 exec, -1")
        a("buffer_load_dwordx4 v[52:55], v62, s[20:23], s82 offen sc1\n buffer_load_dwordx4 v[56:59], v62, s[20:23], s82 offen offset:64 sc1")
    stamp(2)
    qpass()
    nv = QPOLL
    for i in range(QL): vfree(nv); nv += 1
    a("v_and_b32 v97, 1, v0\n v_cmp_eq_u32 vcc, 1, v97\n v_mov_b32 v98, 0xffff\n v_mov_b32 v99, s78\n v_cndmask_b32 v98, v98, v99, vcc")
    a("v_bfe_u32 v97, v0, 3, 1\n v_bfe_u32 v99, v0, 1, 1\n v_lshl_or_b32 v97, v97, 1, v99")
    for d in range(4): a(f"v_cmp_eq_u32 vcc, {d}, v97\n v_cndmask_b32 v{12+d}, 0, v98, vcc")
    a("v_mov_b32 v7, 0xff800000\n s_mov_b32 s81, 0")
    a(f"s_waitcnt vmcnt({QL})\n s_branch L_qchk")
    a("L_qpoll:")
    qpass()
    a(f"s_add_u32 s81, s81, 1\n s_cmp_gt_u32 s81, {SPIN}\n s_waitcnt vmcnt(0)\n s_cbranch_scc1 L_qgo")
    a("L_qchk:")
    a("v_subrev_u32 v60, s54, v61\n v_lshrrev_b32 v60, 3, v60")
    for r in (53, 55, 57, 59): a(f"v_xor_b32 v{r}, s54, v{r}")
    a("v_or3_b32 v60, v60, v53, v55\n v_or3_b32 v60, v60, v57, v59\n v_cmp_ne_u32 vcc, 0, v60\n s_cbranch_vccnz L_qpoll")
    a("L_qgo:")
    a("v_cmp_ne_u32 vcc, s43, v61\n v_mov_b32 v8, v52\n v_mov_b32 v9, v54\n v_mov_b32 v10, v56\n v_mov_b32 v11, v58\n s_cmp_eq_u32 vcc_lo, 0\n s_cselect_b32 s55, 1, 0\n s_cmp_eq_u32 vcc_hi, 0\n s_cselect_b32 s49, 1, 0")
    if diag: a("v_writelane_b32 v255, s81, 13")
    stamp(3)

    def qk(gi):
        for q in range(4):
            d = 52 + 16 * (gi & 1) + 4 * q; k = 16 * gi + 4 * q
            a(f"{MF} v[{d}:{d+3}], a[{k}:{k+3}], v[8:11], 0")
    qk(0)
    for gi in range(8):
        if gi < 7: qk(gi + 1)
        D = 52 + 16 * (gi & 1); T = 20 + 4 * gi
        for u in range(4):
            for q in range(4):
                if u == 0: a(f"v_mov_b32_dpp v{T+q}, v{D+4*q} quad_perm:[0,0,0,0] {DPP}")
                else:      a(f"v_add_f32_dpp v{T+q}, v{D+4*q+u}, v{T+q} quad_perm:[{u},{u},{u},{u}] {DPP}")
        a(f"v_max3_f32 v7, v{T}, v{T+1}, v7\n v_max3_f32 v7, v{T+2}, v{T+3}, v7")
        for rep in range(2):
            a(f"v_cvt_pk_bf16_f32 v97, v{T}, v{T+1}\n v_cvt_pk_bf16_f32 v98, v{T+2}, v{T+3}")
            a(f"v_lshlrev_b32 v{T}, 16, v97\n v_and_b32 v{T+1}, s78, v97\n v_lshlrev_b32 v{T+2}, 16, v98\n v_and_b32 v{T+3}, s78, v98")
            if rep == 0:
                for q in range(4): a(f"v_mul_f32 v{T+q}, s79, v{T+q}")
        kvload("v", nv); nv += 1
    xrow(7, 97, "v_max_f32")
    rnd(7); a("v_mul_f32 v7, s79, v7"); rnd(7)
    a("v_mul_f32 v52, s80, v7")
    for i in range(32): a(f"v_fma_f32 v{20+i}, v{20+i}, s80, -v52")
    kvload("v", nv); nv += 1
    for i in range(32):
        a(f"v_exp_f32 v{20+i}, v{20+i}")
        if i == 2: a("v_add_f32 v53, v20, v21")
        if i > 2:  a(f"v_add_f32 v53, v53, v{19+i}")
        if i == 15: kvload("v", nv); nv += 1
    a("v_add_f32 v53, v53, v51")
    kvload("v", nv); nv += 1
    xrow(53, 97, "v_add_f32")
    a(f"v_bfe_u32 v97, v0, 2, 1\n v_lshlrev_b32 v97, 5, v97\n s_lshl_b32 s82, s3, 3\n s_add_u32 s82, s82, {ST}\n v_add_u32 v97, s82, v97")
    a("s_mov_b64 exec, 0x11\n ds_write_b64 v97, v[52:53]\n s_mov_b64 exec, -1")
    stamp(4); flush()
    PB = {}
    def pbuild(i):
        if i in PB and PB[i][1]: return
        P = PB[i][0] if i in PB else 84 + 4 * (i & 1)
        a(f"v_cvt_pk_bf16_f32 v99, v{20+i}, v{20+i}")
        for d in range(4): a(f"v_and_b32 v{P+d}, v99, v{12+d}")
    def pv(i):
        P = PB[i][0] if i in PB else 84 + 4 * (i & 1)
        a(f"{MF} v[16:19], v[{P}:{P+3}], a[{128+4*i}:{131+4*i}], {'0' if i == 0 else 'v[16:19]'}")
    done = nv - LAG
    a(f"s_waitcnt vmcnt({LAG})")
    pbuild(0)
    for i in range(done):
        pbuild(i + 1); pv(i)
        if i % 5 == 4 and nv < 29: kvload("v", nv); nv += 1
    a("s_waitcnt lgkmcnt(0)\n s_barrier")
    a(f"v_and_b32 v97, 1, v93\n v_lshlrev_b32 v97, 5, v97\n v_add_u32 v98, s82, v97\n v_add_u32 v97, {ST}, v97")
    a("ds_read_b128 v[56:59], v97\n ds_read_b128 v[60:63], v97 offset:16\n ds_read_b32 v64, v98")
    kvload("v", nv); nv += 1
    a("s_waitcnt lgkmcnt(0)")
    a("v_max3_f32 v65, v56, v58, v60\n v_max_f32 v65, v65, v62")
    for r in (56, 58, 60, 62, 64): a(f"v_sub_f32 v{r}, v{r}, v65")
    for r in (56, 58, 60, 62, 64): a(f"v_exp_f32 v{r}, v{r}")
    a("v_mul_f32 v66, v56, v57\n v_fmac_f32 v66, v58, v59\n v_fmac_f32 v66, v60, v61\n v_fmac_f32 v66, v62, v63")
    a("v_rcp_f32 v67, v66\n v_log_f32 v66, v66")
    a("v_mul_f32 v7, v64, v67")
    a("v_add_f32 v66, v66, v65\n v_min_u32 v66, -2, v66")
    a("s_cmp_eq_u32 s3, 0\n s_cbranch_scc0 L_nolse")
    a(f"s_lshl_b32 s82, s4, 5\n s_add_u32 s82, s82, s5\n s_lshl_b32 s82, s82, 7\n s_add_u32 s82, s82, {WS_ST}")
    a("v_and_b32 v67, 15, v0\n v_lshlrev_b32 v67, 3, v67\n v_lshl_add_u32 v67, v93, 2, v67\n s_mov_b32 exec_hi, 0")
    near_store("buffer_store_dword v66, v67, s[20:23], s82 offen")
    a("s_mov_b32 exec_hi, -1")
    a("L_nolse:")
    a(f"s_waitcnt vmcnt({LAG})"); pv(done); done += 1
    while done < nv - LAG:
        pbuild(done); pv(done); done += 1
    a(f"s_lshl_b32 s82, s76, 13\n s_lshl_b32 s83, s77, 8\n s_add_u32 s82, s82, s83\n s_add_u32 s57, s82, {WS_A}")
    a("v_and_b32 v97, 15, v0\n v_lshlrev_b32 v97, 4, v97\n v_lshl_add_u32 v97, v93, 12, v97")
    a(f"s_lshl_b32 s82, s3, 10\n s_add_u32 s82, s82, {CMB}\n v_add_u32 v98, s82, v2")
    todo = list(range(32 - LAG, 32))
    while nv < 32:
        kvload("v", nv); nv += 1
        k = -(-len(todo) // (32 - nv + 1))
        for i in todo[:k]:
            PB[i] = [212 + 4 * (31 - i), False]; pbuild(i); PB[i][1] = True
        todo = todo[k:]
        pbuild(done); a(f"s_waitcnt vmcnt({LAG})"); pv(done); done += 1
    if "c" in X:
        a("s_waitcnt vmcnt(0)"); stamp(5); flush(); dump(); a("s_endpgm")
    a("s_bitcmp1_b32 s6, 0\n s_cbranch_scc0 L_ft")
    def lsepass(): a("s_mov_b64 exec, 0xffff\n buffer_load_dword v180, v177, s[20:23], s64 offen sc1\n s_mov_b64 exec, -1")
    a("s_cmp_eq_u32 s6, 1\n s_cbranch_scc0 L_nw")
    lsepass()
    a("L_x1:")
    for i in range(done, 32):
        a(f"s_waitcnt vmcnt({32 - i})"); pv(i)
    a("s_nop 6\n s_branch L_comb")
    a("L_nw:")
    for i in range(done, 32):
        a(f"s_waitcnt vmcnt({31 - i})"); pv(i)
    a("s_nop 6\n s_branch L_comb")
    a("L_ft:")
    nl = 0
    for i in range(done, 32):
        if nl < NTF: late(nl); nl += 1
        a(f"s_waitcnt vmcnt({31 - i + nl})"); pv(i)
    a("s_nop 7")
    a("L_comb:")
    stamp(5)
    for i in range(4): a(f"v_mul_f32 v{16+i}, v{16+i}, v7")
    a("ds_write_b128 v98, v[16:19]\n s_cmp_eq_u32 s3, 0\n s_waitcnt lgkmcnt(0)\n s_barrier\n s_cbranch_scc0 L_pubd")
    for w in range(1, 4): a(f"ds_read_b128 v[{52+4*w}:{55+4*w}], v98 offset:{1024*w}")
    for w in range(1, 4):
        a(f"s_waitcnt lgkmcnt({3 - w})")
        a(f"v_pk_add_f32 v[16:17], v[16:17], v[{52+4*w}:{53+4*w}]\n v_pk_add_f32 v[18:19], v[18:19], v[{54+4*w}:{55+4*w}]")
    a("v_cvt_pk_bf16_f32 v16, v16, v17\n v_cvt_pk_bf16_f32 v17, v18, v19\n v_min_u32 v16, -2, v16\n v_min_u32 v17, -2, v17")
    a("v_permlane32_swap_b32 v16, v18\n v_permlane32_swap_b32 v17, v19\n s_mov_b32 exec_hi, 0")
    near_store("buffer_store_dwordx4 v[16:19], v97, s[20:23], s57 offen")
    a("s_mov_b32 exec_hi, -1")
    a("L_pubd:")
    stamp(6)
    base_pend = list(pend)
    a("s_mov_b32 s81, 0\n s_bitcmp1_b32 s6, 0\n s_cbranch_scc0 L_F\n s_cmp_eq_u32 s6, 1\n s_cbranch_scc0 L_R")

    def apass():
        for i in range(4): a(f"buffer_load_dwordx4 v[{20+4*i}:{23+4*i}], v2, s[20:23], s63 offen offset:{1024*i} sc1")
    apass()
    a("s_waitcnt vmcnt(5)\n s_cmp_eq_u32 s3, 0\n s_cbranch_scc1 L_tab1\n s_waitcnt vmcnt(4)\n s_branch L_tab1")
    a("L_tab:")
    lsepass(); a("s_waitcnt vmcnt(0)")
    a("L_tab1:")
    spin_end(180, "L_tab")
    a(f"v_max_f32_dpp v181, v180, v180 quad_perm:[1,0,3,2] {DPP}\n v_max_f32_dpp v181, v181, v181 quad_perm:[2,3,0,1] {DPP}")
    a("v_sub_f32 v180, v180, v181\n v_exp_f32 v180, v180")
    a(f"v_add_f32_dpp v181, v180, v180 quad_perm:[1,0,3,2] {DPP}\n v_add_f32_dpp v181, v181, v181 quad_perm:[2,3,0,1] {DPP}")
    a("v_rcp_f32 v181, v181\n v_mul_f32 v180, v180, v181\n s_mov_b64 exec, 0xffff\n ds_write_b32 v179, v180\n s_mov_b64 exec, -1")
    a("v_mov_b32 v8, s54\n v_mov_b32 v9, s54\n v_mov_b32 v10, s54\n v_mov_b32 v11, s54\n v_mov_b32 v12, v205\n s_add_u32 s82, s3, s7")
    a("s_branch L_wchk")
    a("L_wa:")
    a("s_mov_b64 exec, vcc"); apass(); a("s_mov_b64 exec, -1")
    a("L_wchk:")
    for i in range(4):
        a(f"s_waitcnt vmcnt({3 - i})\n ds_write_b128 v{172 + (i & 1)}, v[{20+4*i}:{23+4*i}] offset:{128 * (i >> 1)}")
        chk4(99, 20 + 4*i, i == 0)
    a("s_waitcnt lgkmcnt(0)")
    spin_end(99, "L_wa")
    stamp(10)
    if diag: a("s_waitcnt lgkmcnt(0)")
    a("s_cmp_eq_u32 s82, 0\n s_barrier")
    a("s_cbranch_scc0 L_wns\n buffer_store_dwordx4 v[8:11], v12, s[20:23], s61 offen sc1")
    a("L_wns:")
    for tt in range(16):
        a(f"ds_read_b128 v[{188+4*tt}:{191+4*tt}], v{174 + (tt & 1)} offset:{1024*tt}")
        if tt == 7: a("ds_read_b128 v[20:23], v178")
    def wfma(hh, i):
        a(f"v_mul_f32 v{52+i}, v{36+i}, v20" if hh == 0 else f"v_fmac_f32 v{52+i}, v{36+4*hh+i}, v{20+hh}")
    for tt in range(16):
        hh, t = tt >> 2, tt & 3
        a(f"s_waitcnt lgkmcnt({min(15, 15 - tt + (tt < 8))})")
        a(f"{MF} v[{36+4*hh}:{39+4*hh}], v[{100+4*tt}:{103+4*tt}], v[{188+4*tt}:{191+4*tt}], {'0' if t == 0 else f'v[{36+4*hh}:{39+4*hh}]'}")
        if hh >= 2: wfma(hh - 2, t)
    a("s_mov_b32 s82, 0x11111111\n s_mov_b32 s83, 0x11111111")
    for hh in (2, 3):
        for i in range(4): wfma(hh, i)
    for ctl in ("quad_perm:[1,0,3,2]", "quad_perm:[2,3,0,1]"):
        for i in range(4): a(f"v_add_f32_dpp v{52+i}, v{52+i}, v{52+i} {ctl} {DPP}")
    a("v_cvt_pk_bf16_f32 v52, v52, v53\n v_cvt_pk_bf16_f32 v53, v54, v55\n v_min_u32 v52, -2, v52\n v_min_u32 v53, -2, v53")
    a("s_mov_b64 exec, s[82:83]")
    a("buffer_store_dwordx2 v[52:53], v176, s[20:23], s62 offen sc1\n s_mov_b64 exec, -1\n s_mov_b32 s81, 0")
    stamp(9); flush()

    if diag:
        a("s_branch L_R2")
        pend[:] = base_pend
    a("L_R:")
    flush()
    a("L_R2:")
    a("s_cmp_eq_u32 s3, 0\n s_cbranch_scc0 L_fin")
    a("v_and_b32 v97, 1, v0\n v_cmp_eq_u32 vcc, 1, v97\n v_mov_b32 v98, 0x3f80\n v_mov_b32 v99, 0x3f800000\n v_cndmask_b32 v98, v98, v99, vcc\n v_bfe_u32 v97, v0, 1, 3")
    for d in range(4): a(f"v_cmp_eq_u32 vcc, {d}, v97\n v_cndmask_b32 v{8+d}, 0, v98, vcc")
    if R72:
        a("s_sub_u32 s59, s5, 27\n s_cmp_eq_u32 s6, 1\n s_cselect_b32 s59, s7, s59\n s_cselect_b32 s57, 1, 0\n s_cmp_lt_u32 s59, 4\n s_cbranch_scc0 L_r8")
        a("v_lshlrev_b32 v28, 5, v94\n v_lshl_add_u32 v28, v93, 9, v28")
        a("s_lshr_b32 s82, s4, 1\n s_and_b32 s83, s4, 1")
        a("s_mul_i32 s7, s82, 9\n s_add_u32 s7, s7, s83\n s_lshl_b32 s58, s59, 1\n s_add_u32 s7, s7, s58")
        a("s_lshl_b32 s83, s83, 1\n s_add_u32 s83, s83, s57\n s_mul_i32 s58, s83, 1152\n s_lshl_b32 s82, s82, 7\n s_add_u32 s58, s58, s82\n s_lshl_b32 s59, s59, 3\n s_add_u32 s58, s58, s59\n s_branch L_r9")
        a("L_r8:")
        a("s_cmp_eq_u32 s57, 1\n s_cbranch_scc0 L_fin\n s_cmp_lt_u32 s59, 8\n s_cbranch_scc0 L_fin\n s_cmp_lt_u32 s4, 2\n s_cbranch_scc0 L_fin")
        a("v_bfe_u32 v28, v0, 1, 1\n v_mul_u32_u24 v28, 1152, v28\n v_and_b32 v98, 1, v0\n v_lshl_add_u32 v28, v98, 4, v28\n v_lshl_add_u32 v28, v93, 3, v28")
        a("s_sub_u32 s7, s59, 4\n s_mov_b32 s57, s4\n s_lshl_b32 s58, s7, 5\n s_mul_i32 s82, s57, 2304\n s_add_u32 s58, s58, s82\n s_add_u32 s58, s58, 1024\n s_mul_i32 s7, s7, 9\n s_add_u32 s7, s7, 8")
        a("L_r9:")
        a(f"s_mul_i32 s44, s7, 18432\n s_lshl_b32 s82, s57, 6\n s_add_u32 s44, s44, s82\n s_add_u32 s44, s44, {WS_C}\n s_add_u32 s7, s7, s57")
        a("v_lshrrev_b32 v31, 2, v0\n v_lshlrev_b32 v31, 7, v31\n v_lshl_add_u32 v31, v94, 4, v31")
        for i in range(1, 5): a(f"s_add_u32 s{44+i}, s44, {4096*i}")
    else:
        a("s_cmp_eq_u32 s6, 1\n s_cbranch_scc1 L_r8\n s_cmp_lt_u32 s7, 32\n s_cbranch_scc0 L_fin")
        a("v_bfe_u32 v28, v0, 2, 1\n v_mul_u32_u24 v28, 1152, v28\n v_lshl_add_u32 v28, v94, 5, v28\n v_lshl_add_u32 v28, v93, 9, v28")
        a("s_lshr_b32 s82, s4, 1\n s_and_b32 s83, s4, 1\n s_sub_u32 s59, s5, 27")
        a("s_mul_i32 s7, s82, 9\n s_add_u32 s7, s7, s83\n s_lshl_b32 s58, s59, 1\n s_add_u32 s7, s7, s58")
        a("s_mul_i32 s58, s83, 2304\n s_lshl_b32 s82, s82, 7\n s_add_u32 s58, s58, s82\n s_lshl_b32 s59, s59, 3\n s_add_u32 s58, s58, s59\n s_branch L_r9")
        a("L_r8:")
        a("s_lshl_b32 s82, s4, 2\n s_add_u32 s82, s82, s7\n s_cmp_lt_u32 s82, 4\n s_cbranch_scc0 L_fin")
        a("v_bfe_u32 v28, v0, 1, 2\n v_mul_u32_u24 v28, 1152, v28\n v_and_b32 v98, 1, v0\n v_lshl_add_u32 v28, v98, 4, v28\n v_lshl_add_u32 v28, v93, 3, v28")
        a("s_lshl_b32 s58, s7, 5\n s_add_u32 s58, s58, 1024\n s_mul_i32 s7, s7, 9\n s_add_u32 s7, s7, 8")
        a("L_r9:")
        a(f"s_mul_i32 s44, s7, 18432\n s_add_u32 s44, s44, {WS_C}")
        for i in range(1, 5): a(f"s_add_u32 s{44+i}, s44, {4096*i}")
    a(f"v_lshlrev_b32 v29, 7, v0\n s_lshl_b32 s61, s4, 10\n s_add_u32 s61, s61, {WS_SC}\n s_mov_b32 s60, 0\n s_mov_b64 exec, 0xff")
    if PIPE: a("buffer_load_dword v30, v29, s[20:23], s61 offen sc1")
    a("L_rs:")
    a(f"buffer_load_dword v30, v29, s[20:23], s61 offen sc1\n s_add_u32 s60, s60, 1\n s_cmp_gt_u32 s60, {SPIN}\n s_cbranch_scc1 L_rs1")
    a(f"s_waitcnt vmcnt({PIPE})\n v_cmp_ne_u32 vcc, s54, v30\n s_cbranch_vccnz L_rs")
    a("L_rs1:")
    stamp(12)
    a("s_mov_b64 vcc, -1")
    a("L_ra:")
    a("s_mov_b64 exec, vcc")
    NR = 9 if R72 else 18
    for i in range(NR):
        if R72: a(f"buffer_load_dwordx4 v[{100+4*i}:{103+4*i}], v31, s[20:23], s{44+(i>>1)} offen offset:{2048*(i&1)} sc1")
        else:   a(f"buffer_load_dwordx4 v[{100+4*i}:{103+4*i}], v2, s[20:23], s{44+(i>>2)} offen offset:{1024*(i&3)} sc1")
    a("s_mov_b64 exec, -1")
    for i in range(NR):
        a(f"s_waitcnt vmcnt({NR - 1 - i})")
        a(f"{MF} v[52:55], v[8:11], v[{100+4*i}:{103+4*i}], {'0' if i == 0 else 'v[52:55]'}")
        chk4(99, 100 + 4*i, i == 0)
    spin_end(99, "L_ra")
    stamp(7)
    for i in range(4): a(f"v_add_f32_dpp v{52+i}, v{52+i}, v{52+i} row_ror:8 {DPP}")
    if R72:
        for i in range(4): a(f"v_add_f32_dpp v{52+i}, v{52+i}, v{52+i} row_ror:4 {DPP}")
    a("v_cvt_pk_bf16_f32 v52, v52, v53\n v_cvt_pk_bf16_f32 v53, v54, v55")
    a(f"s_mov_b64 exec, {0x000f000f if R72 else 0x00ff00ff:#x}\n buffer_store_dwordx2 v[52:53], v28, s[36:39], s58 offen")
    a(f"s_cmp_eq_u32 s7, 0\n s_cbranch_scc0 L_rend\n s_mov_b32 exec_lo, -1\n v_mov_b32 v54, s54\n v_lshlrev_b32 v55, 2, v0\n s_mov_b32 s82, {WS_EP}\n buffer_store_dword v54, v55, s[20:23], s82 offen sc1")
    a("L_rend:")
    if probe >= 0:
        if probe == 99: a("s_memrealtime s[86:87]")
        a("s_memrealtime s[88:89]\n s_waitcnt lgkmcnt(0)\n s_sub_u32 s86, s86, s84")
        a("L_probe:")
        a("s_memrealtime s[90:91]\n s_waitcnt lgkmcnt(0)\n s_sub_u32 s90, s90, s88\n s_cmp_lt_u32 s90, s86\n s_cbranch_scc1 L_probe")
    stamp(8); flush(); dump()
    a("s_endpgm")
    emit_stubs()
    a("L_fin:")
    if DIRTY:
        a(f"s_mov_b64 exec, -1\n s_lshl_b32 s74, s2, 2\n s_add_u32 s74, s74, s3\n s_lshl_b32 s74, s74, 12\n s_add_u32 s74, s74, 0x400000\n s_mov_b32 s22, 0x1000000")
        for i in range(DIRTY): a(f"buffer_store_dwordx4 v[8:11], v2, s[20:23], s74 offen offset:{1024*i} {DFL}")
    dump()
    a("s_endpgm")
    pend[:] = base_pend
    if AL: a(".p2align 12")
    a("L_F:")
    a("s_barrier")
    def sigld(): a("buffer_load_dword v88, v207, s[20:23], 0 offen sc1\n buffer_load_dword v89, v207, s[20:23], 0 offen offset:512 sc1")
    for n in range(nl, 28):
        if n == 27 - SP:
            if PW: a("buffer_load_dwordx4 v[56:59], v2, s[20:23], s52 offen sc1")
            sigld()
        if n < 27: late(n)
    for i in range(8): a(f"v_mov_b32 v{36+i}, 0")
    a("v_mov_b32 v60, s54\n v_mov_b32 v61, s54\n v_mov_b32 v62, s54\n v_mov_b32 v63, s54")
    a("s_mul_i32 s48, s51, 3\n s_add_u32 s48, s48, s3" if CNT == 1 else "s_sub_u32 s48, s3, s51\n s_add_u32 s48, s48, 2")
    a(f"s_lshl_b32 s64, s4, 7\n s_add_u32 s64, s64, {WS_CT}\n v_mov_b32 v66, 1\n v_mov_b32 v67, 0")
    a(f"s_mov_b32 s66, 0xaaaaaaaa\n s_mov_b32 s67, 0xaaaaaaaa\n v_mov_b32 v64, {f2u(1/576):#x}\n v_mov_b32 v65, {f2u(-2 * 0.7978845608028654 * 1.4426950408889634):#x}")
    a(f"s_waitcnt vmcnt({11 + PW})\n s_barrier")
    for n in range(18): trread(("a", 4*n), 4, 5, n)
    def bloads(par):
        lab = a.label("L_fb")
        a(f"s_cmp_eq_u32 s3, 0\n s_cbranch_scc0 {lab}")
        for p in par: a(f"buffer_load_dwordx4 v[{36+4*p}:{39+4*p}], v2, s[20:23], s65 offen offset:{1024*p} sc1")
        a(f"{lab}:")
        for p in par:
            for hf in range(2): a(f"buffer_load_dwordx4 v[{20+8*hf+4*p}:{23+8*hf+4*p}], v2, s[20:23], s63 offen offset:{2048*hf+1024*p} sc1")
    def sigstep():
        l1, l2 = a.label("L_fs"), a.label("L_fs")
        a("v_cmp_eq_u32 s[40:41], s54, v88\n v_cmp_eq_u32 s[42:43], s54, v89")
        a(f"s_andn2_b64 exec, s[40:41], s[44:45]\n s_cbranch_execz {l1}")
        bloads((0,))
        a(f"{l1}:\n s_andn2_b64 exec, s[42:43], s[46:47]\n s_cbranch_execz {l2}")
        bloads((1,))
        a(f"{l2}:\n s_mov_b64 exec, -1\n s_mov_b64 s[44:45], s[40:41]\n s_mov_b64 s[46:47], s[42:43]")
    def dfrag(j):
        b, off = (248 + (j & 3), (j >> 2) * 16384) if j < 8 else (252, 0)
        a(f"ds_read_b64_tr_b16 v[{100+4*j}:{101+4*j}], v{b} offset:{off}\n ds_read_b64_tr_b16 v[{102+4*j}:{103+4*j}], v{b} offset:{off+512}")
    a(f"s_mov_b64 s[44:45], 0\n s_mov_b64 s[46:47], 0\n s_mov_b32 s60, 0\n s_waitcnt vmcnt({SP})")
    stamp(7)
    a("s_branch L_fs1")
    a("L_fs:")
    sigld()
    a(f"s_add_u32 s60, s60, 1\n s_cmp_gt_u32 s60, {SPIN}\n s_cbranch_scc1 L_fall\n s_waitcnt vmcnt(0)")
    a("L_fs1:")
    sigstep()
    a("s_and_b64 s[40:41], s[40:41], s[42:43]\n s_cmp_eq_u64 s[40:41], -1\n s_cbranch_scc0 L_fs")
    stamp(12)
    a("L_fdn:")
    a("s_cmp_eq_u32 s48, 3\n s_cbranch_scc0 L_fna\n s_mov_b64 exec, 1\n buffer_atomic_add v66, v67, s[20:23], s64 offen sc0 sc1\n s_mov_b64 exec, -1")
    a("s_waitcnt vmcnt(1)\n s_branch L_fchk")
    a("L_fall:")
    bloads((0, 1)); a("s_branch L_fdn")
    a("L_fa:")
    a("s_mov_b64 exec, vcc"); bloads((0, 1)); a("s_mov_b64 exec, -1")
    a("L_fna:")
    a("s_waitcnt vmcnt(0)")
    a("L_fchk:")
    HD = 68
    for k, (d, r, sel, cin) in enumerate(((HD+4, 36, 184, 176), (HD, 20, 184, 172), (HD+4, 40, 184, 0), (HD, 24, 184, 0), (HD, 28, 188, 0), (HD, 32, 188, 0))):
        cc = f"v[{cin}:{cin+3}]" if cin else f"v[{d}:{d+3}]"
        a(f"{MF} v[{d}:{d+3}], v[{sel}:{sel+3}], v[{r}:{r+3}], {cc}")
        chk4(99, r, k == 0)
    a(f"v_cvt_pk_bf16_f32 v82, v{HD+4}, v{HD+5}\n v_cvt_pk_bf16_f32 v83, v{HD+6}, v{HD+7}")
    spin_end(99, "L_fa")
    stamp(8)
    a(f"v_cvt_pk_bf16_f32 v80, v{HD}, v{HD+1}\n v_cvt_pk_bf16_f32 v81, v{HD+2}, v{HD+3}")
    a(f"s_cmp_eq_u32 s3, 0\n ds_write_b64 v192, v[80:81]\n s_cbranch_scc0 L_fw8\n ds_write_b64 v192, v[82:83] offset:{8*IMG_T}")
    a("L_fw8:")
    a(f"v_add_f32 v86, v{HD}, v{HD+1}\n v_mul_f32 v87, v{HD}, v{HD}\n v_fmac_f32 v87, v{HD+1}, v{HD+1}")
    for i in range(2, 5): a(f"v_add_f32 v86, v86, v{HD+i}\n v_fmac_f32 v87, v{HD+i}, v{HD+i}")
    a("s_waitcnt lgkmcnt(0)\n s_barrier")
    for t in range(9): a(f"ds_read_b128 v[{20+4*t}:{23+4*t}], v194 offset:{t*IMG_T}")
    dp = lambda ctl: [f"v_add_f32_dpp v{r}, v{r}, v{r} {ctl} {DPP}" for r in (86, 87)]
    for i in range(5, 8): a(f"v_add_f32 v86, v86, v{HD+i}\n v_fmac_f32 v87, v{HD+i}, v{HD+i}")
    for x in dp("quad_perm:[1,0,3,2]") + dp("row_ror:8"): a(x)
    a("ds_write_b64 v193, v[86:87]")
    for k in range(3): a(f"ds_read_b64 v[{80+2*k}:{81+2*k}], v{180+k}")
    side = {2: ["s_waitcnt lgkmcnt(0)", "s_barrier", "ds_read_b64 v[86:87], v195"],
            3: [f"v_lshlrev_b32 v{HD+2*i}, 16, v{80+i}" for i in range(3)],
            4: [f"v_lshlrev_b32 v{HD+2*i}, 16, v{80+i}" for i in range(3, 6)],
            5: ["s_waitcnt lgkmcnt(0)"] + dp("quad_perm:[1,0,3,2]"),
            6: dp("quad_perm:[2,3,0,1]") + [f"v_and_b32 v{HD+1}, s78, v80"],
            7: dp("row_half_mirror") + [f"v_and_b32 v{HD+3}, s78, v81"],
            8: dp("row_mirror") + [f"v_and_b32 v{HD+1+2*i}, s78, v{80+i}" for i in range(2, 6)]}
    xld = "buffer_load_dwordx4 v[56:59], v2, s[20:23], s52 offen sc1"
    for t in range(9):
        h = 20 + 4 * t
        if t <= 2: a(f"s_waitcnt lgkmcnt({12 - t})")
        a(f"{MF} v[8:11], v[{h}:{h+3}], a[{4*t}:{4*t+3}], {'0' if t == 0 else 'v[8:11]'}")
        a(f"{MF} v[12:15], v[{h}:{h+3}], a[{36+4*t}:{39+4*t}], {'0' if t == 0 else 'v[12:15]'}")
        for x in side.get(t, []): a(x)
    a("s_cmp_eq_u32 s53, 1\n s_cbranch_scc1 L_frx")
    a("v_cndmask_b32 v11, v86, v87, s[66:67]\n v_cvt_pk_bf16_f32 v10, v9, v13\n v_min_u32 v8, -2, v8\n v_min_u32 v9, -2, v12\n v_min_u32 v10, -2, v10\n v_min_u32 v11, -2, v11")
    near_store("buffer_store_dwordx4 v[8:11], v2, s[20:23], s52 offen", "s49")
    for j in range(9): dfrag(j)
    a("s_branch L_fact")
    a("L_frx:")
    if PIPE: a(xld)
    for j in range(9): dfrag(j)
    a("L_frx1:")
    a(f"{xld}\n s_waitcnt vmcnt({PIPE})")
    def lastsig():
        a("s_cmp_eq_u32 s82, 16\n s_cbranch_scc0 L_fnc\n buffer_store_dwordx4 v[60:63], v205, s[20:23], s61 offen sc1\nL_fnc:")
    chk4(99, 56, True); spin_end(99, "L_frx1")
    a("v_readfirstlane_b32 s82, v66")
    if CNT == 2: lastsig()
    c1 = -2 * 0.7978845608028654 * 1.4426950408889634
    a(f"v_add_f32_dpp v86, v59, v86 quad_perm:[0,0,2,2] {DPP}\n v_add_f32_dpp v87, v59, v87 quad_perm:[1,1,3,3] {DPP}")
    a("v_lshlrev_b32 v10, 16, v58\n v_and_b32 v11, s78, v58")
    a(f"v_mul_f32 v86, {f2u(1/576):#x}, v86\n v_fmaak_f32 v87, v87, v64, {f2u(1e-5):#x}")
    a("v_add_f32 v9, v9, v10\n v_fma_f32 v87, -v86, v86, v87\n v_add_f32 v8, v8, v56\n v_rsq_f32 v87, v87")
    a("v_fma_f32 v8, -v86, v9, v8\n v_add_f32 v13, v13, v11\n v_mul_f32 v8, v8, v87\n v_add_f32 v12, v12, v57")
    a(f"v_mul_f32 v9, v8, v8\n v_fma_f32 v12, -v86, v13, v12\n v_fmamk_f32 v9, v9, {f2u(c1 * 0.044715):#x}, v65\n v_mul_f32 v12, v12, v87\n v_mul_f32 v9, v9, v8")
    a("v_exp_f32 v9, v9\n v_mul_f32 v8, v8, v12\n v_add_f32 v9, 1.0, v9\n v_rcp_f32 v9, v9\n v_mul_f32 v8, v8, v9")
    a("v_cvt_pk_bf16_f32 v8, v8, v8\n ds_write_b16 v196, v8")
    if CNT == 3: lastsig()
    a("s_waitcnt lgkmcnt(0)")
    a("L_fact:")
    a("s_barrier")
    stamp(9)
    if diag: a("s_waitcnt lgkmcnt(0)")
    for e in range(4): a(f"ds_read_b128 v[{20+4*e}:{23+4*e}], v{197+e}")
    for e in range(4):
        a(f"s_waitcnt lgkmcnt({3 - e})")
        for acc in (2, 0, 1):
            if acc == 2 and e > 0: continue
            w = 100 + 4 * (4 * acc + e)
            a(f"{MF} v[{HD+4*acc}:{HD+3+4*acc}], v[{w}:{w+3}], v[{20+4*e}:{23+4*e}], v[{HD+4*acc}:{HD+3+4*acc}]")
    a(f"v_cvt_pk_bf16_f32 v84, v{HD+8}, v{HD+9}\n v_cvt_pk_bf16_f32 v85, v{HD+10}, v{HD+11}\n v_min_u32 v84, -2, v84\n v_min_u32 v85, -2, v85")
    a("s_mov_b32 exec_lo, 0x11111111\n s_mov_b32 exec_hi, 0x11111111")
    a("buffer_store_dwordx2 v[84:85], v204, s[20:23], s62 offen sc1\n s_mov_b64 exec, -1")
    for i in range(4): a(f"v_cvt_pk_bf16_f32 v{80+i}, v{HD+2*i}, v{HD+1+2*i}")
    for i in range(4): a(f"v_min_u32 v{80+i}, -2, v{80+i}")
    a("buffer_store_dwordx4 v[80:83], v203, s[20:23], s62 offen sc1")
    stamp(10); flush(); dump()
    a("s_endpgm")
    emit_stubs()

    a("L_end:")
    if not SAN:
        from asmlib import Ins
        for i, it in enumerate(a.items):
            if isinstance(it, Ins) and it.op == "v_min_u32" and it.ops[1] == "-2":
                a.items[i] = Ins(f"v_mov_b32 {it.ops[0]}, {it.ops[2]}") if it.ops[0] != it.ops[2] else None
        a.items = [x for x in a.items if x is not None]
    body = a.finish().replace("CODE_REST", "L_end-L_pc")
    return f"""{HEADER}; @launch grid=(256,1,1) block=(256,1,1) lds={LDS_BYTES}
.amdgcn_target "amdgcn-amd-amdhsa--gfx950"
.text
.globl {KN}
.p2align 8
.type {KN},@function
{KN}:
{body}
    s_endpgm
.section .rodata,"a"
.p2align 6
.amdhsa_kernel {KN}
  .amdhsa_next_free_vgpr 512
  .amdhsa_next_free_sgpr 102
  .amdhsa_accum_offset 256
  .amdhsa_group_segment_fixed_size 0
  .amdhsa_kernarg_size 96
  .amdhsa_user_sgpr_count 2
  .amdhsa_user_sgpr_kernarg_segment_ptr 1
  .amdhsa_system_sgpr_workgroup_id_x 1
.end_amdhsa_kernel
"""

if __name__ == "__main__":
    out = sys.argv[1]
    kw = {}
    for x in sys.argv[2:]:
        k, v = x.split("=")
        kw[k] = int(v) if v.lstrip("-").isdigit() else v
    open(out, "w").write(gen(**kw))
```

```python
import sys, struct
from asmlib import Asm

KN = "sequential_preLN__sliding_block_cached__geglu_ffn__decode_kernel"
HEADER = open("sequential_preLN__sliding_block_cached__geglu_ffn__decode.s.ref").read().split("; Override launch")[0]

def f2u(x): return struct.unpack("<I", struct.pack("<f", x))[0]

WS_Q   = 0x0
WS_EP  = 0x10000
WS_FL  = 0x10400
WS_SB  = 0x1A000
WS_SC  = 0x1C000
WS_X   = 0x1E000
WS_ST  = WS_X + 294912
WS_A   = WS_ST + 32768
WS_B   = WS_A + 131072
WS_CT  = WS_B + 36864
WS_C   = WS_CT + 1024
WS_END = WS_C + 663552
WS_DIAG = 0x180000
R0, R1 = 0, 73728
IMG = 147456; IMG_T = 272
CMB = 152576
ST  = 156672
HST = 156800
ACT = 157440
ZER = ACT + 512
XIM = ZER + 512
LDS_BYTES = XIM + 5120
OIM = R1
WTS = HST
SPIN = 1 << 18
DPP = "row_mask:0xf bank_mask:0xf"
MF = "v_mfma_f32_16x16x32_bf16"

def gen(diag=False, probe=-1, NT="nt", PNT="none", KF=2, NK1=7, QPOLL=2, QL=7, LAG=9, STEP=1,
        WIN=6, WINV=0, FUN=2, NQF=17, NWF=17, N3F=22, LNP=5, PFC=1, FR=4, RR=0, PW=1, NFF=0, QV=0, QI=1, CNT=3, R72=1, SP=0, PIPE=1, SAN=0, DIRTY=0, DFL='', WL=1, RN=4, NRF=17, EPE=1, CLX=0, CLA=0, NW0=0, K1F=0, E0F=0, LA=4, LAW=5, XP=1, FS=0, FP=0, AP=0, MUL="0x9E3779B1", DNT='none',
        LOC=1, CPOS=10, NTF=5, AL=1, WINF=0, X=""):
    a = Asm()
    pend = []
    NT, PNT = [("" if x == "none" else x) for x in (NT, PNT)]
    assert LAG <= 9
    fine = "m" in X
    def fs(i):
        if fine: a(f"s_memtime s[{84+2*i}:{85+2*i}]")
    def fdump():
        if fine:
            a("s_waitcnt lgkmcnt(0)")
            for i in range(9): a(f"v_writelane_b32 v255, s{84+2*i}, {16+i}")
    def stamp(i):
        if fine: return
        if probe >= 0:
            if i == 0: a("s_memrealtime s[84:85]")
            if i == probe: a("s_memrealtime s[86:87]")
        if not diag: return
        p = 84 + 2 * (len(pend))
        assert p <= 100
        a(f"s_memrealtime s[{p}:{p+1}]"); pend.append((i, p))
    def flush():
        if not diag: return
        a("s_waitcnt lgkmcnt(0)")
        for i, p in pend: a(f"v_writelane_b32 v255, s{p}, {i}")
        pend.clear()
    def dump():
        if not diag: return
        a("s_mov_b64 exec, -1\n v_writelane_b32 v255, s81, 14"); fdump()
        a("s_lshl_b32 s74, s2, 2\n s_add_u32 s74, s74, s3\n s_lshl_b32 s74, s74, 8")
        a(f"s_add_u32 s74, s74, {WS_DIAG}")
        a("v_lshlrev_b32 v254, 2, v0")
        a("s_mov_b32 s22, 0x200000")
        a("buffer_store_dword v255, v254, s[20:23], s74 offen")
    def srd(d, p, n):
        a(f"s_mov_b64 s[{d}:{d+1}], s[{p}:{p+1}]\n s_mov_b32 s{d+2}, {n}\n s_mov_b32 s{d+3}, 0x20000")
    def rowred(regs, op):
        for ctl in ("quad_perm:[1,0,3,2]", "quad_perm:[2,3,0,1]", "row_half_mirror", "row_mirror"):
            for r in regs: a(f"{op}_dpp v{r}, v{r}, v{r} {ctl} {DPP}")
    def xrow(r, t, op):
        for sw in ("v_permlane16_swap_b32", "v_permlane32_swap_b32"):
            a(f"v_mov_b32 v{t}, v{r}\n {sw} v{r}, v{t}\n {op} v{r}, v{r}, v{t}")
    def rnd(r):
        a(f"v_cvt_pk_bf16_f32 v{r}, v{r}, v{r}\n v_and_b32 v{r}, s78, v{r}")
    def chk4(acc, r, first):
        if first: a(f"v_max3_u32 v{acc}, v{r}, v{r+1}, v{r+2}\n v_max_u32 v{acc}, v{r+3}, v{acc}")
        else:     a(f"v_max3_u32 v{acc}, v{r}, v{r+1}, v{acc}\n v_max3_u32 v{acc}, v{r+2}, v{r+3}, v{acc}")
    def spin_end(acc, again):
        lab, stub = a.label("L_ok"), a.label("L_again")
        a(f"v_cmp_eq_u32 vcc, -1, v{acc}\n s_cbranch_vccnz {stub}\n{lab}:")
        stubs.append(f"{stub}:\n s_add_u32 s81, s81, 1\n s_cmp_lt_u32 s81, {SPIN}\n s_cbranch_scc1 {again}\n s_branch {lab}")
    stubs = []
    def emit_stubs():
        for x in stubs: a(x)
        stubs.clear()
    def line_store(val, so):
        a(f"v_mov_b32 v97, {val}\n v_lshlrev_b32 v98, 2, v0\n s_mov_b32 exec_hi, 0\n buffer_store_dword v97, v98, s[20:23], {so} offen sc1\n s_mov_b32 exec_hi, -1")
    def near_store(text, flag="s55"):
        if not LOC: a(text + " sc1"); return
        l1, l2 = a.label("L_far"), a.label("L_st")
        a(f"s_cmp_eq_u32 {flag}, 1\n s_cbranch_scc0 {l1}\n {text}\n s_branch {l2}\n{l1}:\n {text} sc1\n{l2}:")
    class LQ:
        def __init__(q): q.ops = []
        def issue(q, name, text): a(text); q.ops += [name] * len([x for x in text.split("\n") if x.strip()])
        def wait(q, name):
            last = max(i for i, x in enumerate(q.ops) if x == name)
            a(f"s_waitcnt lgkmcnt({min(15, len(q.ops) - 1 - last)})"); q.ops = q.ops[last + 1:]
    free = [False]
    def kvload(kind, i):
        w = WIN if (kind == "k" and i >= KF or kind == "v" and i < QPOLL + QL) else (WINV if kind == "v" else 0)
        if w and free[0]:
            lab = a.label("L_t")
            a(f"s_cbranch_vccnz {lab}\n s_waitcnt vmcnt({w-1})\n{lab}:")
        elif w: a(f"s_waitcnt vmcnt({w-1})")
        if kind in "kK": a(f"buffer_load_dwordx4 a[{4*i}:{4*i+3}], v1, s[8:11], s68 offen {NT}")
        else:           a(f"buffer_load_dwordx4 a[{128+4*i}:{131+4*i}], v2, s[12:15], s68 offen {NT}")
        a(f"s_addk_i32 s68, {STEP*1024}\n s_and_b32 s68, s68, s69")

    a("s_cmp_ge_u32 s2, 256\n s_cbranch_scc1 L_end")
    a("s_load_dwordx16 s[44:59], s[0:1], 0\n s_load_dwordx8 s[60:67], s[0:1], 64")
    if diag:
        for r in range(86, 102, 2): a(f"s_mov_b64 s[{r}:{r+1}], 0")
    stamp(0)
    a("v_lshrrev_b32 v1, 6, v0\n s_and_b32 s4, s2, 7\n s_lshr_b32 s5, s2, 3\n v_readfirstlane_b32 s3, v1")
    if PFC:
        a("s_cmp_eq_u32 s5, 31\n s_cbranch_scc0 L_nopfc")
        a("s_getpc_b64 s[82:83]")
        a("L_pc:")
        a("v_lshlrev_b32 v97, 7, v0\n v_cmp_gt_u32 vcc, CODE_REST, v97\n s_and_saveexec_b64 s[70:71], vcc\n s_cbranch_execz L_pc2\n global_load_dword v206, v97, s[82:83]")
        a("L_pc2:\n s_mov_b64 exec, -1")
        a("L_nopfc:")
    a("v_and_b32 v0, 63, v0")
    if diag: a("v_mov_b32 v255, 0")
    a("s_lshr_b32 s76, s5, 4\n s_lshl_b32 s74, s4, 1\n s_add_u32 s76, s76, s74")
    a("s_and_b32 s77, s5, 15")
    a("s_movk_i32 s69, 0x7fff")
    a(f"s_lshl_b32 s68, s2, 2\n s_add_u32 s68, s68, s3\n s_mul_i32 s68, s68, {MUL}\n s_lshr_b32 s68, s68, 27\n s_lshl_b32 s68, s68, 10")
    a("v_bfe_u32 v92, v0, 2, 2\n v_lshrrev_b32 v93, 4, v0\n v_and_b32 v94, 3, v0")
    a("v_lshlrev_b32 v1, 8, v92\n v_lshl_add_u32 v1, v93, 6, v1\n v_lshl_add_u32 v1, v94, 4, v1")
    a("v_lshrrev_b32 v96, 3, v0\n v_and_b32 v95, 7, v0\n v_lshlrev_b32 v97, 7, v95\n v_lshl_add_u32 v97, v96, 13, v97")
    a("s_lshr_b32 s82, s77, 2\n s_lshl_b32 s82, s82, 4\n s_add_u32 s82, s82, s76\n s_lshl_b32 s82, s82, 21")
    a(f"s_and_b32 s83, s77, 3\n s_lshl_b32 s83, s83, 2\n s_add_u32 s83, s83, s3\n s_lshl_b32 s83, s83, 15\n s_add_u32 s82, s82, s83\n s_add_u32 s82, s82, {6144*256}")
    a("s_mov_b32 s10, 32768\n s_mov_b32 s11, 0x20000\n s_mov_b32 s18, 4718592\n s_mov_b32 s19, 0x20000")
    R0ROW = 576 - 20 * (8 + RR)
    assert R0ROW - 32 * (8 + FR) >= 0
    a(f"s_lshl_b32 s73, s5, 2\n s_add_u32 s73, s73, s3\n s_mul_i32 s74, s73, {8 + FR}\n s_add_u32 s74, s74, {(R0ROW - 40*(8 + FR)) & 0xffffffff:#x}\n s_lshl_b32 s73, s73, 3\n s_add_u32 s73, s73, {(R0ROW - 864) & 0xffffffff:#x}")
    a("s_cmp_lt_u32 s5, 10\n s_cselect_b32 s73, s74, s73\n s_lshl_b32 s73, s73, 13\n s_lshl_b32 s74, s4, 10\n s_add_u32 s73, s73, s74")
    a("v_lshlrev_b32 v2, 4, v0")
    a("v_mov_b32 v184, -1\n v_mov_b32 v185, -1\n v_mov_b32 v186, -1\n v_mov_b32 v187, -1")
    a("s_sub_u32 s7, s5, 27\n s_lshl_b32 s7, s7, 3\n s_add_u32 s7, s7, s4")
    a(f"s_lshl_b32 s75, s7, 2\n s_add_u32 s75, s75, s3\n s_mul_i32 s75, s75, 6144\n s_add_u32 s75, s75, {WS_ST}")
    a(f"s_mov_b32 s22, {WS_END}\n s_mov_b32 s23, 0x20000")
    a("s_lshr_b32 s70, s5, 1\n s_lshl_b32 s70, s70, 3\n s_add_u32 s70, s70, s4")
    a("s_sub_u32 s74, s5, 10\n s_cmp_lt_u32 s74, 17\n s_cselect_b32 s74, 0, s70\n s_cmp_lt_u32 s74, 9")
    if "s" in X: stamp(7)
    a("s_waitcnt lgkmcnt(0)")
    if "s" in X: stamp(8)
    a(f"s_load_dword s54, s[66:67], {WS_EP}")
    a("s_mov_b64 s[16:17], s[50:51]\n s_mov_b64 s[20:21], s[66:67]\n s_cbranch_scc1 L_notq")
    a(f"buffer_load_dword v207, v97, s[16:19], s73 offen {PNT}")
    a("s_cmp_lt_u32 s5, 27\n s_cbranch_scc0 L_rc")
    if FR:
        m = (1 << (8 * FR)) - 1
        a(f"s_add_u32 s73, s73, 65536\n s_mov_b32 exec_lo, {m & 0xffffffff:#x}\n s_mov_b32 exec_hi, {m >> 32:#x}\n buffer_load_dword v208, v97, s[16:19], s73 offen {PNT}\n s_mov_b64 exec, -1")
    a("s_branch L_notq")
    a("L_rc:")
    if RR:
        m = (1 << (8 * RR)) - 1
        a(f"s_sub_u32 s73, s5, 27\n s_lshl_b32 s73, s73, 2\n s_add_u32 s73, s73, s3\n s_mul_i32 s73, s73, {RR*8192}\n s_lshl_b32 s74, s4, 10\n s_add_u32 s73, s73, s74\n s_add_u32 s73, s73, {(R0ROW + 160)*8192}")
        a(f"s_mov_b32 exec_lo, {m & 0xffffffff:#x}\n s_mov_b32 exec_hi, {m >> 32:#x}\n buffer_load_dword v208, v97, s[16:19], s73 offen {PNT}\n s_mov_b64 exec, -1")
    for i in range(6):
        if i == 3: a("s_add_u32 s75, s75, 3072")
        a(f"buffer_store_dwordx4 v[184:187], v2, s[20:23], s75 offen offset:{1024*(i%3)} sc1")
    a("L_notq:")
    a("s_add_u32 s8, s46, s82\n s_addc_u32 s9, s47, 0")
    for i in range(KF): kvload("k", i)
    if "s" in X:
        stamp(9); a("s_waitcnt vmcnt(0)"); stamp(10); flush(); a("s_mov_b32 s81, 0"); dump(); a("s_endpgm")
    a("s_add_u32 s12, s48, s82\n s_addc_u32 s13, s49, 0\n s_mov_b32 s14, 32768\n s_mov_b32 s15, 0x20000")
    srd(24, 44, 4608)
    a("s_and_b32 s82, s3, 1\n s_lshl_b32 s82, s82, 2")
    a("v_and_b32 v97, 2, v96\n v_or_b32 v97, s82, v97\n v_xor_b32 v95, v95, v97\n v_lshlrev_b32 v95, 4, v95")
    a("s_lshl_b32 s83, s3, 10\n s_mov_b32 m0, s83\n s_mov_b32 s78, 0xffff0000")
    a("s_cmp_lt_u32 s5, 18\n s_cbranch_scc1 L_df\n s_cmp_lt_u32 s5, 27\n s_cbranch_scc1 L_dw")
    a("s_mov_b32 s6, 3\n s_branch L_kld")
    a("L_dw:")
    a("s_mov_b32 s6, 1\n s_sub_u32 s7, s5, 18\n s_mov_b32 s71, 36864\n s_mul_i32 s73, s4, 589824\n s_lshl_b32 s82, s7, 7\n s_add_u32 s73, s73, s82")
    a("s_mul_i32 s75, s3, 9216\n s_movk_i32 s74, 1152\n s_mov_b64 s[16:17], s[52:53]\n s_branch L_dma")
    a("L_df:")
    a(f"s_mov_b32 s6, 2\n s_mul_i32 s82, s3, 1152\n s_add_u32 m0, s82, {XIM}\n s_mov_b32 exec_hi, 15")
    a("buffer_load_dwordx4 v2, s[24:27], s82 offen lds\n buffer_load_dwordx4 v2, s[24:27], s82 offen offset:576 lds\n s_mov_b32 exec_hi, -1\n s_mov_b32 m0, s83")
    a(f"s_and_b32 s51, s5, 1\n s_lshl_b32 s52, s70, 2\n s_add_u32 s52, s52, s3\n s_lshl_b32 s52, s52, 10\n s_add_u32 s52, s52, {WS_X}")
    a("s_lshr_b32 s74, s3, 1\n s_cmp_eq_u32 s74, s51\n s_cselect_b32 s53, 1, 0\n s_cbranch_scc0 L_nib")
    a("buffer_store_dwordx4 v[184:187], v2, s[20:23], s52 offen sc1")
    a("L_nib:")
    a("s_cmp_lt_u32 s5, 10\n s_cbranch_scc1 L_kld")
    a("s_mov_b32 s6, 0\n s_lshl_b32 s7, s4, 3\n s_add_u32 s7, s7, s5\n s_sub_u32 s7, s7, 10\n s_movk_i32 s74, 8192\n s_mov_b32 s71, 262144")
    a("s_lshl_b32 s73, s7, 7\n s_lshl_b32 s75, s3, 16")
    for i in range(8): a(f"v_mov_b32 v{188+i}, 0")
    a("s_mov_b32 exec_hi, 15")
    a("buffer_load_dwordx4 v[188:191], v2, s[24:27], s82 offen\n buffer_load_dwordx4 v[192:195], v2, s[24:27], s82 offen offset:576\n s_mov_b32 exec_hi, -1")
    a("L_dma:")
    a("s_add_u32 s73, s73, s75\n v_mad_u32_u24 v3, v96, s74, v95")
    def layernorm():
        a("s_cmp_eq_u32 s6, 0\n s_cbranch_scc0 L_noln")
        a(f"s_waitcnt vmcnt({LNP})")
        for i in range(8):
            a(f"v_lshlrev_b32 v{172+2*i}, 16, v{188+i}\n v_and_b32 v{173+2*i}, s78, v{188+i}")
        a("v_add_f32 v196, v172, v173")
        for i in range(2, 16): a(f"v_add_f32 v196, v196, v{172+i}")
        rowred([196], "v_add_f32"); xrow(196, 197, "v_add_f32")
        a(f"v_mul_f32 v196, {f2u(1/576):#x}, v196")
        a("v_sub_f32 v198, v172, v196\n v_mul_f32 v197, v198, v198")
        for i in range(1, 16): a(f"v_sub_f32 v198, v{172+i}, v196\n v_fmac_f32 v197, v198, v198")
        a("v_cmp_gt_u32 vcc, 36, v0\n v_cndmask_b32 v197, 0, v197, vcc")
        rowred([197], "v_add_f32"); xrow(197, 198, "v_add_f32")
        a(f"v_mul_f32 v197, {f2u(1/576):#x}, v197")
        rnd(196); rnd(197)
        a(f"v_add_f32 v197, {f2u(1e-5):#x}, v197"); rnd(197)
        a("v_sqrt_f32 v197, v197"); rnd(197)
        a("v_rcp_f32 v197, v197")
        for i in range(8):
            lo, hi = 172 + 2*i, 173 + 2*i
            a(f"v_sub_f32 v{lo}, v{lo}, v196\n v_sub_f32 v{hi}, v{hi}, v196\n v_cvt_pk_bf16_f32 v198, v{lo}, v{hi}")
            a(f"v_lshlrev_b32 v{lo}, 16, v198\n v_and_b32 v{hi}, s78, v198\n v_mul_f32 v{lo}, v{lo}, v197\n v_mul_f32 v{hi}, v{hi}, v197")
            a(f"v_cvt_pk_bf16_f32 v{188+i}, v{lo}, v{hi}")
        a(f"v_lshrrev_b32 v198, 2, v0\n v_mul_u32_u24 v198, {IMG_T}, v198\n v_lshl_add_u32 v198, v94, 6, v198")
        a(f"s_lshl_b32 s82, s3, 4\n s_add_u32 s82, s82, {IMG}\n v_add_u32 v198, s82, v198")
        a("s_mov_b64 exec, vcc")
        a(f"ds_write_b128 v198, v[188:191]\n ds_write_b128 v198, v[192:195] offset:{9*IMG_T}")
        a("s_mov_b64 exec, -1")
        a("L_noln:")
    for n in range(18):
        if n == LNP: layernorm()
        if n == 16: a("s_cmp_eq_u32 s6, 1\n s_cbranch_scc1 L_kld")
        if WIN and n + KF >= WIN + FUN: a(f"s_waitcnt vmcnt({WIN + FUN - 1})")
        a(f"buffer_load_dwordx4 v3, s[16:19], s73 offen {NT} lds")
        if n < 17: a("s_addk_i32 m0, 0x1000\n s_add_u32 s73, s73, s71")
    a("L_kld:")
    nk = KF
    for i in range(NK1):
        kvload("K" if E0F else "k", nk); nk += 1
        if i == 0:
            srd(28, 56, 5308416); srd(32, 58, 5308416); srd(36, 62, 4608); srd(24, 60, 5308416)
            a(f"s_mov_b32 s79, {f2u(128 ** -0.5):#x}\n s_mov_b32 s80, {f2u(1.4426950408889634):#x}\n s_getreg_b32 s42, hwreg(HW_REG_XCC_ID, 0, 3)")
        if i == 1:
            a("v_lshrrev_b32 v97, 1, v92\n v_and_b32 v98, 1, v93\n v_lshl_or_b32 v97, v98, 1, v97\n v_xor_b32 v97, s3, v97")
            a("v_lshl_add_u32 v4, v93, 3, v92\n v_lshlrev_b32 v4, 7, v4\n v_lshl_add_u32 v4, v97, 5, v4\n v_lshl_add_u32 v4, v94, 3, v4\n v_add_u32 v5, 36864, v4")

    a(f"s_waitcnt vmcnt({NK1}) lgkmcnt(0)\n s_barrier\n s_add_u32 s54, s54, 16\n s_add_u32 s43, s54, s42")
    stamp(1)
    a("s_cmp_eq_u32 s3, 0\n s_cbranch_scc0 L_etr")
    a(f"s_lshl_b32 s82, s4, 5\n s_add_u32 s82, s82, s5\n s_add_u32 s83, s7, 256\n s_cmp_eq_u32 s6, 3\n s_cselect_b32 s82, s83, s82\n s_lshl_b32 s82, s82, 7\n s_add_u32 s82, s82, {WS_FL}")
    line_store("s43", "s82")
    a("L_etr:")
    def trread(dst, base_lo, base_hi, t):
        b, off = (base_lo, t * 4096) if t < 9 else (base_hi, (t - 9) * 4096)
        k, n = dst
        a(f"ds_read_b64_tr_b16 {k}[{n}:{n+1}], v{b} offset:{off}\n ds_read_b64_tr_b16 {k}[{n+2}:{n+3}], v{b} offset:{off+512}")
    for j in range(18):
        if j % 6 == 0:
            kvload("K", nk); nk += 1
            lab = a.label("L_ne"); a(f"s_cmp_lt_u32 s6, 2\n s_cbranch_scc0 {lab}")
        trread(("v", 100 + 4*j), 4, 5, j)
        if j % 6 == 5: a(f"{lab}:")
    a(f"s_cmp_eq_u32 s6, 0\n s_cbranch_scc0 {'L_k1' if QI else 'L_k2'}")
    a(f"v_lshl_add_u32 v198, v93, 2, v94\n v_lshlrev_b32 v198, 4, v198\n v_add_u32 v198, {IMG}, v198")
    for t in range(18): a(f"ds_read_b128 v[{20+4*t}:{23+4*t}], v198 offset:{t*IMG_T}")
    if QI: kvload("K", nk)
    a("s_waitcnt lgkmcnt(0)")
    for t in range(18):
        a(f"{MF} v[16:19], v[{100+4*t}:{103+4*t}], v[{20+4*t}:{23+4*t}], {'0' if t == 0 else 'v[16:19]'}")
        if QI and t in (8, 17): kvload("K", nk + 1 + t // 9)
    a("v_lshlrev_b32 v198, 8, v94\n v_bfe_u32 v97, v0, 4, 1\n v_lshl_add_u32 v198, v97, 6, v198\n v_bfe_u32 v97, v0, 5, 1\n v_lshl_add_u32 v198, v97, 4, v198")
    a(f"s_lshr_b32 s83, s3, 1\n s_lshl_b32 s83, s83, 7\n s_and_b32 s82, s3, 1\n s_lshl_b32 s82, s82, 5\n s_add_u32 s83, s83, s82\n s_add_u32 s83, s83, {CMB}\n v_add_u32 v198, s83, v198")
    a(f"v_add_u32 v199, {CMB}, v2\n v_and_b32 v97, 15, v0\n v_lshlrev_b32 v97, 4, v97\n v_lshl_add_u32 v97, v93, 14, v97\n s_lshl_b32 s82, s7, 8")
    a("v_cvt_pk_bf16_f32 v16, v16, v17\n v_cvt_pk_bf16_f32 v18, v18, v19\n v_mov_b32 v17, s54\n v_mov_b32 v19, s54")
    a("s_mov_b32 exec_lo, 0x000f000f\n s_mov_b32 exec_hi, 0x000f000f\n ds_write_b128 v198, v[16:19]\n s_mov_b64 exec, -1")
    a("s_cmp_eq_u32 s3, 0\n s_waitcnt lgkmcnt(0)\n s_barrier\n s_cbranch_scc0 L_k2")
    a("ds_read_b128 v[16:19], v199\n s_waitcnt lgkmcnt(0)")
    a("buffer_store_dwordx4 v[16:19], v97, s[20:23], s82 offen sc1")
    stamp(11)
    if QI:
        a("s_branch L_k2\nL_k1:")
        for i in range(3):
            if K1F == 2: kvload("K", nk)
            elif K1F:
                lab = a.label("L_t"); a(f"s_cmp_eq_u32 s3, 0\n s_cbranch_scc1 {lab}\n s_waitcnt vmcnt({WIN-1})\n{lab}:"); kvload("K", nk)
            else: kvload("k", nk)
            nk += 1
    a("L_k2:")
    C = []
    c = C.append
    M = "s[66:67]"
    c("s_sub_u32 s83, s70, 9\n s_mul_i32 s50, s83, 9363\n s_lshr_b32 s50, s50, 16\n s_mul_i32 s75, s50, 7\n s_sub_u32 s83, s83, s75\n s_cmp_gt_u32 s83, 2\n s_addc_u32 s83, s83, 0\n"
      "s_cmp_lt_u32 s70, 9\n s_cselect_b32 s50, s70, s50\n s_cselect_b32 s83, 3, s83\n s_lshl_b32 s50, s50, 3\n s_add_u32 s50, s50, s83")
    c(f"s_lshl_b32 s58, s50, 7\n s_mul_i32 s83, s3, 73728\n s_add_u32 s58, s58, s83\n s_mul_i32 s83, s51, {288*9216}\n s_add_u32 s58, s58, s83\n s_mov_b32 s73, s58\n"
      "s_lshl_b32 s59, s50, 1\n s_add_u32 s59, s59, s51\n s_lshl_b32 s59, s59, 2\n s_add_u32 s59, s59, s3\n s_mul_i32 s59, s59, 9216\n s_lshl_b32 s83, s3, 10\n s_mov_b32 m0, s83")
    c("s_movk_i32 s83, 9216\n v_mad_u32_u24 v6, v96, s83, v95\n s_movk_i32 s83, 1152\n v_mad_u32_u24 v3, v96, s83, v95\n"
      "v_bfe_u32 v97, v0, 1, 2\n v_mul_u32_u24 v97, 1152, v97\n v_bfe_u32 v98, v0, 5, 1\n v_lshl_add_u32 v97, v98, 6, v97\n v_bfe_u32 v98, v0, 3, 1\n v_lshl_add_u32 v97, v98, 5, v97")
    c("v_and_b32 v98, 1, v0\n v_lshl_add_u32 v97, v98, 4, v97\n v_bfe_u32 v98, v0, 4, 1\n v_lshl_add_u32 v97, v98, 3, v97\n"
      f"s_lshl_b32 s83, s3, 7\n s_mul_i32 s75, s51, 576\n s_add_u32 s83, s83, s75\n s_add_u32 s83, s83, {XIM}\n v_add_u32 v97, s83, v97\n ds_read_b64 v[192:193], v97\n ds_read_b64 v[194:195], v97 offset:512")
    c("v_mov_b32 v184, 0x3f803f80\n v_mov_b32 v185, v184\n v_mov_b32 v186, v184\n v_mov_b32 v187, v184\n"
      f"v_mul_u32_u24 v97, {IMG_T}, v0\n v_add_u32 v97, {IMG + 256}, v97\n s_mov_b64 exec, 0x1ff\n ds_write_b128 v97, v[184:187]\n s_mov_b64 exec, -1")
    c(f"v_mov_b32 v188, 0\n v_mov_b32 v189, 0\n v_mov_b32 v190, 0\n v_mov_b32 v191, 0\n v_mov_b32 v97, {ZER}\n ds_write_b128 v97, v[188:191]")
    c("s_waitcnt lgkmcnt(0)\n s_cmp_eq_u32 s3, 0\n s_cselect_b32 s66, -1, 0\n s_mov_b32 s67, 0\n"
      f"v_cndmask_b32 v194, 0, v194, {M}\n v_cndmask_b32 v195, 0, v195, {M}\n" +
      "\n".join(f"v_lshlrev_b32 v{172+2*i}, 16, v{192+i}\n v_and_b32 v{173+2*i}, s78, v{192+i}" for i in range(4)))
    c(f"v_and_b32 v97, 1, v0\n v_cmp_eq_u32 {M}, 1, v97\n v_mov_b32 v98, 0x3f80\n v_mov_b32 v99, 0x3f800000\n v_cndmask_b32 v98, v98, v99, {M}\n v_bfe_u32 v97, v0, 1, 3")
    c("\n".join(f"v_cmp_eq_u32 {M}, {d}, v97\n v_cndmask_b32 v{184+d}, 0, v98, {M}" for d in range(4)))
    c("\n".join(f"v_cmp_eq_u32 {M}, {d}, v97\n v_cndmask_b32 v{184+d}, 0, v98, {M}" for d in range(4, 8)))
    c(f"v_bfe_u32 v97, v0, 1, 2\n v_bfe_u32 v192, v0, 5, 1\n v_mul_u32_u24 v192, {IMG_T}, v192\n v_bfe_u32 v98, v0, 3, 1\n v_lshl_add_u32 v192, v98, 7, v192\n"
      "v_and_b32 v98, 1, v0\n v_lshl_add_u32 v192, v98, 6, v192\n v_lshl_add_u32 v192, v97, 4, v192\n v_bfe_u32 v98, v0, 4, 1\n v_lshl_add_u32 v192, v98, 3, v192")
    c(f"s_mul_i32 s83, s3, {2*IMG_T}\n s_add_u32 s83, s83, {IMG}\n v_add_u32 v192, s83, v192\n"
      f"v_lshlrev_b32 v193, 7, v97\n v_lshl_add_u32 v193, v93, 3, v193\n s_lshl_b32 s83, s3, 5\n s_add_u32 s83, s83, {HST}\n v_add_u32 v193, s83, v193")
    c(f"v_lshl_add_u32 v194, v93, 2, v92\n v_lshlrev_b32 v194, 4, v194\n v_add_u32 v99, {ACT}, v194\n v_mov_b32 v98, 256\n v_cmp_eq_u32 {M}, 1, v94\n v_cndmask_b32 v194, v194, v98, {M}\n v_add_u32 v194, {IMG}, v194\n"
      f"v_lshlrev_b32 v195, 3, v0\n v_add_u32 v195, {HST}, v195")
    c(f"v_mov_b32 v98, {ZER}\n" + "\n".join(f"v_cmp_eq_u32 {M}, {e}, v94\n v_cndmask_b32 v{197+e}, v98, v99, {M}" for e in range(4)))
    c("v_bfe_u32 v196, v0, 3, 1\n v_lshlrev_b32 v196, 6, v196\n v_lshl_add_u32 v196, v93, 4, v196\n v_and_b32 v98, 7, v0\n v_lshl_add_u32 v196, v98, 1, v196\n"
      f"s_and_b32 s83, s3, 1\n s_lshl_b32 s83, s83, 7\n s_add_u32 s83, s83, {ACT}\n v_add_u32 v196, s83, v196\n v_mul_u32_u24 v203, 18432, v96\n v_lshl_add_u32 v203, v98, 4, v203\n"
      f"v_lshlrev_b32 v204, 5, v92\n v_lshl_add_u32 v204, v93, 3, v204\n v_add_u32 v204, {8*18432}, v204")
    c(f"v_bfe_u32 v97, v0, 5, 1\n v_lshlrev_b32 v97, 6, v97\n v_lshl_add_u32 v97, v92, 4, v97\n v_bfe_u32 v98, v0, 4, 1\n v_lshl_add_u32 v97, v98, 3, v97\n v_add_u32 v97, {IMG}, v97\n"
      "s_mul_i32 s75, s51, 9\n s_cmp_eq_u32 s70, 0\n s_cselect_b32 s75, s75, 64\n s_lshl_b32 s83, s3, 1\n s_sub_u32 s83, s83, s75\n v_bfe_u32 v98, v0, 1, 1\n v_add_u32 v98, s83, v98")
    c(f"v_and_b32 v99, 1, v0\n v_lshl_add_u32 v99, v99, 7, v97\n s_movk_i32 s83, {IMG_T}\n v_mov_b32 v183, {ZER}\n"
      f"v_mad_i32_i24 v180, v98, s83, v99\n v_cmp_gt_u32 {M}, 9, v98\n v_add_u32 v98, 8, v98\n v_cndmask_b32 v180, v183, v180, {M}\n"
      f"v_mad_i32_i24 v181, v98, s83, v99\n v_cmp_gt_u32 {M}, 9, v98\n v_cndmask_b32 v181, v183, v181, {M}")
    c(f"s_lshr_b32 s83, s3, 1\n s_add_u32 s83, s83, 16\n s_sub_u32 s83, s83, s75\n s_cmp_lt_u32 s83, 9\n s_cselect_b64 {M}, -1, 0\n s_mul_i32 s83, s83, {IMG_T}\n s_and_b32 s75, s3, 1\n s_lshl_b32 s75, s75, 7\n s_add_u32 s83, s83, s75\n"
      f"v_add_u32 v182, s83, v97\n v_cndmask_b32 v182, v183, v182, {M}")
    c(f"s_lshl_b32 s83, s3, 5\n v_xor_b32 v248, s83, v4\n s_lshl_b32 s83, s3, 12\n s_add_u32 s83, s83, {R1}\n v_add_u32 v248, s83, v248\n v_xor_b32 v249, 32, v248\n v_xor_b32 v250, 64, v248\n v_xor_b32 v251, 64, v249\n v_add_u32 v252, {R1 + 32768}, v4\n"
      f"s_lshl_b32 s83, s4, 10\n s_add_u32 s83, s83, {WS_SB}\n v_lshlrev_b32 v207, 7, {'v0' if FS else 'v93'}\n v_add_u32 v207, s83, v207")
    c(f"s_mul_i32 s62, s3, {9*18432}\n s_lshl_b32 s83, s2, 7\n s_add_u32 s62, s62, s83\n s_add_u32 s62, s62, {WS_C}\n"
      f"s_mul_i32 s65, s51, 18432\n s_add_u32 s65, s65, {WS_B}\n s_lshl_b32 s63, s3, 12\n s_add_u32 s63, s63, s65\n s_add_u32 s65, s65, 16384\n s_lshl_b32 s61, s4, 7\n s_add_u32 s61, s61, {WS_SC}")
    Wl = []
    w = Wl.append
    w(f"v_and_b32 v97, 15, v0\n v_and_b32 v172, 7, v0\n v_xor_b32 v172, v172, v93\n v_lshlrev_b32 v172, 4, v172\n v_lshl_add_u32 v172, v97, 8, v172")
    w(f"s_lshl_b32 s83, s3, 12\n s_add_u32 s83, s83, {OIM}\n v_add_u32 v172, s83, v172\n v_xor_b32 v173, 64, v172")
    w(f"v_xor_b32 v174, v97, v93\n v_lshlrev_b32 v174, 4, v174\n v_lshl_add_u32 v174, v93, 8, v174\n v_add_u32 v174, {OIM}, v174\n v_xor_b32 v175, 64, v174")
    w("v_lshlrev_b32 v176, 5, v92\n v_lshl_add_u32 v176, v93, 3, v176")
    w(f"v_lshlrev_b32 v177, 7, v0\n v_lshlrev_b32 v178, 4, v97\n v_add_u32 v178, {WTS}, v178\n s_lshl_b32 s83, s3, 2\n v_add_u32 v179, s83, v178\n v_mov_b32 v180, 0")
    w("s_lshr_b32 s83, s3, 1\n s_lshl_b32 s62, s7, 1\n s_add_u32 s62, s62, s83\n s_lshl_b32 s62, s62, 3\n s_add_u32 s62, s62, s4\n s_lshl_b32 s62, s62, 1")
    w(f"s_and_b32 s75, s3, 1\n s_add_u32 s62, s62, s75\n s_lshl_b32 s62, s62, 7\n s_add_u32 s62, s62, {WS_B}")
    w(f"s_lshl_b32 s63, s4, 2\n s_add_u32 s63, s63, s3\n s_lshl_b32 s63, s63, 12\n s_add_u32 s63, s63, {WS_A}")
    w(f"s_lshl_b32 s64, s4, 1\n s_add_u32 s64, s64, s83\n s_lshl_b32 s64, s64, 11\n s_lshl_b32 s75, s75, 2\n s_add_u32 s64, s64, s75\n s_add_u32 s64, s64, {WS_ST}")
    w(f"s_lshl_b32 s61, s4, 7\n s_add_u32 s61, s61, {WS_SB}")
    WLN = (288 - 48 * RN) // 2
    Hl = (f"s_lshl_b32 s82, s7, 2\n s_add_u32 s82, s82, s3\n s_and_b32 s51, s82, 1\n s_mul_i32 s51, s51, {WLN*128}\n s_lshr_b32 s82, s82, 1\n s_sub_u32 s83, s5, 27\n s_lshl_b32 s83, s83, 2\n s_add_u32 s83, s83, s3\n"
          f"s_cmp_eq_u32 s6, 1\n s_cselect_b32 s82, s82, s83\n s_cselect_b32 s51, s51, {2*WLN*128}\n s_lshr_b32 s70, s82, 1\n s_lshl_b32 s70, s70, 3\n s_add_u32 s70, s70, s4\n" + C[0] +
          "\n s_and_b32 s83, s82, 1\n s_lshl_b32 s50, s50, 1\n s_add_u32 s50, s50, s83\n s_mul_i32 s50, s50, 36864\n s_add_u32 s50, s50, s51\n s_cmp_lt_u32 s82, 18\n s_cselect_b32 s50, s50, s26\n v_lshlrev_b32 v182, 7, v0")
    hooks = [(2, x) for x in C] + [(3, Hl)] + [(1, "\n".join(Wl[i:i+5])) for i in range(0, len(Wl), 5)]
    def dtouch(n, lanes):
        m = (1 << lanes) - 1
        a(f"s_barrier\n s_mov_b32 exec_lo, {m & 0xffffffff:#x}\n s_mov_b32 exec_hi, {m >> 32:#x}")
        for i in range(n): a(f"buffer_load_dword v183, v182, s[24:27], s50 offen {PNT}\n s_add_u32 s50, s50, {lanes*128}")
        a("s_mov_b64 exec, -1")
    def late(n):
        if n == 9:  a("s_mov_b32 s73, s58")
        if n == 18: a("s_mov_b32 s73, s59")
        sr = (28, 32, 24)[n // 9]
        a(f"buffer_load_dwordx4 v{3 if n >= 18 else 6}, s[{sr}:{sr+3}], s73 offen {NT if n < 18 else DNT.replace('none', '')} lds")
        a("s_addk_i32 m0, 0x1000\n " + ("s_addk_i32 s73, 128" if n >= 18 else "s_add_u32 s73, s73, 294912"))
    a(f"s_cmp_lt_u32 s70, 9\n s_cselect_b32 s72, {N3F}, {NFF}\n s_cmp_eq_u32 s6, 3\n s_cselect_b32 s72, {NRF}, s72\n s_cmp_eq_u32 s6, 0\n s_cselect_b32 s72, {NQF}, s72\n s_cmp_eq_u32 s6, 1\n s_cselect_b32 s72, {NWF}, s72")
    if NW0: a(f"s_max_u32 s82, s72, {NW0}\n s_cmp_eq_u32 s3, 0\n s_cselect_b32 s72, s82, s72")
    a("v_and_b32 v205, 7, v0\n v_lshlrev_b32 v205, 4, v205\n v_lshl_add_u32 v205, v96, 10, v205")
    k0 = nk
    while nk < 32:
        if WIN and nk - k0 < max(NQF, NWF, N3F, NFF):
            lab = a.label("L_t")
            a(f"s_cmp_gt_u32 s72, {nk - k0}\n s_cbranch_scc1 {lab}\n s_waitcnt vmcnt({WIN-1})\n{lab}:")
            kvload("K", nk)
        else: kvload("k", nk)
        nk += 1
        for _ in range(-(-len(hooks) // (32 - nk + 1))):
            role, code = hooks.pop(0)
            lab = a.label("L_h")
            a(f"s_cmp_eq_u32 s6, 1\n s_cbranch_scc0 {lab}" if role == 1 else f"s_bitcmp1_b32 s6, 0\n s_cbranch_scc{3 - role} {lab}"); a(code); a(f"{lab}:")
    def vfree(i):
        if QV:
            lab = a.label("L_t")
            a(f"s_cmp_gt_u32 s72, {32 - k0 + i}\n s_cbranch_scc1 {lab}\n s_waitcnt vmcnt({WIN-1})\n{lab}:")
            kvload("V", i)
        else: kvload("v", i)
    for i in range(QPOLL): vfree(i)

    a("v_bfe_u32 v62, v0, 2, 1\n v_lshlrev_b32 v62, 9, v62\n v_lshl_add_u32 v62, v93, 7, v62\n v_lshl_add_u32 v62, v94, 4, v62")
    a("s_lshl_b32 s56, s4, 5\n s_add_u32 s57, s56, s5\n s_xor_b32 s57, s57, 1\n s_add_u32 s56, s56, 18\n s_cmp_lt_u32 s5, 18\n s_cselect_b32 s57, s57, s56\n s_lshl_b32 s57, s57, 7")
    a("s_mul_i32 s83, s3, 14\n s_add_u32 s83, s83, 242\n s_movk_i32 s40, 0x3fff\n s_cmp_eq_u32 s3, 3\n s_cselect_b32 s40, 0xfff, s40\n s_cmp_eq_u32 s3, 0\n s_cselect_b32 s56, s56, s83\n s_cselect_b32 s40, 0x1ff, s40\n s_brev_b32 s41, 1")
    a(f"v_add_u32 v63, s56, v0\n v_lshlrev_b32 v63, 7, v63\n v_writelane_b32 v63, s57, 63\n v_mov_b32 v61, s43\n s_mov_b32 s56, {WS_FL}")
    a("s_lshr_b32 s82, s77, 2\n s_lshl_b32 s82, s82, 14\n s_lshl_b32 s83, s76, 10\n s_add_u32 s82, s82, s83")
    def qpass():
        a("s_mov_b64 exec, s[40:41]\n buffer_load_dword v61, v63, s[20:23], s56 offen sc1\n s_mov_b64 exec, -1")
        a("buffer_load_dwordx4 v[52:55], v62, s[20:23], s82 offen sc1\n buffer_load_dwordx4 v[56:59], v62, s[20:23], s82 offen offset:64 sc1")
    stamp(2)
    qpass()
    nv = QPOLL
    for i in range(QL): vfree(nv); nv += 1
    a("v_and_b32 v97, 1, v0\n v_cmp_eq_u32 vcc, 1, v97\n v_mov_b32 v98, 0xffff\n v_mov_b32 v99, s78\n v_cndmask_b32 v98, v98, v99, vcc")
    a("v_bfe_u32 v97, v0, 3, 1\n v_bfe_u32 v99, v0, 1, 1\n v_lshl_or_b32 v97, v97, 1, v99")
    for d in range(4): a(f"v_cmp_eq_u32 vcc, {d}, v97\n v_cndmask_b32 v{12+d}, 0, v98, vcc")
    a("v_mov_b32 v7, 0xff800000\n s_mov_b32 s81, 0")
    a(f"s_waitcnt vmcnt({QL})\n s_branch L_qchk")
    a("L_qpoll:")
    qpass()
    a(f"s_add_u32 s81, s81, 1\n s_cmp_gt_u32 s81, {SPIN}\n s_waitcnt vmcnt(0)\n s_cbranch_scc1 L_qgo")
    a("L_qchk:")
    a("v_subrev_u32 v60, s54, v61\n v_lshrrev_b32 v60, 3, v60")
    for r in (53, 55, 57, 59): a(f"v_xor_b32 v{r}, s54, v{r}")
    a("v_or3_b32 v60, v60, v53, v55\n v_or3_b32 v60, v60, v57, v59\n v_cmp_ne_u32 vcc, 0, v60\n s_cbranch_vccnz L_qpoll")
    a("L_qgo:")
    a("v_cmp_ne_u32 vcc, s43, v61\n v_mov_b32 v8, v52\n v_mov_b32 v9, v54\n v_mov_b32 v10, v56\n v_mov_b32 v11, v58\n s_cmp_eq_u32 vcc_lo, 0\n s_cselect_b32 s55, 1, 0\n s_cmp_eq_u32 vcc_hi, 0\n s_cselect_b32 s49, 1, 0")
    if diag: a("v_writelane_b32 v255, s81, 13")
    stamp(3)

    def qk(gi):
        for q in range(4):
            d = 52 + 16 * (gi & 1) + 4 * q; k = 16 * gi + 4 * q
            a(f"{MF} v[{d}:{d+3}], a[{k}:{k+3}], v[8:11], 0")
    qk(0)
    for gi in range(8):
        if gi < 7: qk(gi + 1)
        D = 52 + 16 * (gi & 1); T = 20 + 4 * gi
        for u in range(4):
            for q in range(4):
                if u == 0: a(f"v_mov_b32_dpp v{T+q}, v{D+4*q} quad_perm:[0,0,0,0] {DPP}")
                else:      a(f"v_add_f32_dpp v{T+q}, v{D+4*q+u}, v{T+q} quad_perm:[{u},{u},{u},{u}] {DPP}")
        a(f"v_max3_f32 v7, v{T}, v{T+1}, v7\n v_max3_f32 v7, v{T+2}, v{T+3}, v7")
        for rep in range(2):
            a(f"v_cvt_pk_bf16_f32 v97, v{T}, v{T+1}\n v_cvt_pk_bf16_f32 v98, v{T+2}, v{T+3}")
            a(f"v_lshlrev_b32 v{T}, 16, v97\n v_and_b32 v{T+1}, s78, v97\n v_lshlrev_b32 v{T+2}, 16, v98\n v_and_b32 v{T+3}, s78, v98")
            if rep == 0:
                for q in range(4): a(f"v_mul_f32 v{T+q}, s79, v{T+q}")
        kvload("v", nv); nv += 1
    xrow(7, 97, "v_max_f32")
    rnd(7); a("v_mul_f32 v7, s79, v7"); rnd(7)
    a("v_mul_f32 v52, s80, v7")
    for i in range(32): a(f"v_fma_f32 v{20+i}, v{20+i}, s80, -v52")
    kvload("v", nv); nv += 1
    for i in range(32):
        a(f"v_exp_f32 v{20+i}, v{20+i}")
        if i == 2: a("v_add_f32 v53, v20, v21")
        if i > 2:  a(f"v_add_f32 v53, v53, v{19+i}")
        if i == 15: kvload("v", nv); nv += 1
    a("v_add_f32 v53, v53, v51")
    kvload("v", nv); nv += 1
    xrow(53, 97, "v_add_f32")
    a(f"v_bfe_u32 v97, v0, 2, 1\n v_lshlrev_b32 v97, 5, v97\n s_lshl_b32 s82, s3, 3\n s_add_u32 s82, s82, {ST}\n v_add_u32 v97, s82, v97")
    a("s_mov_b64 exec, 0x11\n ds_write_b64 v97, v[52:53]\n s_mov_b64 exec, -1")
    stamp(4); flush()
    PB = {}
    def pbuild(i):
        if i in PB and PB[i][1]: return
        P = PB[i][0] if i in PB else 84 + 4 * (i & 1)
        a(f"v_cvt_pk_bf16_f32 v99, v{20+i}, v{20+i}")
        for d in range(4): a(f"v_and_b32 v{P+d}, v99, v{12+d}")
    def pv(i):
        P = PB[i][0] if i in PB else 84 + 4 * (i & 1)
        a(f"{MF} v[16:19], v[{P}:{P+3}], a[{128+4*i}:{131+4*i}], {'0' if i == 0 else 'v[16:19]'}")
    done = nv - LAG
    a(f"s_waitcnt vmcnt({LAG})")
    pbuild(0)
    for i in range(done):
        pbuild(i + 1); pv(i)
        if i % 5 == 4 and nv < 29: kvload("v", nv); nv += 1
    a("s_waitcnt lgkmcnt(0)\n s_barrier")
    a(f"v_and_b32 v97, 1, v93\n v_lshlrev_b32 v97, 5, v97\n v_add_u32 v98, s82, v97\n v_add_u32 v97, {ST}, v97")
    a("ds_read_b128 v[56:59], v97\n ds_read_b128 v[60:63], v97 offset:16\n ds_read_b32 v64, v98")
    kvload("v", nv); nv += 1
    a("s_waitcnt lgkmcnt(0)")
    a("v_max3_f32 v65, v56, v58, v60\n v_max_f32 v65, v65, v62")
    for r in (56, 58, 60, 62, 64): a(f"v_sub_f32 v{r}, v{r}, v65")
    for r in (56, 58, 60, 62, 64): a(f"v_exp_f32 v{r}, v{r}")
    a("v_mul_f32 v66, v56, v57\n v_fmac_f32 v66, v58, v59\n v_fmac_f32 v66, v60, v61\n v_fmac_f32 v66, v62, v63")
    a("v_rcp_f32 v67, v66\n v_log_f32 v66, v66")
    a("v_mul_f32 v7, v64, v67")
    a("v_add_f32 v66, v66, v65\n v_min_u32 v66, -2, v66")
    a("s_cmp_eq_u32 s3, 0\n s_cbranch_scc0 L_nolse")
    a(f"s_lshl_b32 s82, s4, 5\n s_add_u32 s82, s82, s5\n s_lshl_b32 s82, s82, 7\n s_add_u32 s82, s82, {WS_ST}")
    a("v_and_b32 v67, 15, v0\n v_lshlrev_b32 v67, 3, v67\n v_lshl_add_u32 v67, v93, 2, v67\n s_mov_b32 exec_hi, 0")
    if CLA: a("buffer_store_dword v66, v67, s[20:23], s82 offen sc1")
    else: near_store("buffer_store_dword v66, v67, s[20:23], s82 offen")
    a("s_mov_b32 exec_hi, -1")
    a("L_nolse:")
    a(f"s_waitcnt vmcnt({LAG})"); pv(done); done += 1
    while done < nv - LAG:
        pbuild(done); pv(done); done += 1
    a(f"s_lshl_b32 s82, s76, 13\n s_lshl_b32 s83, s77, 8\n s_add_u32 s82, s82, s83\n s_add_u32 s57, s82, {WS_A}")
    a("v_and_b32 v97, 15, v0\n v_lshlrev_b32 v97, 4, v97\n v_and_b32 v98, 1, v93\n v_lshl_add_u32 v97, v98, 12, v97\n v_lshrrev_b32 v98, 1, v93\n v_lshl_add_u32 v97, v98, 3, v97")
    a(f"s_lshl_b32 s82, s3, 10\n s_add_u32 s82, s82, {CMB}\n v_add_u32 v98, s82, v2")
    todo = list(range(32 - LAG, 32))
    while nv < 32:
        kvload("v", nv); nv += 1
        k = -(-len(todo) // (32 - nv + 1))
        for i in todo[:k]:
            PB[i] = [212 + 4 * (31 - i), False]; pbuild(i); PB[i][1] = True
        todo = todo[k:]
        pbuild(done); a(f"s_waitcnt vmcnt({LAG})"); pv(done); done += 1
    if "c" in X:
        a("s_waitcnt vmcnt(0)"); stamp(5); flush(); dump(); a("s_endpgm")
    a("s_bitcmp1_b32 s6, 0\n s_cbranch_scc0 L_ft")
    def lsepass(): a("s_mov_b64 exec, 0xffff\n buffer_load_dword v180, v177, s[20:23], s64 offen sc1\n s_mov_b64 exec, -1")
    a("s_cmp_eq_u32 s6, 1\n s_cbranch_scc0 L_nw")
    lsepass()
    a("L_x1:")
    for i in range(done, 32):
        a(f"s_waitcnt vmcnt({32 - i})"); pv(i)
    a("s_nop 6\n s_branch L_comb")
    a("L_nw:")
    for i in range(done, 32):
        a(f"s_waitcnt vmcnt({31 - i})"); pv(i)
    a("s_nop 6\n s_branch L_comb")
    a("L_ft:")
    nl = 0
    for i in range(done, 32):
        if nl < NTF: late(nl); nl += 1
        a(f"s_waitcnt vmcnt({31 - i + nl})"); pv(i)
    a("s_nop 7")
    a("L_comb:"); fs(0)
    stamp(5)
    for i in range(4): a(f"v_mul_f32 v{16+i}, v{16+i}, v7")
    a("ds_write_b128 v98, v[16:19]\n s_cmp_eq_u32 s3, 0\n s_waitcnt lgkmcnt(0)\n s_barrier\n s_cbranch_scc0 L_pubd")
    for w in range(1, 4): a(f"ds_read_b128 v[{52+4*w}:{55+4*w}], v98 offset:{1024*w}")
    for w in range(1, 4):
        a(f"s_waitcnt lgkmcnt({3 - w})")
        a(f"v_pk_add_f32 v[16:17], v[16:17], v[{52+4*w}:{53+4*w}]\n v_pk_add_f32 v[18:19], v[18:19], v[{54+4*w}:{55+4*w}]")
    a("v_cvt_pk_bf16_f32 v16, v16, v17\n v_cvt_pk_bf16_f32 v17, v18, v19\n v_min_u32 v16, -2, v16\n v_min_u32 v17, -2, v17")
    near_store("buffer_store_dwordx2 v[16:17], v97, s[20:23], s57 offen")
    a("L_pubd:"); fs(1)
    stamp(6)
    base_pend = list(pend)
    a("s_mov_b32 s81, 0\n s_bitcmp1_b32 s6, 0\n s_cbranch_scc0 L_F\n s_cmp_eq_u32 s6, 1\n s_cbranch_scc0 L_R")

    def apass():
        for i in range(4): a(f"buffer_load_dwordx4 v[{20+4*i}:{23+4*i}], v2, s[20:23], s63 offen offset:{1024*i} sc1")
    apass()
    a(f"s_waitcnt vmcnt(5)\n s_cmp_eq_u32 s3, 0\n s_cbranch_scc1 L_tab1\n s_waitcnt vmcnt(4)\n s_branch L_tab1")
    a("L_tab:")
    lsepass(); a("s_waitcnt vmcnt(0)")
    a("L_tab1:")
    spin_end(180, "L_tab")
    a(f"v_max_f32_dpp v181, v180, v180 quad_perm:[1,0,3,2] {DPP}\n v_max_f32_dpp v181, v181, v181 quad_perm:[2,3,0,1] {DPP}")
    a("v_sub_f32 v180, v180, v181\n v_exp_f32 v180, v180")
    a(f"v_add_f32_dpp v181, v180, v180 quad_perm:[1,0,3,2] {DPP}\n v_add_f32_dpp v181, v181, v181 quad_perm:[2,3,0,1] {DPP}")
    a("v_rcp_f32 v181, v181\n v_mul_f32 v180, v180, v181\n s_mov_b64 exec, 0xffff\n ds_write_b32 v179, v180\n s_mov_b64 exec, -1")
    a("v_mov_b32 v8, s54\n v_mov_b32 v9, s54\n v_mov_b32 v10, s54\n v_mov_b32 v11, s54\n v_mov_b32 v12, v205\n s_add_u32 s82, s3, s7")
    a("s_branch L_wchk")
    a("L_wa:")
    a("s_mov_b64 exec, vcc"); apass(); a("s_mov_b64 exec, -1")
    a("L_wchk:")
    for i in range(4):
        a(f"s_waitcnt vmcnt({3 - i})\n ds_write_b128 v{172 + (i & 1)}, v[{20+4*i}:{23+4*i}] offset:{128 * (i >> 1)}")
        chk4(99, 20 + 4*i, i == 0)
    a("s_waitcnt lgkmcnt(0)")
    spin_end(99, "L_wa")
    stamp(10); fs(2)
    a("s_cmp_eq_u32 s82, 0\n s_barrier"); fs(3)
    a("s_cbranch_scc0 L_wns\n buffer_store_dwordx4 v[8:11], v12, s[20:23], s61 offen sc1")
    a("L_wns:")
    q = LQ()
    def oread(tt):
        q.issue(tt, f"ds_read_b128 v[{188+4*tt}:{191+4*tt}], v{174 + (tt & 1)} offset:{1024*tt}")
        if tt == 7: q.issue("w", "ds_read_b128 v[20:23], v178")
    for tt in range(LAW): oread(tt)
    def wfma(hh, i):
        a(f"v_mul_f32 v{52+i}, v{36+i}, v20" if hh == 0 else f"v_fmac_f32 v{52+i}, v{36+4*hh+i}, v{20+hh}")
    for tt in range(16):
        hh, t = tt >> 2, tt & 3
        q.wait(tt)
        a(f"{MF} v[{36+4*hh}:{39+4*hh}], v[{100+4*tt}:{103+4*tt}], v[{188+4*tt}:{191+4*tt}], {'0' if t == 0 else f'v[{36+4*hh}:{39+4*hh}]'}")
        if tt + LAW < 16: oread(tt + LAW)
        if hh >= 2: wfma(hh - 2, t)
    a("s_mov_b32 s82, 0x11111111\n s_mov_b32 s83, 0x11111111"); fs(4)
    for hh in (2, 3):
        for i in range(4): wfma(hh, i)
    for ctl in ("quad_perm:[1,0,3,2]", "quad_perm:[2,3,0,1]"):
        for i in range(4): a(f"v_add_f32_dpp v{52+i}, v{52+i}, v{52+i} {ctl} {DPP}")
    a("v_cvt_pk_bf16_f32 v52, v52, v53\n v_cvt_pk_bf16_f32 v53, v54, v55\n v_min_u32 v52, -2, v52\n v_min_u32 v53, -2, v53")
    a("s_mov_b64 exec, s[82:83]")
    a("buffer_store_dwordx2 v[52:53], v176, s[20:23], s62 offen sc1\n s_mov_b64 exec, -1\n s_mov_b32 s81, 0")
    stamp(9); fs(5); flush()

    if WL and WLN: dtouch(-(-WLN // 64), WLN // -(-WLN // 64))
    a("s_branch L_R2")
    pend[:] = base_pend
    a("L_R:")
    flush()
    if RN: dtouch(RN, 48)
    a("L_R2:")
    a("s_cmp_eq_u32 s3, 0\n s_cbranch_scc0 L_fin")
    a("v_and_b32 v97, 1, v0\n v_cmp_eq_u32 vcc, 1, v97\n v_mov_b32 v98, 0x3f80\n v_mov_b32 v99, 0x3f800000\n v_cndmask_b32 v98, v98, v99, vcc\n v_bfe_u32 v97, v0, 1, 3")
    for d in range(4): a(f"v_cmp_eq_u32 vcc, {d}, v97\n v_cndmask_b32 v{8+d}, 0, v98, vcc")
    if R72:
        a("s_sub_u32 s59, s5, 27\n s_cmp_eq_u32 s6, 1\n s_cselect_b32 s59, s7, s59\n s_cselect_b32 s57, 1, 0\n s_cmp_lt_u32 s59, 4\n s_cbranch_scc0 L_r8")
        a("v_lshlrev_b32 v28, 5, v94\n v_lshl_add_u32 v28, v93, 9, v28")
        a("s_lshr_b32 s82, s4, 1\n s_and_b32 s83, s4, 1")
        a("s_mul_i32 s7, s82, 9\n s_add_u32 s7, s7, s83\n s_lshl_b32 s58, s59, 1\n s_add_u32 s7, s7, s58")
        a("s_lshl_b32 s83, s83, 1\n s_add_u32 s83, s83, s57\n s_mul_i32 s58, s83, 1152\n s_lshl_b32 s82, s82, 7\n s_add_u32 s58, s58, s82\n s_lshl_b32 s59, s59, 3\n s_add_u32 s58, s58, s59\n s_branch L_r9")
        a("L_r8:")
        a("s_cmp_eq_u32 s57, 1\n s_cbranch_scc0 L_fin\n s_cmp_lt_u32 s59, 8\n s_cbranch_scc0 L_fin\n s_cmp_lt_u32 s4, 2\n s_cbranch_scc0 L_fin")
        a("v_bfe_u32 v28, v0, 1, 1\n v_mul_u32_u24 v28, 1152, v28\n v_and_b32 v98, 1, v0\n v_lshl_add_u32 v28, v98, 4, v28\n v_lshl_add_u32 v28, v93, 3, v28")
        a("s_sub_u32 s7, s59, 4\n s_mov_b32 s57, s4\n s_lshl_b32 s58, s7, 5\n s_mul_i32 s82, s57, 2304\n s_add_u32 s58, s58, s82\n s_add_u32 s58, s58, 1024\n s_mul_i32 s7, s7, 9\n s_add_u32 s7, s7, 8")
        a("L_r9:")
        a(f"s_mul_i32 s44, s7, 18432\n s_lshl_b32 s82, s57, 6\n s_add_u32 s44, s44, s82\n s_add_u32 s44, s44, {WS_C}\n s_add_u32 s7, s7, s57")
        a("v_lshrrev_b32 v31, 2, v0\n v_lshlrev_b32 v31, 7, v31\n v_lshl_add_u32 v31, v94, 4, v31")
        for i in range(1, 5): a(f"s_add_u32 s{44+i}, s44, {4096*i}")
    else:
        a("s_cmp_eq_u32 s6, 1\n s_cbranch_scc1 L_r8\n s_cmp_lt_u32 s7, 32\n s_cbranch_scc0 L_fin")
        a("v_bfe_u32 v28, v0, 2, 1\n v_mul_u32_u24 v28, 1152, v28\n v_lshl_add_u32 v28, v94, 5, v28\n v_lshl_add_u32 v28, v93, 9, v28")
        a("s_lshr_b32 s82, s4, 1\n s_and_b32 s83, s4, 1\n s_sub_u32 s59, s5, 27")
        a("s_mul_i32 s7, s82, 9\n s_add_u32 s7, s7, s83\n s_lshl_b32 s58, s59, 1\n s_add_u32 s7, s7, s58")
        a("s_mul_i32 s58, s83, 2304\n s_lshl_b32 s82, s82, 7\n s_add_u32 s58, s58, s82\n s_lshl_b32 s59, s59, 3\n s_add_u32 s58, s58, s59\n s_branch L_r9")
        a("L_r8:")
        a("s_lshl_b32 s82, s4, 2\n s_add_u32 s82, s82, s7\n s_cmp_lt_u32 s82, 4\n s_cbranch_scc0 L_fin")
        a("v_bfe_u32 v28, v0, 1, 2\n v_mul_u32_u24 v28, 1152, v28\n v_and_b32 v98, 1, v0\n v_lshl_add_u32 v28, v98, 4, v28\n v_lshl_add_u32 v28, v93, 3, v28")
        a("s_lshl_b32 s58, s7, 5\n s_add_u32 s58, s58, 1024\n s_mul_i32 s7, s7, 9\n s_add_u32 s7, s7, 8")
        a("L_r9:")
        a(f"s_mul_i32 s44, s7, 18432\n s_add_u32 s44, s44, {WS_C}")
        for i in range(1, 5): a(f"s_add_u32 s{44+i}, s44, {4096*i}")
    a(f"v_lshlrev_b32 v29, 7, v0\n s_lshl_b32 s61, s4, 10\n s_add_u32 s61, s61, {WS_SC}\n s_mov_b32 s60, 0\n s_mov_b64 exec, 0xff")
    a("v_not_b32 v30, s54")
    a("L_rs:")
    a(f"buffer_load_dword v30, v29, s[20:23], s61 offen sc1\n s_add_u32 s60, s60, 1\n s_cmp_gt_u32 s60, {SPIN}\n s_cbranch_scc1 L_rs1")
    a(f"s_waitcnt vmcnt({PIPE})\n v_cmp_ne_u32 vcc, s54, v30\n s_cbranch_vccnz L_rs")
    a("L_rs1:"); fs(6)
    stamp(12)
    a("s_mov_b64 vcc, -1")
    a("L_ra:")
    a("s_mov_b64 exec, vcc")
    NR = 9 if R72 else 18
    for i in range(NR):
        if R72: a(f"buffer_load_dwordx4 v[{100+4*i}:{103+4*i}], v31, s[20:23], s{44+(i>>1)} offen offset:{2048*(i&1)} sc1")
        else:   a(f"buffer_load_dwordx4 v[{100+4*i}:{103+4*i}], v2, s[20:23], s{44+(i>>2)} offen offset:{1024*(i&3)} sc1")
    a("s_mov_b64 exec, -1")
    for i in range(NR):
        a(f"s_waitcnt vmcnt({NR - 1 - i})")
        a(f"{MF} v[52:55], v[8:11], v[{100+4*i}:{103+4*i}], {'0' if i == 0 else 'v[52:55]'}")
        chk4(99, 100 + 4*i, i == 0)
    spin_end(99, "L_ra"); fs(7)
    stamp(7)
    for i in range(4): a(f"v_add_f32_dpp v{52+i}, v{52+i}, v{52+i} row_ror:8 {DPP}")
    if R72:
        for i in range(4): a(f"v_add_f32_dpp v{52+i}, v{52+i}, v{52+i} row_ror:4 {DPP}")
    a("v_cvt_pk_bf16_f32 v52, v52, v53\n v_cvt_pk_bf16_f32 v53, v54, v55")
    a(f"s_mov_b64 exec, {0x000f000f if R72 else 0x00ff00ff:#x}\n buffer_store_dwordx2 v[52:53], v28, s[36:39], s58 offen")
    if not EPE: a(f"s_cmp_eq_u32 s7, 0\n s_cbranch_scc0 L_rend\n s_mov_b32 exec_lo, -1\n v_mov_b32 v54, s54\n v_lshlrev_b32 v55, 2, v0\n s_mov_b32 s82, {WS_EP}\n buffer_store_dword v54, v55, s[20:23], s82 offen sc1")
    a("L_rend:"); fs(8)
    if probe >= 0:
        if probe == 99: a("s_memrealtime s[86:87]")
        a("s_memrealtime s[88:89]\n s_waitcnt lgkmcnt(0)\n s_sub_u32 s86, s86, s84")
        a("L_probe:")
        a("s_memrealtime s[90:91]\n s_waitcnt lgkmcnt(0)\n s_sub_u32 s90, s90, s88\n s_cmp_lt_u32 s90, s86\n s_cbranch_scc1 L_probe")
    stamp(8); flush(); dump()
    a("s_endpgm")
    emit_stubs()
    a("L_fin:")
    if DIRTY:
        a(f"s_mov_b64 exec, -1\n s_lshl_b32 s74, s2, 2\n s_add_u32 s74, s74, s3\n s_lshl_b32 s74, s74, 12\n s_add_u32 s74, s74, 0x400000\n s_mov_b32 s22, 0x1000000")
        for i in range(DIRTY): a(f"buffer_store_dwordx4 v[8:11], v2, s[20:23], s74 offen offset:{1024*i} {DFL}")
    dump()
    a("s_endpgm")
    pend[:] = base_pend
    if AL: a(".p2align 12")
    a("L_F:")
    a("s_barrier")
    def sigld():
        if FS: a("buffer_load_dword v88, v207, s[20:23], 0 offen sc1")
        else:  a("buffer_load_dword v88, v207, s[20:23], 0 offen sc1\n buffer_load_dword v89, v207, s[20:23], 0 offen offset:512 sc1")
    for n in range(nl, 28):
        if n == 27 - SP:
            if PW: a("buffer_load_dwordx4 v[56:59], v2, s[20:23], s52 offen sc1")
            if FS: a("s_mov_b64 exec, 0xff")
            sigld()
            if FS: a("s_mov_b64 exec, -1")
        if n < 27: late(n)
    for i in range(8): a(f"v_mov_b32 v{36+i}, 0")
    a("v_mov_b32 v60, s54\n v_mov_b32 v61, s54\n v_mov_b32 v62, s54\n v_mov_b32 v63, s54")
    a("s_mul_i32 s48, s51, 3\n s_add_u32 s48, s48, s3" if CNT == 1 else "s_sub_u32 s48, s3, s51\n s_add_u32 s48, s48, 2")
    a(f"s_lshl_b32 s64, s4, 7\n s_add_u32 s64, s64, {WS_CT}\n v_mov_b32 v66, 1\n v_mov_b32 v67, 0")
    a(f"s_mov_b32 s66, 0xaaaaaaaa\n s_mov_b32 s67, 0xaaaaaaaa\n v_mov_b32 v64, {f2u(1/576):#x}\n v_mov_b32 v65, {f2u(-2 * 0.7978845608028654 * 1.4426950408889634):#x}")
    a(f"s_waitcnt vmcnt({11 - FS + PW})\n s_barrier")
    for n in range(18): trread(("a", 4*n), 4, 5, n)
    def bloads(par):
        lab = a.label("L_fb")
        a(f"s_cmp_eq_u32 s3, 0\n s_cbranch_scc0 {lab}")
        for p in par: a(f"buffer_load_dwordx4 v[{36+4*p}:{39+4*p}], v2, s[20:23], s65 offen offset:{1024*p} sc1")
        a(f"{lab}:")
        for p in par:
            for hf in range(2): a(f"buffer_load_dwordx4 v[{20+8*hf+4*p}:{23+8*hf+4*p}], v2, s[20:23], s63 offen offset:{2048*hf+1024*p} sc1")
    def sigstep():
        l1, l2 = a.label("L_fs"), a.label("L_fs")
        a("v_cmp_eq_u32 s[40:41], s54, v88\n v_cmp_eq_u32 s[42:43], s54, v89")
        a(f"s_andn2_b64 exec, s[40:41], s[44:45]\n s_cbranch_execz {l1}")
        bloads((0,))
        a(f"{l1}:\n s_andn2_b64 exec, s[42:43], s[46:47]\n s_cbranch_execz {l2}")
        bloads((1,))
        a(f"{l2}:\n s_mov_b64 exec, -1\n s_mov_b64 s[44:45], s[40:41]\n s_mov_b64 s[46:47], s[42:43]")
    def dfrag(j):
        b, off = (248 + (j & 3), (j >> 2) * 16384) if j < 8 else (252, 0)
        a(f"ds_read_b64_tr_b16 v[{100+4*j}:{101+4*j}], v{b} offset:{off}\n ds_read_b64_tr_b16 v[{102+4*j}:{103+4*j}], v{b} offset:{off+512}")
    if FS:
        a(f"s_mov_b32 s44, 0\n s_mov_b32 s60, 0\n s_mov_b64 exec, 0xff\n s_waitcnt vmcnt({SP})")
        stamp(7)
        a("s_branch L_gs1")
        a("L_gs:")
        sigld()
        a(f"s_add_u32 s60, s60, 1\n s_cmp_gt_u32 s60, {SPIN}\n s_cbranch_scc1 L_fall\n s_waitcnt vmcnt({FP})")
        a("L_gs1:")
        a("v_cmp_eq_u32 vcc, s54, v88\n s_andn2_b32 s46, vcc_lo, s44\n s_cbranch_scc0 L_gs\n s_mov_b32 s44, vcc_lo")
        a("s_bitreplicate_b64_b32 s[46:47], s46\n s_bitreplicate_b64_b32 s[46:47], s46\n s_bitreplicate_b64_b32 s[46:47], s46")
        a("s_bitreplicate_b64_b32 exec, s46\n s_cbranch_execz L_gs2")
        bloads((0,))
        a("L_gs2:\n s_bitreplicate_b64_b32 exec, s47\n s_cbranch_execz L_gs3")
        bloads((1,))
        a("L_gs3:\n s_mov_b64 exec, 0xff\n s_cmp_eq_u32 s44, 0xff\n s_cbranch_scc0 L_gs\n s_mov_b64 exec, -1\n s_branch L_fs9")
    a(f"s_mov_b64 s[44:45], 0\n s_mov_b64 s[46:47], 0\n s_mov_b32 s60, 0\n s_waitcnt vmcnt({SP})")
    if not FS: stamp(7)
    a("s_branch L_fs1")
    a("L_fs:")
    sigld()
    a(f"s_add_u32 s60, s60, 1\n s_cmp_gt_u32 s60, {SPIN}\n s_cbranch_scc1 L_fall\n s_waitcnt vmcnt(0)")
    a("L_fs1:")
    sigstep()
    a("s_and_b64 s[40:41], s[40:41], s[42:43]\n s_cmp_eq_u64 s[40:41], -1\n s_cbranch_scc0 L_fs")
    a("L_fs9:")
    stamp(12)
    fs(0)
    a("L_fdn:")
    a("s_cmp_eq_u32 s48, 3\n s_cbranch_scc0 L_fna\n s_mov_b64 exec, 1\n buffer_atomic_add v66, v67, s[20:23], s64 offen sc0 sc1\n s_mov_b64 exec, -1")
    a("s_waitcnt vmcnt(1)\n s_branch L_fchk")
    a("L_fall:")
    a("s_mov_b64 exec, -1")
    bloads((0, 1)); a("s_branch L_fdn")
    a("L_fa:")
    a("s_mov_b64 exec, vcc"); bloads((0, 1)); a("s_mov_b64 exec, -1")
    a("L_fna:")
    a("s_waitcnt vmcnt(0)")
    a("L_fchk:"); fs(1)
    HD = 68
    for k, (d, r, sel, cin) in enumerate(((HD+4, 36, 184, 176), (HD, 20, 184, 172), (HD+4, 40, 184, 0), (HD, 24, 184, 0), (HD, 28, 188, 0), (HD, 32, 188, 0))):
        cc = f"v[{cin}:{cin+3}]" if cin else f"v[{d}:{d+3}]"
        a(f"{MF} v[{d}:{d+3}], v[{sel}:{sel+3}], v[{r}:{r+3}], {cc}")
        chk4(99, r, k == 0)
    a(f"v_cvt_pk_bf16_f32 v82, v{HD+4}, v{HD+5}\n v_cvt_pk_bf16_f32 v83, v{HD+6}, v{HD+7}")
    spin_end(99, "L_fa")
    stamp(8)
    a(f"v_cvt_pk_bf16_f32 v80, v{HD}, v{HD+1}\n v_cvt_pk_bf16_f32 v81, v{HD+2}, v{HD+3}")
    a(f"s_cmp_eq_u32 s3, 0\n ds_write_b64 v192, v[80:81]\n s_cbranch_scc0 L_fw8\n ds_write_b64 v192, v[82:83] offset:{8*IMG_T}")
    a("L_fw8:")
    a(f"v_add_f32 v86, v{HD}, v{HD+1}\n v_mul_f32 v87, v{HD}, v{HD}\n v_fmac_f32 v87, v{HD+1}, v{HD+1}")
    for i in range(2, 5): a(f"v_add_f32 v86, v86, v{HD+i}\n v_fmac_f32 v87, v{HD+i}, v{HD+i}")
    a("s_waitcnt lgkmcnt(0)\n s_barrier")
    fs(2)
    q = LQ()
    def hread(t): q.issue(t, f"ds_read_b128 v[{20+4*t}:{23+4*t}], v194 offset:{t*IMG_T}")
    for t in range(LA): hread(t)
    dp = lambda ctl: [f"v_add_f32_dpp v{r}, v{r}, v{r} {ctl} {DPP}" for r in (86, 87)]
    for i in range(5, 8): a(f"v_add_f32 v86, v86, v{HD+i}\n v_fmac_f32 v87, v{HD+i}, v{HD+i}")
    for x in dp("quad_perm:[1,0,3,2]") + dp("row_ror:8"): a(x)
    q.issue("W", "ds_write_b64 v193, v[86:87]")
    side = {5: dp("quad_perm:[1,0,3,2]"), 6: dp("quad_perm:[2,3,0,1]"), 7: dp("row_half_mirror"), 8: dp("row_mirror")}
    xld = "buffer_load_dwordx4 v[56:59], v2, s[20:23], s52 offen sc1"
    for t in range(9):
        h = 20 + 4 * t
        if t in q.ops: q.wait(t)
        if t == 0: fs(3)
        a(f"{MF} v[8:11], v[{h}:{h+3}], a[{4*t}:{4*t+3}], {'0' if t == 0 else 'v[8:11]'}")
        if t + LA < 9: hread(t + LA)
        a(f"{MF} v[12:15], v[{h}:{h+3}], a[{36+4*t}:{39+4*t}], {'0' if t == 0 else 'v[12:15]'}")
        if t == 2:
            q.wait("W"); a("s_barrier"); q.issue("S", "ds_read_b64 v[86:87], v195")
        if t == 5: q.wait("S")
        for x in side.get(t, []): a(x)
    def dprep():
        for k in range(3): a(f"ds_read_b64 v[{80+2*k}:{81+2*k}], v{180+k}")
        for j in range(9): dfrag(j)
    def dprep2():
        a("s_waitcnt lgkmcnt(15)")
        for i in range(6): a(f"v_lshlrev_b32 v{HD+2*i}, 16, v{80+i}\n v_and_b32 v{HD+1+2*i}, s78, v{80+i}")
    fs(4)
    a("s_cmp_eq_u32 s53, 1\n s_cbranch_scc1 L_frx")
    a("v_cndmask_b32 v11, v86, v87, s[66:67]\n v_cvt_pk_bf16_f32 v10, v9, v13\n v_min_u32 v8, -2, v8\n v_min_u32 v9, -2, v12\n v_min_u32 v10, -2, v10\n v_min_u32 v11, -2, v11")
    near_store("buffer_store_dwordx4 v[8:11], v2, s[20:23], s52 offen", "s49")
    dprep(); dprep2()
    if EPE:
        a(f"s_lshl_b32 s82, s2, 2\n s_add_u32 s82, s82, s3\n s_cmp_eq_u32 s82, 3\n s_cbranch_scc0 L_fact\n s_mov_b32 s82, {WS_EP}\n s_mov_b64 exec, 0xff\n buffer_store_dwordx4 v[60:63], v2, s[20:23], s82 offen sc1\n s_mov_b64 exec, -1")
    a("s_branch L_fact")
    a("L_frx:")
    a(xld); dprep(); a(xld); dprep2()
    a("s_branch L_frx2")
    a("L_frx1:")
    a(xld)
    a("L_frx2:")
    a(f"s_waitcnt vmcnt({XP})")
    def lastsig():
        a("s_cmp_eq_u32 s82, 16\n s_cbranch_scc0 L_fnc\n buffer_store_dwordx4 v[60:63], v205, s[20:23], s61 offen sc1\nL_fnc:")
    chk4(99, 56, True); spin_end(99, "L_frx1")
    fs(5)
    if XP == 1: a("v_readfirstlane_b32 s82, v66")
    if CNT == 2: lastsig()
    c1 = -2 * 0.7978845608028654 * 1.4426950408889634
    a(f"v_add_f32_dpp v86, v59, v86 quad_perm:[0,0,2,2] {DPP}\n v_add_f32_dpp v87, v59, v87 quad_perm:[1,1,3,3] {DPP}")
    a("v_lshlrev_b32 v10, 16, v58\n v_and_b32 v11, s78, v58")
    a(f"v_mul_f32 v86, {f2u(1/576):#x}, v86\n v_fmaak_f32 v87, v87, v64, {f2u(1e-5):#x}")
    a("v_add_f32 v9, v9, v10\n v_fma_f32 v87, -v86, v86, v87\n v_add_f32 v8, v8, v56")
    a(f"v_max_f32 v87, {f2u(1e-5):#x}, v87\n v_rsq_f32 v87, v87")
    a("v_fma_f32 v8, -v86, v9, v8\n v_add_f32 v13, v13, v11\n v_mul_f32 v8, v8, v87\n v_add_f32 v12, v12, v57")
    a(f"v_mul_f32 v9, v8, v8\n v_fma_f32 v12, -v86, v13, v12\n v_fmamk_f32 v9, v9, {f2u(c1 * 0.044715):#x}, v65\n v_mul_f32 v12, v12, v87\n v_mul_f32 v9, v9, v8")
    a("v_exp_f32 v9, v9\n v_mul_f32 v8, v8, v12\n v_add_f32 v9, 1.0, v9\n v_rcp_f32 v9, v9\n v_mul_f32 v8, v8, v9")
    a("v_cvt_pk_bf16_f32 v8, v8, v8\n ds_write_b16 v196, v8")
    fs(6)
    if XP > 1: a("s_waitcnt vmcnt(1)\n v_readfirstlane_b32 s82, v66")
    if CNT == 3: lastsig()
    a("s_waitcnt lgkmcnt(0)")
    a("L_fact:")
    a("s_barrier")
    stamp(9); fs(7)
    for e in range(4): a(f"ds_read_b128 v[{20+4*e}:{23+4*e}], v{197+e}")
    for e in range(4):
        a(f"s_waitcnt lgkmcnt({3 - e})")
        for acc in (2, 0, 1):
            if acc == 2 and e > 0: continue
            w = 100 + 4 * (4 * acc + e)
            a(f"{MF} v[{HD+4*acc}:{HD+3+4*acc}], v[{w}:{w+3}], v[{20+4*e}:{23+4*e}], v[{HD+4*acc}:{HD+3+4*acc}]")
    a(f"v_cvt_pk_bf16_f32 v84, v{HD+8}, v{HD+9}\n v_cvt_pk_bf16_f32 v85, v{HD+10}, v{HD+11}\n v_min_u32 v84, -2, v84\n v_min_u32 v85, -2, v85")
    a("s_mov_b32 exec_lo, 0x11111111\n s_mov_b32 exec_hi, 0x11111111")
    a("buffer_store_dwordx2 v[84:85], v204, s[20:23], s62 offen sc1\n s_mov_b64 exec, -1")
    for i in range(4): a(f"v_cvt_pk_bf16_f32 v{80+i}, v{HD+2*i}, v{HD+1+2*i}")
    for i in range(4): a(f"v_min_u32 v{80+i}, -2, v{80+i}")
    a("buffer_store_dwordx4 v[80:83], v203, s[20:23], s62 offen sc1")
    if CLX:
        a("s_cmp_eq_u32 s53, 1\n s_cbranch_scc0 L_ncx\n buffer_store_dwordx4 v[56:59], v2, s[20:23], s52 offen sc1\nL_ncx:")
    stamp(10); fs(8); flush(); dump()
    a("s_endpgm")
    emit_stubs()

    a("L_end:")
    if not SAN:
        from asmlib import Ins
        for i, it in enumerate(a.items):
            if isinstance(it, Ins) and it.op == "v_min_u32" and it.ops[1] == "-2":
                a.items[i] = Ins(f"v_mov_b32 {it.ops[0]}, {it.ops[2]}") if it.ops[0] != it.ops[2] else None
        a.items = [x for x in a.items if x is not None]
    body = a.finish().replace("CODE_REST", "L_end-L_pc")
    return f"""{HEADER}; @launch grid=(256,1,1) block=(256,1,1) lds={LDS_BYTES}
.amdgcn_target "amdgcn-amd-amdhsa--gfx950"
.text
.globl {KN}
.p2align 8
.type {KN},@function
{KN}:
{body}
    s_endpgm
.section .rodata,"a"
.p2align 6
.amdhsa_kernel {KN}
  .amdhsa_next_free_vgpr 512
  .amdhsa_next_free_sgpr 102
  .amdhsa_accum_offset 256
  .amdhsa_group_segment_fixed_size 0
  .amdhsa_kernarg_size 96
  .amdhsa_user_sgpr_count 2
  .amdhsa_user_sgpr_kernarg_segment_ptr 1
  .amdhsa_system_sgpr_workgroup_id_x 1
.end_amdhsa_kernel
"""

if __name__ == "__main__":
    out = sys.argv[1]
    kw = {}
    for x in sys.argv[2:]:
        k, v = x.split("=")
        kw[k] = int(v) if v.lstrip("-").isdigit() else v
    open(out, "w").write(gen(**kw))
```

```python
import sys, struct
from asmlib import Asm

KN = "sequential_preLN__sliding_block_cached__geglu_ffn__decode_kernel"
HEADER = open("sequential_preLN__sliding_block_cached__geglu_ffn__decode.s.ref").read().split("; Override launch")[0]

def f2u(x): return struct.unpack("<I", struct.pack("<f", x))[0]

WS_Q   = 0x0
WS_EP  = 0x10000
WS_FL  = 0x10400
WS_SB  = 0x1A000
WS_SC  = 0x1C000
WS_X   = 0x1E000
WS_ST  = WS_X + 294912
WS_A   = WS_ST + 32768
WS_B   = WS_A + 131072
WS_CT  = WS_B + 36864
WS_C   = WS_CT + 1024
WS_END = WS_C + 663552
WS_DIAG = 0x180000
R0, R1 = 0, 73728
IMG = 147456; IMG_T = 272
CMB = 152576
ST  = 156672
HST = 156800
ACT = 157440
ZER = ACT + 512
XIM = ZER + 512
LDS_BYTES = XIM + 5120
OIM = R1
WTS = HST
SPIN = 1 << 18
DPP = "row_mask:0xf bank_mask:0xf"
MF = "v_mfma_f32_16x16x32_bf16"

def gen(diag=False, probe=-1, NT="nt", PNT="none", KF=2, NK1=7, QPOLL=2, QL=7, LAG=9, STEP=1,
        WIN=6, WINV=0, FUN=2, NQF=17, NWF=17, N3F=22, LNP=5, PFC=1, FR=4, RR=0, PW=1, NFF=0, QV=0, QI=1, CNT=3, R72=1, SP=0, PIPE=1, SAN=0, DIRTY=0, DFL='', WL=1, RN=4, NRF=17, EPE=1, CLX=0, CLA=0, NW0=0, K1F=0, E0F=0, LA=4, LAW=5, XP=1, FS=0, FP=0, AP=0, MUL="0x9E3779B1", TLB=0, DNT='none',
        LOC=1, CPOS=10, NTF=5, AL=1, WINF=0, X=""):
    a = Asm()
    pend = []
    NT, PNT = [("" if x == "none" else x) for x in (NT, PNT)]
    assert LAG <= 9
    fine = "m" in X
    def fs(i):
        if fine: a(f"s_memtime s[{84+2*i}:{85+2*i}]")
    def fdump():
        if fine:
            a("s_waitcnt lgkmcnt(0)")
            for i in range(9): a(f"v_writelane_b32 v255, s{84+2*i}, {16+i}")
    def stamp(i):
        if fine: return
        if probe >= 0:
            if i == 0: a("s_memrealtime s[84:85]")
            if i == probe: a("s_memrealtime s[86:87]")
        if not diag: return
        p = 84 + 2 * (len(pend))
        assert p <= 100
        a(f"s_memrealtime s[{p}:{p+1}]"); pend.append((i, p))
    def flush():
        if not diag: return
        a("s_waitcnt lgkmcnt(0)")
        for i, p in pend: a(f"v_writelane_b32 v255, s{p}, {i}")
        pend.clear()
    def dump():
        if not diag: return
        a("s_mov_b64 exec, -1\n v_writelane_b32 v255, s81, 14"); fdump()
        a("s_lshl_b32 s74, s2, 2\n s_add_u32 s74, s74, s3\n s_lshl_b32 s74, s74, 8")
        a(f"s_add_u32 s74, s74, {WS_DIAG}")
        a("v_lshlrev_b32 v254, 2, v0")
        a("s_mov_b32 s22, 0x200000")
        a("buffer_store_dword v255, v254, s[20:23], s74 offen")
    def srd(d, p, n):
        a(f"s_mov_b64 s[{d}:{d+1}], s[{p}:{p+1}]\n s_mov_b32 s{d+2}, {n}\n s_mov_b32 s{d+3}, 0x20000")
    def rowred(regs, op):
        for ctl in ("quad_perm:[1,0,3,2]", "quad_perm:[2,3,0,1]", "row_half_mirror", "row_mirror"):
            for r in regs: a(f"{op}_dpp v{r}, v{r}, v{r} {ctl} {DPP}")
    def xrow(r, t, op):
        for sw in ("v_permlane16_swap_b32", "v_permlane32_swap_b32"):
            a(f"v_mov_b32 v{t}, v{r}\n {sw} v{r}, v{t}\n {op} v{r}, v{r}, v{t}")
    def rnd(r):
        a(f"v_cvt_pk_bf16_f32 v{r}, v{r}, v{r}\n v_and_b32 v{r}, s78, v{r}")
    def chk4(acc, r, first):
        if first: a(f"v_max3_u32 v{acc}, v{r}, v{r+1}, v{r+2}\n v_max_u32 v{acc}, v{r+3}, v{acc}")
        else:     a(f"v_max3_u32 v{acc}, v{r}, v{r+1}, v{acc}\n v_max3_u32 v{acc}, v{r+2}, v{r+3}, v{acc}")
    def spin_end(acc, again):
        lab, stub = a.label("L_ok"), a.label("L_again")
        a(f"v_cmp_eq_u32 vcc, -1, v{acc}\n s_cbranch_vccnz {stub}\n{lab}:")
        stubs.append(f"{stub}:\n s_add_u32 s81, s81, 1\n s_cmp_lt_u32 s81, {SPIN}\n s_cbranch_scc1 {again}\n s_branch {lab}")
    stubs = []
    def emit_stubs():
        for x in stubs: a(x)
        stubs.clear()
    def line_store(val, so):
        a(f"v_mov_b32 v97, {val}\n v_lshlrev_b32 v98, 2, v0\n s_mov_b32 exec_hi, 0\n buffer_store_dword v97, v98, s[20:23], {so} offen sc1\n s_mov_b32 exec_hi, -1")
    def near_store(text, flag="s55"):
        if not LOC: a(text + " sc1"); return
        l1, l2 = a.label("L_far"), a.label("L_st")
        a(f"s_cmp_eq_u32 {flag}, 1\n s_cbranch_scc0 {l1}\n {text}\n s_branch {l2}\n{l1}:\n {text} sc1\n{l2}:")
    class LQ:
        def __init__(q): q.ops = []
        def issue(q, name, text): a(text); q.ops += [name] * len([x for x in text.split("\n") if x.strip()])
        def wait(q, name):
            last = max(i for i, x in enumerate(q.ops) if x == name)
            a(f"s_waitcnt lgkmcnt({min(15, len(q.ops) - 1 - last)})"); q.ops = q.ops[last + 1:]
    free = [False]
    def kvload(kind, i):
        w = WIN if (kind == "k" and i >= KF or kind == "v" and i < QPOLL + QL) else (WINV if kind == "v" else 0)
        if w and free[0]:
            lab = a.label("L_t")
            a(f"s_cbranch_vccnz {lab}\n s_waitcnt vmcnt({w-1})\n{lab}:")
        elif w: a(f"s_waitcnt vmcnt({w-1})")
        if kind in "kK": a(f"buffer_load_dwordx4 a[{4*i}:{4*i+3}], v1, s[8:11], s68 offen {NT}")
        else:           a(f"buffer_load_dwordx4 a[{128+4*i}:{131+4*i}], v2, s[12:15], s68 offen {NT}")
        a(f"s_addk_i32 s68, {STEP*1024}\n s_and_b32 s68, s68, s69")

    a("s_cmp_ge_u32 s2, 256\n s_cbranch_scc1 L_end")
    a("s_load_dwordx16 s[44:59], s[0:1], 0\n s_load_dwordx8 s[60:67], s[0:1], 64")
    if diag:
        for r in range(86, 102, 2): a(f"s_mov_b64 s[{r}:{r+1}], 0")
    stamp(0)
    a("v_lshrrev_b32 v1, 6, v0\n s_and_b32 s4, s2, 7\n s_lshr_b32 s5, s2, 3\n v_readfirstlane_b32 s3, v1")
    if PFC:
        a("s_cmp_eq_u32 s5, 31\n s_cbranch_scc0 L_nopfc")
        a("s_getpc_b64 s[82:83]")
        a("L_pc:")
        a("v_lshlrev_b32 v97, 7, v0\n v_cmp_gt_u32 vcc, CODE_REST, v97\n s_and_saveexec_b64 s[70:71], vcc\n s_cbranch_execz L_pc2\n global_load_dword v206, v97, s[82:83]")
        a("L_pc2:\n s_mov_b64 exec, -1")
        a("L_nopfc:")
    a("v_and_b32 v0, 63, v0")
    if diag: a("v_mov_b32 v255, 0")
    a("s_lshr_b32 s76, s5, 4\n s_lshl_b32 s74, s4, 1\n s_add_u32 s76, s76, s74")
    a("s_and_b32 s77, s5, 15")
    a("s_movk_i32 s69, 0x7fff")
    a(f"s_lshl_b32 s68, s2, 2\n s_add_u32 s68, s68, s3\n s_mul_i32 s68, s68, {MUL}\n s_lshr_b32 s68, s68, 27\n s_lshl_b32 s68, s68, 10")
    a("v_bfe_u32 v92, v0, 2, 2\n v_lshrrev_b32 v93, 4, v0\n v_and_b32 v94, 3, v0")
    a("v_lshlrev_b32 v1, 8, v92\n v_lshl_add_u32 v1, v93, 6, v1\n v_lshl_add_u32 v1, v94, 4, v1")
    a("v_lshrrev_b32 v96, 3, v0\n v_and_b32 v95, 7, v0\n v_lshlrev_b32 v97, 7, v95\n v_lshl_add_u32 v97, v96, 13, v97")
    a("s_lshr_b32 s82, s77, 2\n s_lshl_b32 s82, s82, 4\n s_add_u32 s82, s82, s76\n s_lshl_b32 s82, s82, 21")
    a(f"s_and_b32 s83, s77, 3\n s_lshl_b32 s83, s83, 2\n s_add_u32 s83, s83, s3\n s_lshl_b32 s83, s83, 15\n s_add_u32 s82, s82, s83\n s_add_u32 s82, s82, {6144*256}")
    a("s_mov_b32 s10, 32768\n s_mov_b32 s11, 0x20000\n s_mov_b32 s18, 4718592\n s_mov_b32 s19, 0x20000")
    R0ROW = 576 - 20 * (8 + RR)
    assert R0ROW - 32 * (8 + FR) >= 0
    a(f"s_lshl_b32 s73, s5, 2\n s_add_u32 s73, s73, s3\n s_mul_i32 s74, s73, {8 + FR}\n s_add_u32 s74, s74, {(R0ROW - 40*(8 + FR)) & 0xffffffff:#x}\n s_lshl_b32 s73, s73, 3\n s_add_u32 s73, s73, {(R0ROW - 864) & 0xffffffff:#x}")
    a("s_cmp_lt_u32 s5, 10\n s_cselect_b32 s73, s74, s73\n s_lshl_b32 s73, s73, 13\n s_lshl_b32 s74, s4, 10\n s_add_u32 s73, s73, s74")
    a("v_lshlrev_b32 v2, 4, v0")
    a("v_mov_b32 v184, -1\n v_mov_b32 v185, -1\n v_mov_b32 v186, -1\n v_mov_b32 v187, -1")
    a("s_sub_u32 s7, s5, 27\n s_lshl_b32 s7, s7, 3\n s_add_u32 s7, s7, s4")
    a(f"s_lshl_b32 s75, s7, 2\n s_add_u32 s75, s75, s3\n s_mul_i32 s75, s75, 6144\n s_add_u32 s75, s75, {WS_ST}")
    a(f"s_mov_b32 s22, {WS_END}\n s_mov_b32 s23, 0x20000")
    a("s_lshr_b32 s70, s5, 1\n s_lshl_b32 s70, s70, 3\n s_add_u32 s70, s70, s4")
    a("s_sub_u32 s74, s5, 10\n s_cmp_lt_u32 s74, 17\n s_cselect_b32 s74, 0, s70\n s_cmp_lt_u32 s74, 9")
    if "s" in X: stamp(7)
    a("s_waitcnt lgkmcnt(0)")
    if "s" in X: stamp(8)
    a(f"s_load_dword s54, s[66:67], {WS_EP}")
    a("s_mov_b64 s[16:17], s[50:51]\n s_mov_b64 s[20:21], s[66:67]\n s_cbranch_scc1 L_notq")
    a(f"buffer_load_dword v207, v97, s[16:19], s73 offen {PNT}")
    a("s_cmp_lt_u32 s5, 27\n s_cbranch_scc0 L_rc")
    if FR:
        m = (1 << (8 * FR)) - 1
        a(f"s_add_u32 s73, s73, 65536\n s_mov_b32 exec_lo, {m & 0xffffffff:#x}\n s_mov_b32 exec_hi, {m >> 32:#x}\n buffer_load_dword v208, v97, s[16:19], s73 offen {PNT}\n s_mov_b64 exec, -1")
    a("s_branch L_notq")
    a("L_rc:")
    if RR:
        m = (1 << (8 * RR)) - 1
        a(f"s_sub_u32 s73, s5, 27\n s_lshl_b32 s73, s73, 2\n s_add_u32 s73, s73, s3\n s_mul_i32 s73, s73, {RR*8192}\n s_lshl_b32 s74, s4, 10\n s_add_u32 s73, s73, s74\n s_add_u32 s73, s73, {(R0ROW + 160)*8192}")
        a(f"s_mov_b32 exec_lo, {m & 0xffffffff:#x}\n s_mov_b32 exec_hi, {m >> 32:#x}\n buffer_load_dword v208, v97, s[16:19], s73 offen {PNT}\n s_mov_b64 exec, -1")
    for i in range(6):
        if i == 3: a("s_add_u32 s75, s75, 3072")
        a(f"buffer_store_dwordx4 v[184:187], v2, s[20:23], s75 offen offset:{1024*(i%3)} sc1")
    a("L_notq:")
    a("s_add_u32 s8, s46, s82\n s_addc_u32 s9, s47, 0")
    for i in range(KF): kvload("k", i)
    if "s" in X:
        stamp(9); a("s_waitcnt vmcnt(0)"); stamp(10); flush(); a("s_mov_b32 s81, 0"); dump(); a("s_endpgm")
    a("s_add_u32 s12, s48, s82\n s_addc_u32 s13, s49, 0\n s_mov_b32 s14, 32768\n s_mov_b32 s15, 0x20000")
    srd(24, 44, 4608)
    a("s_and_b32 s82, s3, 1\n s_lshl_b32 s82, s82, 2")
    a("v_and_b32 v97, 2, v96\n v_or_b32 v97, s82, v97\n v_xor_b32 v95, v95, v97\n v_lshlrev_b32 v95, 4, v95")
    a("s_lshl_b32 s83, s3, 10\n s_mov_b32 m0, s83\n s_mov_b32 s78, 0xffff0000")
    a("s_cmp_lt_u32 s5, 18\n s_cbranch_scc1 L_df\n s_cmp_lt_u32 s5, 27\n s_cbranch_scc1 L_dw")
    a("s_mov_b32 s6, 3\n s_branch L_kld")
    a("L_dw:")
    a("s_mov_b32 s6, 1\n s_sub_u32 s7, s5, 18\n s_mov_b32 s71, 36864\n s_mul_i32 s73, s4, 589824\n s_lshl_b32 s82, s7, 7\n s_add_u32 s73, s73, s82")
    a("s_mul_i32 s75, s3, 9216\n s_movk_i32 s74, 1152\n s_mov_b64 s[16:17], s[52:53]\n s_branch L_dma")
    a("L_df:")
    a(f"s_mov_b32 s6, 2\n s_mul_i32 s82, s3, 1152\n s_add_u32 m0, s82, {XIM}\n s_mov_b32 exec_hi, 15")
    a("buffer_load_dwordx4 v2, s[24:27], s82 offen lds\n buffer_load_dwordx4 v2, s[24:27], s82 offen offset:576 lds\n s_mov_b32 exec_hi, -1\n s_mov_b32 m0, s83")
    a(f"s_and_b32 s51, s5, 1\n s_lshl_b32 s52, s70, 2\n s_add_u32 s52, s52, s3\n s_lshl_b32 s52, s52, 10\n s_add_u32 s52, s52, {WS_X}")
    a("s_lshr_b32 s74, s3, 1\n s_cmp_eq_u32 s74, s51\n s_cselect_b32 s53, 1, 0\n s_cbranch_scc0 L_nib")
    a("buffer_store_dwordx4 v[184:187], v2, s[20:23], s52 offen sc1")
    a("L_nib:")
    a("s_cmp_lt_u32 s5, 10\n s_cbranch_scc1 L_kld")
    a("s_mov_b32 s6, 0\n s_lshl_b32 s7, s4, 3\n s_add_u32 s7, s7, s5\n s_sub_u32 s7, s7, 10\n s_movk_i32 s74, 8192\n s_mov_b32 s71, 262144")
    a("s_lshl_b32 s73, s7, 7\n s_lshl_b32 s75, s3, 16")
    for i in range(8): a(f"v_mov_b32 v{188+i}, 0")
    a("s_mov_b32 exec_hi, 15")
    a("buffer_load_dwordx4 v[188:191], v2, s[24:27], s82 offen\n buffer_load_dwordx4 v[192:195], v2, s[24:27], s82 offen offset:576\n s_mov_b32 exec_hi, -1")
    a("L_dma:")
    a("s_add_u32 s73, s73, s75\n v_mad_u32_u24 v3, v96, s74, v95")
    def layernorm():
        a("s_cmp_eq_u32 s6, 0\n s_cbranch_scc0 L_noln")
        a(f"s_waitcnt vmcnt({LNP})")
        for i in range(8):
            a(f"v_lshlrev_b32 v{172+2*i}, 16, v{188+i}\n v_and_b32 v{173+2*i}, s78, v{188+i}")
        a("v_add_f32 v196, v172, v173")
        for i in range(2, 16): a(f"v_add_f32 v196, v196, v{172+i}")
        rowred([196], "v_add_f32"); xrow(196, 197, "v_add_f32")
        a(f"v_mul_f32 v196, {f2u(1/576):#x}, v196")
        a("v_sub_f32 v198, v172, v196\n v_mul_f32 v197, v198, v198")
        for i in range(1, 16): a(f"v_sub_f32 v198, v{172+i}, v196\n v_fmac_f32 v197, v198, v198")
        a("v_cmp_gt_u32 vcc, 36, v0\n v_cndmask_b32 v197, 0, v197, vcc")
        rowred([197], "v_add_f32"); xrow(197, 198, "v_add_f32")
        a(f"v_mul_f32 v197, {f2u(1/576):#x}, v197")
        rnd(196); rnd(197)
        a(f"v_add_f32 v197, {f2u(1e-5):#x}, v197"); rnd(197)
        a("v_sqrt_f32 v197, v197"); rnd(197)
        a("v_rcp_f32 v197, v197")
        for i in range(8):
            lo, hi = 172 + 2*i, 173 + 2*i
            a(f"v_sub_f32 v{lo}, v{lo}, v196\n v_sub_f32 v{hi}, v{hi}, v196\n v_cvt_pk_bf16_f32 v198, v{lo}, v{hi}")
            a(f"v_lshlrev_b32 v{lo}, 16, v198\n v_and_b32 v{hi}, s78, v198\n v_mul_f32 v{lo}, v{lo}, v197\n v_mul_f32 v{hi}, v{hi}, v197")
            a(f"v_cvt_pk_bf16_f32 v{188+i}, v{lo}, v{hi}")
        a(f"v_lshrrev_b32 v198, 2, v0\n v_mul_u32_u24 v198, {IMG_T}, v198\n v_lshl_add_u32 v198, v94, 6, v198")
        a(f"s_lshl_b32 s82, s3, 4\n s_add_u32 s82, s82, {IMG}\n v_add_u32 v198, s82, v198")
        a("s_mov_b64 exec, vcc")
        a(f"ds_write_b128 v198, v[188:191]\n ds_write_b128 v198, v[192:195] offset:{9*IMG_T}")
        a("s_mov_b64 exec, -1")
        a("L_noln:")
    for n in range(18):
        if n == LNP: layernorm()
        if n == 16: a("s_cmp_eq_u32 s6, 1\n s_cbranch_scc1 L_kld")
        if WIN and n + KF >= WIN + FUN: a(f"s_waitcnt vmcnt({WIN + FUN - 1})")
        a(f"buffer_load_dwordx4 v3, s[16:19], s73 offen {NT} lds")
        if n < 17: a("s_addk_i32 m0, 0x1000\n s_add_u32 s73, s73, s71")
    a("L_kld:")
    nk = KF
    for i in range(NK1):
        kvload("K" if E0F else "k", nk); nk += 1
        if i == 0:
            srd(28, 56, 5308416); srd(32, 58, 5308416); srd(36, 62, 4608); srd(24, 60, 5308416)
            a(f"s_mov_b32 s79, {f2u(128 ** -0.5):#x}\n s_mov_b32 s80, {f2u(1.4426950408889634):#x}\n s_getreg_b32 s42, hwreg(HW_REG_XCC_ID, 0, 3)")
            if TLB:
                if TLB == 1: a("s_lshl_b32 s82, s5, 2\n s_add_u32 s82, s82, s3\n s_cmp_eq_u32 s82, 127\n s_cbranch_scc0 L_ntl")
                else:        a("s_cmp_eq_u32 s3, 3\n s_cbranch_scc0 L_ntl")
                a("v_lshlrev_b32 v97, 21, v0\n s_mov_b64 exec, 7")
                for k, sr in enumerate((24, 28, 32, 36)): a(f"buffer_load_dword v{209+k}, v97, s[{sr}:{sr+3}], 0 offen {NT}")
                if TLB == 1:
                    srd(44, 48, 134217728)
                    a(f"s_mov_b64 exec, 0xff\n v_lshrrev_b32 v98, 1, v0\n v_and_b32 v97, 1, v0\n v_lshl_add_u32 v97, v98, 4, v97\n v_lshlrev_b32 v97, 21, v97\n s_lshl_b32 s82, s4, 22\n s_add_u32 s82, s82, {6143*256}")
                    a(f"buffer_load_dword v213, v97, s[44:47], s82 offen {NT}")
                else:
                    a(f"s_mov_b64 exec, 1\n buffer_load_dword v213, v97, s[12:15], 0 offen {NT}")
                a("s_mov_b64 exec, -1\nL_ntl:")
        if i == 1:
            a("v_lshrrev_b32 v97, 1, v92\n v_and_b32 v98, 1, v93\n v_lshl_or_b32 v97, v98, 1, v97\n v_xor_b32 v97, s3, v97")
            a("v_lshl_add_u32 v4, v93, 3, v92\n v_lshlrev_b32 v4, 7, v4\n v_lshl_add_u32 v4, v97, 5, v4\n v_lshl_add_u32 v4, v94, 3, v4\n v_add_u32 v5, 36864, v4")

    a(f"s_waitcnt vmcnt({NK1}) lgkmcnt(0)\n s_barrier\n s_add_u32 s54, s54, 16\n s_add_u32 s43, s54, s42")
    stamp(1)
    a("s_cmp_eq_u32 s3, 0\n s_cbranch_scc0 L_etr")
    a(f"s_lshl_b32 s82, s4, 5\n s_add_u32 s82, s82, s5\n s_add_u32 s83, s7, 256\n s_cmp_eq_u32 s6, 3\n s_cselect_b32 s82, s83, s82\n s_lshl_b32 s82, s82, 7\n s_add_u32 s82, s82, {WS_FL}")
    line_store("s43", "s82")
    a("L_etr:")
    def trread(dst, base_lo, base_hi, t):
        b, off = (base_lo, t * 4096) if t < 9 else (base_hi, (t - 9) * 4096)
        k, n = dst
        a(f"ds_read_b64_tr_b16 {k}[{n}:{n+1}], v{b} offset:{off}\n ds_read_b64_tr_b16 {k}[{n+2}:{n+3}], v{b} offset:{off+512}")
    for j in range(18):
        if j % 6 == 0:
            kvload("K", nk); nk += 1
            lab = a.label("L_ne"); a(f"s_cmp_lt_u32 s6, 2\n s_cbranch_scc0 {lab}")
        trread(("v", 100 + 4*j), 4, 5, j)
        if j % 6 == 5: a(f"{lab}:")
    a(f"s_cmp_eq_u32 s6, 0\n s_cbranch_scc0 {'L_k1' if QI else 'L_k2'}")
    a(f"v_lshl_add_u32 v198, v93, 2, v94\n v_lshlrev_b32 v198, 4, v198\n v_add_u32 v198, {IMG}, v198")
    for t in range(18): a(f"ds_read_b128 v[{20+4*t}:{23+4*t}], v198 offset:{t*IMG_T}")
    if QI: kvload("K", nk)
    a("s_waitcnt lgkmcnt(0)")
    for t in range(18):
        a(f"{MF} v[16:19], v[{100+4*t}:{103+4*t}], v[{20+4*t}:{23+4*t}], {'0' if t == 0 else 'v[16:19]'}")
        if QI and t in (8, 17): kvload("K", nk + 1 + t // 9)
    a("v_lshlrev_b32 v198, 8, v94\n v_bfe_u32 v97, v0, 4, 1\n v_lshl_add_u32 v198, v97, 6, v198\n v_bfe_u32 v97, v0, 5, 1\n v_lshl_add_u32 v198, v97, 4, v198")
    a(f"s_lshr_b32 s83, s3, 1\n s_lshl_b32 s83, s83, 7\n s_and_b32 s82, s3, 1\n s_lshl_b32 s82, s82, 5\n s_add_u32 s83, s83, s82\n s_add_u32 s83, s83, {CMB}\n v_add_u32 v198, s83, v198")
    a(f"v_add_u32 v199, {CMB}, v2\n v_and_b32 v97, 15, v0\n v_lshlrev_b32 v97, 4, v97\n v_lshl_add_u32 v97, v93, 14, v97\n s_lshl_b32 s82, s7, 8")
    a("v_cvt_pk_bf16_f32 v16, v16, v17\n v_cvt_pk_bf16_f32 v18, v18, v19\n v_mov_b32 v17, s54\n v_mov_b32 v19, s54")
    a("s_mov_b32 exec_lo, 0x000f000f\n s_mov_b32 exec_hi, 0x000f000f\n ds_write_b128 v198, v[16:19]\n s_mov_b64 exec, -1")
    a("s_cmp_eq_u32 s3, 0\n s_waitcnt lgkmcnt(0)\n s_barrier\n s_cbranch_scc0 L_k2")
    a("ds_read_b128 v[16:19], v199\n s_waitcnt lgkmcnt(0)")
    a("buffer_store_dwordx4 v[16:19], v97, s[20:23], s82 offen sc1")
    stamp(11)
    if QI:
        a("s_branch L_k2\nL_k1:")
        for i in range(3):
            if K1F == 2: kvload("K", nk)
            elif K1F:
                lab = a.label("L_t"); a(f"s_cmp_eq_u32 s3, 0\n s_cbranch_scc1 {lab}\n s_waitcnt vmcnt({WIN-1})\n{lab}:"); kvload("K", nk)
            else: kvload("k", nk)
            nk += 1
    a("L_k2:")
    C = []
    c = C.append
    M = "s[66:67]"
    c("s_sub_u32 s83, s70, 9\n s_mul_i32 s50, s83, 9363\n s_lshr_b32 s50, s50, 16\n s_mul_i32 s75, s50, 7\n s_sub_u32 s83, s83, s75\n s_cmp_gt_u32 s83, 2\n s_addc_u32 s83, s83, 0\n"
      "s_cmp_lt_u32 s70, 9\n s_cselect_b32 s50, s70, s50\n s_cselect_b32 s83, 3, s83\n s_lshl_b32 s50, s50, 3\n s_add_u32 s50, s50, s83")
    c(f"s_lshl_b32 s58, s50, 7\n s_mul_i32 s83, s3, 73728\n s_add_u32 s58, s58, s83\n s_mul_i32 s83, s51, {288*9216}\n s_add_u32 s58, s58, s83\n s_mov_b32 s73, s58\n"
      "s_lshl_b32 s59, s50, 1\n s_add_u32 s59, s59, s51\n s_lshl_b32 s59, s59, 2\n s_add_u32 s59, s59, s3\n s_mul_i32 s59, s59, 9216\n s_lshl_b32 s83, s3, 10\n s_mov_b32 m0, s83")
    c("s_movk_i32 s83, 9216\n v_mad_u32_u24 v6, v96, s83, v95\n s_movk_i32 s83, 1152\n v_mad_u32_u24 v3, v96, s83, v95\n"
      "v_bfe_u32 v97, v0, 1, 2\n v_mul_u32_u24 v97, 1152, v97\n v_bfe_u32 v98, v0, 5, 1\n v_lshl_add_u32 v97, v98, 6, v97\n v_bfe_u32 v98, v0, 3, 1\n v_lshl_add_u32 v97, v98, 5, v97")
    c("v_and_b32 v98, 1, v0\n v_lshl_add_u32 v97, v98, 4, v97\n v_bfe_u32 v98, v0, 4, 1\n v_lshl_add_u32 v97, v98, 3, v97\n"
      f"s_lshl_b32 s83, s3, 7\n s_mul_i32 s75, s51, 576\n s_add_u32 s83, s83, s75\n s_add_u32 s83, s83, {XIM}\n v_add_u32 v97, s83, v97\n ds_read_b64 v[192:193], v97\n ds_read_b64 v[194:195], v97 offset:512")
    c("v_mov_b32 v184, 0x3f803f80\n v_mov_b32 v185, v184\n v_mov_b32 v186, v184\n v_mov_b32 v187, v184\n"
      f"v_mul_u32_u24 v97, {IMG_T}, v0\n v_add_u32 v97, {IMG + 256}, v97\n s_mov_b64 exec, 0x1ff\n ds_write_b128 v97, v[184:187]\n s_mov_b64 exec, -1")
    c(f"v_mov_b32 v188, 0\n v_mov_b32 v189, 0\n v_mov_b32 v190, 0\n v_mov_b32 v191, 0\n v_mov_b32 v97, {ZER}\n ds_write_b128 v97, v[188:191]")
    c("s_waitcnt lgkmcnt(0)\n s_cmp_eq_u32 s3, 0\n s_cselect_b32 s66, -1, 0\n s_mov_b32 s67, 0\n"
      f"v_cndmask_b32 v194, 0, v194, {M}\n v_cndmask_b32 v195, 0, v195, {M}\n" +
      "\n".join(f"v_lshlrev_b32 v{172+2*i}, 16, v{192+i}\n v_and_b32 v{173+2*i}, s78, v{192+i}" for i in range(4)))
    c(f"v_and_b32 v97, 1, v0\n v_cmp_eq_u32 {M}, 1, v97\n v_mov_b32 v98, 0x3f80\n v_mov_b32 v99, 0x3f800000\n v_cndmask_b32 v98, v98, v99, {M}\n v_bfe_u32 v97, v0, 1, 3")
    c("\n".join(f"v_cmp_eq_u32 {M}, {d}, v97\n v_cndmask_b32 v{184+d}, 0, v98, {M}" for d in range(4)))
    c("\n".join(f"v_cmp_eq_u32 {M}, {d}, v97\n v_cndmask_b32 v{184+d}, 0, v98, {M}" for d in range(4, 8)))
    c(f"v_bfe_u32 v97, v0, 1, 2\n v_bfe_u32 v192, v0, 5, 1\n v_mul_u32_u24 v192, {IMG_T}, v192\n v_bfe_u32 v98, v0, 3, 1\n v_lshl_add_u32 v192, v98, 7, v192\n"
      "v_and_b32 v98, 1, v0\n v_lshl_add_u32 v192, v98, 6, v192\n v_lshl_add_u32 v192, v97, 4, v192\n v_bfe_u32 v98, v0, 4, 1\n v_lshl_add_u32 v192, v98, 3, v192")
    c(f"s_mul_i32 s83, s3, {2*IMG_T}\n s_add_u32 s83, s83, {IMG}\n v_add_u32 v192, s83, v192\n"
      f"v_lshlrev_b32 v193, 7, v97\n v_lshl_add_u32 v193, v93, 3, v193\n s_lshl_b32 s83, s3, 5\n s_add_u32 s83, s83, {HST}\n v_add_u32 v193, s83, v193")
    c(f"v_lshl_add_u32 v194, v93, 2, v92\n v_lshlrev_b32 v194, 4, v194\n v_add_u32 v99, {ACT}, v194\n v_mov_b32 v98, 256\n v_cmp_eq_u32 {M}, 1, v94\n v_cndmask_b32 v194, v194, v98, {M}\n v_add_u32 v194, {IMG}, v194\n"
      f"v_lshlrev_b32 v195, 3, v0\n v_add_u32 v195, {HST}, v195")
    c(f"v_mov_b32 v98, {ZER}\n" + "\n".join(f"v_cmp_eq_u32 {M}, {e}, v94\n v_cndmask_b32 v{197+e}, v98, v99, {M}" for e in range(4)))
    c("v_bfe_u32 v196, v0, 3, 1\n v_lshlrev_b32 v196, 6, v196\n v_lshl_add_u32 v196, v93, 4, v196\n v_and_b32 v98, 7, v0\n v_lshl_add_u32 v196, v98, 1, v196\n"
      f"s_and_b32 s83, s3, 1\n s_lshl_b32 s83, s83, 7\n s_add_u32 s83, s83, {ACT}\n v_add_u32 v196, s83, v196\n v_mul_u32_u24 v203, 18432, v96\n v_lshl_add_u32 v203, v98, 4, v203\n"
      f"v_lshlrev_b32 v204, 5, v92\n v_lshl_add_u32 v204, v93, 3, v204\n v_add_u32 v204, {8*18432}, v204")
    c(f"v_bfe_u32 v97, v0, 5, 1\n v_lshlrev_b32 v97, 6, v97\n v_lshl_add_u32 v97, v92, 4, v97\n v_bfe_u32 v98, v0, 4, 1\n v_lshl_add_u32 v97, v98, 3, v97\n v_add_u32 v97, {IMG}, v97\n"
      "s_mul_i32 s75, s51, 9\n s_cmp_eq_u32 s70, 0\n s_cselect_b32 s75, s75, 64\n s_lshl_b32 s83, s3, 1\n s_sub_u32 s83, s83, s75\n v_bfe_u32 v98, v0, 1, 1\n v_add_u32 v98, s83, v98")
    c(f"v_and_b32 v99, 1, v0\n v_lshl_add_u32 v99, v99, 7, v97\n s_movk_i32 s83, {IMG_T}\n v_mov_b32 v183, {ZER}\n"
      f"v_mad_i32_i24 v180, v98, s83, v99\n v_cmp_gt_u32 {M}, 9, v98\n v_add_u32 v98, 8, v98\n v_cndmask_b32 v180, v183, v180, {M}\n"
      f"v_mad_i32_i24 v181, v98, s83, v99\n v_cmp_gt_u32 {M}, 9, v98\n v_cndmask_b32 v181, v183, v181, {M}")
    c(f"s_lshr_b32 s83, s3, 1\n s_add_u32 s83, s83, 16\n s_sub_u32 s83, s83, s75\n s_cmp_lt_u32 s83, 9\n s_cselect_b64 {M}, -1, 0\n s_mul_i32 s83, s83, {IMG_T}\n s_and_b32 s75, s3, 1\n s_lshl_b32 s75, s75, 7\n s_add_u32 s83, s83, s75\n"
      f"v_add_u32 v182, s83, v97\n v_cndmask_b32 v182, v183, v182, {M}")
    c(f"s_lshl_b32 s83, s3, 5\n v_xor_b32 v248, s83, v4\n s_lshl_b32 s83, s3, 12\n s_add_u32 s83, s83, {R1}\n v_add_u32 v248, s83, v248\n v_xor_b32 v249, 32, v248\n v_xor_b32 v250, 64, v248\n v_xor_b32 v251, 64, v249\n v_add_u32 v252, {R1 + 32768}, v4\n"
      f"s_lshl_b32 s83, s4, 10\n s_add_u32 s83, s83, {WS_SB}\n v_lshlrev_b32 v207, 7, {'v0' if FS else 'v93'}\n v_add_u32 v207, s83, v207")
    c(f"s_mul_i32 s62, s3, {9*18432}\n s_lshl_b32 s83, s2, 7\n s_add_u32 s62, s62, s83\n s_add_u32 s62, s62, {WS_C}\n"
      f"s_mul_i32 s65, s51, 18432\n s_add_u32 s65, s65, {WS_B}\n s_lshl_b32 s63, s3, 12\n s_add_u32 s63, s63, s65\n s_add_u32 s65, s65, 16384\n s_lshl_b32 s61, s4, 7\n s_add_u32 s61, s61, {WS_SC}")
    Wl = []
    w = Wl.append
    w(f"v_and_b32 v97, 15, v0\n v_and_b32 v172, 7, v0\n v_xor_b32 v172, v172, v93\n v_lshlrev_b32 v172, 4, v172\n v_lshl_add_u32 v172, v97, 8, v172")
    w(f"s_lshl_b32 s83, s3, 12\n s_add_u32 s83, s83, {OIM}\n v_add_u32 v172, s83, v172\n v_xor_b32 v173, 64, v172")
    w(f"v_xor_b32 v174, v97, v93\n v_lshlrev_b32 v174, 4, v174\n v_lshl_add_u32 v174, v93, 8, v174\n v_add_u32 v174, {OIM}, v174\n v_xor_b32 v175, 64, v174")
    w("v_lshlrev_b32 v176, 5, v92\n v_lshl_add_u32 v176, v93, 3, v176")
    w(f"v_lshlrev_b32 v177, 7, v0\n v_lshlrev_b32 v178, 4, v97\n v_add_u32 v178, {WTS}, v178\n s_lshl_b32 s83, s3, 2\n v_add_u32 v179, s83, v178\n v_mov_b32 v180, 0")
    w("s_lshr_b32 s83, s3, 1\n s_lshl_b32 s62, s7, 1\n s_add_u32 s62, s62, s83\n s_lshl_b32 s62, s62, 3\n s_add_u32 s62, s62, s4\n s_lshl_b32 s62, s62, 1")
    w(f"s_and_b32 s75, s3, 1\n s_add_u32 s62, s62, s75\n s_lshl_b32 s62, s62, 7\n s_add_u32 s62, s62, {WS_B}")
    w(f"s_lshl_b32 s63, s4, 2\n s_add_u32 s63, s63, s3\n s_lshl_b32 s63, s63, 12\n s_add_u32 s63, s63, {WS_A}")
    w(f"s_lshl_b32 s64, s4, 1\n s_add_u32 s64, s64, s83\n s_lshl_b32 s64, s64, 11\n s_lshl_b32 s75, s75, 2\n s_add_u32 s64, s64, s75\n s_add_u32 s64, s64, {WS_ST}")
    w(f"s_lshl_b32 s61, s4, 7\n s_add_u32 s61, s61, {WS_SB}")
    WLN = (288 - 48 * RN) // 2
    Hl = (f"s_lshl_b32 s82, s7, 2\n s_add_u32 s82, s82, s3\n s_and_b32 s51, s82, 1\n s_mul_i32 s51, s51, {WLN*128}\n s_lshr_b32 s82, s82, 1\n s_sub_u32 s83, s5, 27\n s_lshl_b32 s83, s83, 2\n s_add_u32 s83, s83, s3\n"
          f"s_cmp_eq_u32 s6, 1\n s_cselect_b32 s82, s82, s83\n s_cselect_b32 s51, s51, {2*WLN*128}\n s_lshr_b32 s70, s82, 1\n s_lshl_b32 s70, s70, 3\n s_add_u32 s70, s70, s4\n" + C[0] +
          "\n s_and_b32 s83, s82, 1\n s_lshl_b32 s50, s50, 1\n s_add_u32 s50, s50, s83\n s_mul_i32 s50, s50, 36864\n s_add_u32 s50, s50, s51\n s_cmp_lt_u32 s82, 18\n s_cselect_b32 s50, s50, s26\n v_lshlrev_b32 v182, 7, v0")
    hooks = [(2, x) for x in C] + [(3, Hl)] + [(1, "\n".join(Wl[i:i+5])) for i in range(0, len(Wl), 5)]
    def dtouch(n, lanes):
        m = (1 << lanes) - 1
        a(f"s_barrier\n s_mov_b32 exec_lo, {m & 0xffffffff:#x}\n s_mov_b32 exec_hi, {m >> 32:#x}")
        for i in range(n): a(f"buffer_load_dword v183, v182, s[24:27], s50 offen {PNT}\n s_add_u32 s50, s50, {lanes*128}")
        a("s_mov_b64 exec, -1")
    def late(n):
        if n == 9:  a("s_mov_b32 s73, s58")
        if n == 18: a("s_mov_b32 s73, s59")
        sr = (28, 32, 24)[n // 9]
        a(f"buffer_load_dwordx4 v{3 if n >= 18 else 6}, s[{sr}:{sr+3}], s73 offen {NT if n < 18 else DNT.replace('none', '')} lds")
        a("s_addk_i32 m0, 0x1000\n " + ("s_addk_i32 s73, 128" if n >= 18 else "s_add_u32 s73, s73, 294912"))
    a(f"s_cmp_lt_u32 s70, 9\n s_cselect_b32 s72, {N3F}, {NFF}\n s_cmp_eq_u32 s6, 3\n s_cselect_b32 s72, {NRF}, s72\n s_cmp_eq_u32 s6, 0\n s_cselect_b32 s72, {NQF}, s72\n s_cmp_eq_u32 s6, 1\n s_cselect_b32 s72, {NWF}, s72")
    if NW0: a(f"s_max_u32 s82, s72, {NW0}\n s_cmp_eq_u32 s3, 0\n s_cselect_b32 s72, s82, s72")
    a("v_and_b32 v205, 7, v0\n v_lshlrev_b32 v205, 4, v205\n v_lshl_add_u32 v205, v96, 10, v205")
    k0 = nk
    while nk < 32:
        if WIN and nk - k0 < max(NQF, NWF, N3F, NFF):
            lab = a.label("L_t")
            a(f"s_cmp_gt_u32 s72, {nk - k0}\n s_cbranch_scc1 {lab}\n s_waitcnt vmcnt({WIN-1})\n{lab}:")
            kvload("K", nk)
        else: kvload("k", nk)
        nk += 1
        for _ in range(-(-len(hooks) // (32 - nk + 1))):
            role, code = hooks.pop(0)
            lab = a.label("L_h")
            a(f"s_cmp_eq_u32 s6, 1\n s_cbranch_scc0 {lab}" if role == 1 else f"s_bitcmp1_b32 s6, 0\n s_cbranch_scc{3 - role} {lab}"); a(code); a(f"{lab}:")
    def vfree(i):
        if QV:
            lab = a.label("L_t")
            a(f"s_cmp_gt_u32 s72, {32 - k0 + i}\n s_cbranch_scc1 {lab}\n s_waitcnt vmcnt({WIN-1})\n{lab}:")
            kvload("V", i)
        else: kvload("v", i)
    for i in range(QPOLL): vfree(i)

    a("v_bfe_u32 v62, v0, 2, 1\n v_lshlrev_b32 v62, 9, v62\n v_lshl_add_u32 v62, v93, 7, v62\n v_lshl_add_u32 v62, v94, 4, v62")
    a("s_lshl_b32 s56, s4, 5\n s_add_u32 s57, s56, s5\n s_xor_b32 s57, s57, 1\n s_add_u32 s56, s56, 18\n s_cmp_lt_u32 s5, 18\n s_cselect_b32 s57, s57, s56\n s_lshl_b32 s57, s57, 7")
    a("s_mul_i32 s83, s3, 14\n s_add_u32 s83, s83, 242\n s_movk_i32 s40, 0x3fff\n s_cmp_eq_u32 s3, 3\n s_cselect_b32 s40, 0xfff, s40\n s_cmp_eq_u32 s3, 0\n s_cselect_b32 s56, s56, s83\n s_cselect_b32 s40, 0x1ff, s40\n s_brev_b32 s41, 1")
    a(f"v_add_u32 v63, s56, v0\n v_lshlrev_b32 v63, 7, v63\n v_writelane_b32 v63, s57, 63\n v_mov_b32 v61, s43\n s_mov_b32 s56, {WS_FL}")
    a("s_lshr_b32 s82, s77, 2\n s_lshl_b32 s82, s82, 14\n s_lshl_b32 s83, s76, 10\n s_add_u32 s82, s82, s83")
    def qpass():
        a("s_mov_b64 exec, s[40:41]\n buffer_load_dword v61, v63, s[20:23], s56 offen sc1\n s_mov_b64 exec, -1")
        a("buffer_load_dwordx4 v[52:55], v62, s[20:23], s82 offen sc1\n buffer_load_dwordx4 v[56:59], v62, s[20:23], s82 offen offset:64 sc1")
    stamp(2)
    qpass()
    nv = QPOLL
    for i in range(QL): vfree(nv); nv += 1
    a("v_and_b32 v97, 1, v0\n v_cmp_eq_u32 vcc, 1, v97\n v_mov_b32 v98, 0xffff\n v_mov_b32 v99, s78\n v_cndmask_b32 v98, v98, v99, vcc")
    a("v_bfe_u32 v97, v0, 3, 1\n v_bfe_u32 v99, v0, 1, 1\n v_lshl_or_b32 v97, v97, 1, v99")
    for d in range(4): a(f"v_cmp_eq_u32 vcc, {d}, v97\n v_cndmask_b32 v{12+d}, 0, v98, vcc")
    a("v_mov_b32 v7, 0xff800000\n s_mov_b32 s81, 0")
    a(f"s_waitcnt vmcnt({QL})\n s_branch L_qchk")
    a("L_qpoll:")
    qpass()
    a(f"s_add_u32 s81, s81, 1\n s_cmp_gt_u32 s81, {SPIN}\n s_waitcnt vmcnt(0)\n s_cbranch_scc1 L_qgo")
    a("L_qchk:")
    a("v_subrev_u32 v60, s54, v61\n v_lshrrev_b32 v60, 3, v60")
    for r in (53, 55, 57, 59): a(f"v_xor_b32 v{r}, s54, v{r}")
    a("v_or3_b32 v60, v60, v53, v55\n v_or3_b32 v60, v60, v57, v59\n v_cmp_ne_u32 vcc, 0, v60\n s_cbranch_vccnz L_qpoll")
    a("L_qgo:")
    a("v_cmp_ne_u32 vcc, s43, v61\n v_mov_b32 v8, v52\n v_mov_b32 v9, v54\n v_mov_b32 v10, v56\n v_mov_b32 v11, v58\n s_cmp_eq_u32 vcc_lo, 0\n s_cselect_b32 s55, 1, 0\n s_cmp_eq_u32 vcc_hi, 0\n s_cselect_b32 s49, 1, 0")
    if diag: a("v_writelane_b32 v255, s81, 13")
    stamp(3)

    def qk(gi):
        for q in range(4):
            d = 52 + 16 * (gi & 1) + 4 * q; k = 16 * gi + 4 * q
            a(f"{MF} v[{d}:{d+3}], a[{k}:{k+3}], v[8:11], 0")
    qk(0)
    for gi in range(8):
        if gi < 7: qk(gi + 1)
        D = 52 + 16 * (gi & 1); T = 20 + 4 * gi
        for u in range(4):
            for q in range(4):
                if u == 0: a(f"v_mov_b32_dpp v{T+q}, v{D+4*q} quad_perm:[0,0,0,0] {DPP}")
                else:      a(f"v_add_f32_dpp v{T+q}, v{D+4*q+u}, v{T+q} quad_perm:[{u},{u},{u},{u}] {DPP}")
        a(f"v_max3_f32 v7, v{T}, v{T+1}, v7\n v_max3_f32 v7, v{T+2}, v{T+3}, v7")
        for rep in range(2):
            a(f"v_cvt_pk_bf16_f32 v97, v{T}, v{T+1}\n v_cvt_pk_bf16_f32 v98, v{T+2}, v{T+3}")
            a(f"v_lshlrev_b32 v{T}, 16, v97\n v_and_b32 v{T+1}, s78, v97\n v_lshlrev_b32 v{T+2}, 16, v98\n v_and_b32 v{T+3}, s78, v98")
            if rep == 0:
                for q in range(4): a(f"v_mul_f32 v{T+q}, s79, v{T+q}")
        kvload("v", nv); nv += 1
    xrow(7, 97, "v_max_f32")
    rnd(7); a("v_mul_f32 v7, s79, v7"); rnd(7)
    a("v_mul_f32 v52, s80, v7")
    for i in range(32): a(f"v_fma_f32 v{20+i}, v{20+i}, s80, -v52")
    kvload("v", nv); nv += 1
    for i in range(32):
        a(f"v_exp_f32 v{20+i}, v{20+i}")
        if i == 2: a("v_add_f32 v53, v20, v21")
        if i > 2:  a(f"v_add_f32 v53, v53, v{19+i}")
        if i == 15: kvload("v", nv); nv += 1
    a("v_add_f32 v53, v53, v51")
    kvload("v", nv); nv += 1
    xrow(53, 97, "v_add_f32")
    a(f"v_bfe_u32 v97, v0, 2, 1\n v_lshlrev_b32 v97, 5, v97\n s_lshl_b32 s82, s3, 3\n s_add_u32 s82, s82, {ST}\n v_add_u32 v97, s82, v97")
    a("s_mov_b64 exec, 0x11\n ds_write_b64 v97, v[52:53]\n s_mov_b64 exec, -1")
    stamp(4); flush()
    PB = {}
    def pbuild(i):
        if i in PB and PB[i][1]: return
        P = PB[i][0] if i in PB else 84 + 4 * (i & 1)
        a(f"v_cvt_pk_bf16_f32 v99, v{20+i}, v{20+i}")
        for d in range(4): a(f"v_and_b32 v{P+d}, v99, v{12+d}")
    def pv(i):
        P = PB[i][0] if i in PB else 84 + 4 * (i & 1)
        a(f"{MF} v[16:19], v[{P}:{P+3}], a[{128+4*i}:{131+4*i}], {'0' if i == 0 else 'v[16:19]'}")
    done = nv - LAG
    a(f"s_waitcnt vmcnt({LAG})")
    pbuild(0)
    for i in range(done):
        pbuild(i + 1); pv(i)
        if i % 5 == 4 and nv < 29: kvload("v", nv); nv += 1
    a("s_waitcnt lgkmcnt(0)\n s_barrier")
    a(f"v_and_b32 v97, 1, v93\n v_lshlrev_b32 v97, 5, v97\n v_add_u32 v98, s82, v97\n v_add_u32 v97, {ST}, v97")
    a("ds_read_b128 v[56:59], v97\n ds_read_b128 v[60:63], v97 offset:16\n ds_read_b32 v64, v98")
    kvload("v", nv); nv += 1
    a("s_waitcnt lgkmcnt(0)")
    a("v_max3_f32 v65, v56, v58, v60\n v_max_f32 v65, v65, v62")
    for r in (56, 58, 60, 62, 64): a(f"v_sub_f32 v{r}, v{r}, v65")
    for r in (56, 58, 60, 62, 64): a(f"v_exp_f32 v{r}, v{r}")
    a("v_mul_f32 v66, v56, v57\n v_fmac_f32 v66, v58, v59\n v_fmac_f32 v66, v60, v61\n v_fmac_f32 v66, v62, v63")
    a("v_rcp_f32 v67, v66\n v_log_f32 v66, v66")
    a("v_mul_f32 v7, v64, v67")
    a("v_add_f32 v66, v66, v65\n v_min_u32 v66, -2, v66")
    a("s_cmp_eq_u32 s3, 0\n s_cbranch_scc0 L_nolse")
    a(f"s_lshl_b32 s82, s4, 5\n s_add_u32 s82, s82, s5\n s_lshl_b32 s82, s82, 7\n s_add_u32 s82, s82, {WS_ST}")
    a("v_and_b32 v67, 15, v0\n v_lshlrev_b32 v67, 3, v67\n v_lshl_add_u32 v67, v93, 2, v67\n s_mov_b32 exec_hi, 0")
    if CLA: a("buffer_store_dword v66, v67, s[20:23], s82 offen sc1")
    else: near_store("buffer_store_dword v66, v67, s[20:23], s82 offen")
    a("s_mov_b32 exec_hi, -1")
    a("L_nolse:")
    a(f"s_waitcnt vmcnt({LAG})"); pv(done); done += 1
    while done < nv - LAG:
        pbuild(done); pv(done); done += 1
    a(f"s_lshl_b32 s82, s76, 13\n s_lshl_b32 s83, s77, 8\n s_add_u32 s82, s82, s83\n s_add_u32 s57, s82, {WS_A}")
    a("v_and_b32 v97, 15, v0\n v_lshlrev_b32 v97, 4, v97\n v_and_b32 v98, 1, v93\n v_lshl_add_u32 v97, v98, 12, v97\n v_lshrrev_b32 v98, 1, v93\n v_lshl_add_u32 v97, v98, 3, v97")
    a(f"s_lshl_b32 s82, s3, 10\n s_add_u32 s82, s82, {CMB}\n v_add_u32 v98, s82, v2")
    todo = list(range(32 - LAG, 32))
    while nv < 32:
        kvload("v", nv); nv += 1
        k = -(-len(todo) // (32 - nv + 1))
        for i in todo[:k]:
            PB[i] = [212 + 4 * (31 - i), False]; pbuild(i); PB[i][1] = True
        todo = todo[k:]
        pbuild(done); a(f"s_waitcnt vmcnt({LAG})"); pv(done); done += 1
    if "c" in X:
        a("s_waitcnt vmcnt(0)"); stamp(5); flush(); dump(); a("s_endpgm")
    a("s_bitcmp1_b32 s6, 0\n s_cbranch_scc0 L_ft")
    def lsepass(): a("s_mov_b64 exec, 0xffff\n buffer_load_dword v180, v177, s[20:23], s64 offen sc1\n s_mov_b64 exec, -1")
    a("s_cmp_eq_u32 s6, 1\n s_cbranch_scc0 L_nw")
    lsepass()
    a("L_x1:")
    for i in range(done, 32):
        a(f"s_waitcnt vmcnt({32 - i})"); pv(i)
    a("s_nop 6\n s_branch L_comb")
    a("L_nw:")
    for i in range(done, 32):
        a(f"s_waitcnt vmcnt({31 - i})"); pv(i)
    a("s_nop 6\n s_branch L_comb")
    a("L_ft:")
    nl = 0
    for i in range(done, 32):
        if nl < NTF: late(nl); nl += 1
        a(f"s_waitcnt vmcnt({31 - i + nl})"); pv(i)
    a("s_nop 7")
    a("L_comb:"); fs(0)
    stamp(5)
    for i in range(4): a(f"v_mul_f32 v{16+i}, v{16+i}, v7")
    a("ds_write_b128 v98, v[16:19]\n s_cmp_eq_u32 s3, 0\n s_waitcnt lgkmcnt(0)\n s_barrier\n s_cbranch_scc0 L_pubd")
    for w in range(1, 4): a(f"ds_read_b128 v[{52+4*w}:{55+4*w}], v98 offset:{1024*w}")
    for w in range(1, 4):
        a(f"s_waitcnt lgkmcnt({3 - w})")
        a(f"v_pk_add_f32 v[16:17], v[16:17], v[{52+4*w}:{53+4*w}]\n v_pk_add_f32 v[18:19], v[18:19], v[{54+4*w}:{55+4*w}]")
    a("v_cvt_pk_bf16_f32 v16, v16, v17\n v_cvt_pk_bf16_f32 v17, v18, v19\n v_min_u32 v16, -2, v16\n v_min_u32 v17, -2, v17")
    near_store("buffer_store_dwordx2 v[16:17], v97, s[20:23], s57 offen")
    a("L_pubd:"); fs(1)
    stamp(6)
    base_pend = list(pend)
    a("s_mov_b32 s81, 0\n s_bitcmp1_b32 s6, 0\n s_cbranch_scc0 L_F\n s_cmp_eq_u32 s6, 1\n s_cbranch_scc0 L_R")

    def apass():
        for i in range(4): a(f"buffer_load_dwordx4 v[{20+4*i}:{23+4*i}], v2, s[20:23], s63 offen offset:{1024*i} sc1")
    apass()
    a(f"s_waitcnt vmcnt(5)\n s_cmp_eq_u32 s3, 0\n s_cbranch_scc1 L_tab1\n s_waitcnt vmcnt(4)\n s_branch L_tab1")
    a("L_tab:")
    lsepass(); a("s_waitcnt vmcnt(0)")
    a("L_tab1:")
    spin_end(180, "L_tab")
    a(f"v_max_f32_dpp v181, v180, v180 quad_perm:[1,0,3,2] {DPP}\n v_max_f32_dpp v181, v181, v181 quad_perm:[2,3,0,1] {DPP}")
    a("v_sub_f32 v180, v180, v181\n v_exp_f32 v180, v180")
    a(f"v_add_f32_dpp v181, v180, v180 quad_perm:[1,0,3,2] {DPP}\n v_add_f32_dpp v181, v181, v181 quad_perm:[2,3,0,1] {DPP}")
    a("v_rcp_f32 v181, v181\n v_mul_f32 v180, v180, v181\n s_mov_b64 exec, 0xffff\n ds_write_b32 v179, v180\n s_mov_b64 exec, -1")
    a("v_mov_b32 v8, s54\n v_mov_b32 v9, s54\n v_mov_b32 v10, s54\n v_mov_b32 v11, s54\n v_mov_b32 v12, v205\n s_add_u32 s82, s3, s7")
    a("s_branch L_wchk")
    a("L_wa:")
    a("s_mov_b64 exec, vcc"); apass(); a("s_mov_b64 exec, -1")
    a("L_wchk:")
    for i in range(4):
        a(f"s_waitcnt vmcnt({3 - i})\n ds_write_b128 v{172 + (i & 1)}, v[{20+4*i}:{23+4*i}] offset:{128 * (i >> 1)}")
        chk4(99, 20 + 4*i, i == 0)
    a("s_waitcnt lgkmcnt(0)")
    spin_end(99, "L_wa")
    stamp(10); fs(2)
    a("s_cmp_eq_u32 s82, 0\n s_barrier"); fs(3)
    a("s_cbranch_scc0 L_wns\n buffer_store_dwordx4 v[8:11], v12, s[20:23], s61 offen sc1")
    a("L_wns:")
    q = LQ()
    def oread(tt):
        q.issue(tt, f"ds_read_b128 v[{188+4*tt}:{191+4*tt}], v{174 + (tt & 1)} offset:{1024*tt}")
        if tt == 7: q.issue("w", "ds_read_b128 v[20:23], v178")
    for tt in range(LAW): oread(tt)
    def wfma(hh, i):
        a(f"v_mul_f32 v{52+i}, v{36+i}, v20" if hh == 0 else f"v_fmac_f32 v{52+i}, v{36+4*hh+i}, v{20+hh}")
    for tt in range(16):
        hh, t = tt >> 2, tt & 3
        q.wait(tt)
        a(f"{MF} v[{36+4*hh}:{39+4*hh}], v[{100+4*tt}:{103+4*tt}], v[{188+4*tt}:{191+4*tt}], {'0' if t == 0 else f'v[{36+4*hh}:{39+4*hh}]'}")
        if tt + LAW < 16: oread(tt + LAW)
        if hh >= 2: wfma(hh - 2, t)
    a("s_mov_b32 s82, 0x11111111\n s_mov_b32 s83, 0x11111111"); fs(4)
    for hh in (2, 3):
        for i in range(4): wfma(hh, i)
    for ctl in ("quad_perm:[1,0,3,2]", "quad_perm:[2,3,0,1]"):
        for i in range(4): a(f"v_add_f32_dpp v{52+i}, v{52+i}, v{52+i} {ctl} {DPP}")
    a("v_cvt_pk_bf16_f32 v52, v52, v53\n v_cvt_pk_bf16_f32 v53, v54, v55\n v_min_u32 v52, -2, v52\n v_min_u32 v53, -2, v53")
    a("s_mov_b64 exec, s[82:83]")
    a("buffer_store_dwordx2 v[52:53], v176, s[20:23], s62 offen sc1\n s_mov_b64 exec, -1\n s_mov_b32 s81, 0")
    stamp(9); fs(5); flush()

    if WL and WLN: dtouch(-(-WLN // 64), WLN // -(-WLN // 64))
    a("s_branch L_R2")
    pend[:] = base_pend
    a("L_R:")
    flush()
    if RN: dtouch(RN, 48)
    a("L_R2:")
    a("s_cmp_eq_u32 s3, 0\n s_cbranch_scc0 L_fin")
    a("v_and_b32 v97, 1, v0\n v_cmp_eq_u32 vcc, 1, v97\n v_mov_b32 v98, 0x3f80\n v_mov_b32 v99, 0x3f800000\n v_cndmask_b32 v98, v98, v99, vcc\n v_bfe_u32 v97, v0, 1, 3")
    for d in range(4): a(f"v_cmp_eq_u32 vcc, {d}, v97\n v_cndmask_b32 v{8+d}, 0, v98, vcc")
    if R72:
        a("s_sub_u32 s59, s5, 27\n s_cmp_eq_u32 s6, 1\n s_cselect_b32 s59, s7, s59\n s_cselect_b32 s57, 1, 0\n s_cmp_lt_u32 s59, 4\n s_cbranch_scc0 L_r8")
        a("v_lshlrev_b32 v28, 5, v94\n v_lshl_add_u32 v28, v93, 9, v28")
        a("s_lshr_b32 s82, s4, 1\n s_and_b32 s83, s4, 1")
        a("s_mul_i32 s7, s82, 9\n s_add_u32 s7, s7, s83\n s_lshl_b32 s58, s59, 1\n s_add_u32 s7, s7, s58")
        a("s_lshl_b32 s83, s83, 1\n s_add_u32 s83, s83, s57\n s_mul_i32 s58, s83, 1152\n s_lshl_b32 s82, s82, 7\n s_add_u32 s58, s58, s82\n s_lshl_b32 s59, s59, 3\n s_add_u32 s58, s58, s59\n s_branch L_r9")
        a("L_r8:")
        a("s_cmp_eq_u32 s57, 1\n s_cbranch_scc0 L_fin\n s_cmp_lt_u32 s59, 8\n s_cbranch_scc0 L_fin\n s_cmp_lt_u32 s4, 2\n s_cbranch_scc0 L_fin")
        a("v_bfe_u32 v28, v0, 1, 1\n v_mul_u32_u24 v28, 1152, v28\n v_and_b32 v98, 1, v0\n v_lshl_add_u32 v28, v98, 4, v28\n v_lshl_add_u32 v28, v93, 3, v28")
        a("s_sub_u32 s7, s59, 4\n s_mov_b32 s57, s4\n s_lshl_b32 s58, s7, 5\n s_mul_i32 s82, s57, 2304\n s_add_u32 s58, s58, s82\n s_add_u32 s58, s58, 1024\n s_mul_i32 s7, s7, 9\n s_add_u32 s7, s7, 8")
        a("L_r9:")
        a(f"s_mul_i32 s44, s7, 18432\n s_lshl_b32 s82, s57, 6\n s_add_u32 s44, s44, s82\n s_add_u32 s44, s44, {WS_C}\n s_add_u32 s7, s7, s57")
        a("v_lshrrev_b32 v31, 2, v0\n v_lshlrev_b32 v31, 7, v31\n v_lshl_add_u32 v31, v94, 4, v31")
        for i in range(1, 5): a(f"s_add_u32 s{44+i}, s44, {4096*i}")
    else:
        a("s_cmp_eq_u32 s6, 1\n s_cbranch_scc1 L_r8\n s_cmp_lt_u32 s7, 32\n s_cbranch_scc0 L_fin")
        a("v_bfe_u32 v28, v0, 2, 1\n v_mul_u32_u24 v28, 1152, v28\n v_lshl_add_u32 v28, v94, 5, v28\n v_lshl_add_u32 v28, v93, 9, v28")
        a("s_lshr_b32 s82, s4, 1\n s_and_b32 s83, s4, 1\n s_sub_u32 s59, s5, 27")
        a("s_mul_i32 s7, s82, 9\n s_add_u32 s7, s7, s83\n s_lshl_b32 s58, s59, 1\n s_add_u32 s7, s7, s58")
        a("s_mul_i32 s58, s83, 2304\n s_lshl_b32 s82, s82, 7\n s_add_u32 s58, s58, s82\n s_lshl_b32 s59, s59, 3\n s_add_u32 s58, s58, s59\n s_branch L_r9")
        a("L_r8:")
        a("s_lshl_b32 s82, s4, 2\n s_add_u32 s82, s82, s7\n s_cmp_lt_u32 s82, 4\n s_cbranch_scc0 L_fin")
        a("v_bfe_u32 v28, v0, 1, 2\n v_mul_u32_u24 v28, 1152, v28\n v_and_b32 v98, 1, v0\n v_lshl_add_u32 v28, v98, 4, v28\n v_lshl_add_u32 v28, v93, 3, v28")
        a("s_lshl_b32 s58, s7, 5\n s_add_u32 s58, s58, 1024\n s_mul_i32 s7, s7, 9\n s_add_u32 s7, s7, 8")
        a("L_r9:")
        a(f"s_mul_i32 s44, s7, 18432\n s_add_u32 s44, s44, {WS_C}")
        for i in range(1, 5): a(f"s_add_u32 s{44+i}, s44, {4096*i}")
    a(f"v_lshlrev_b32 v29, 7, v0\n s_lshl_b32 s61, s4, 10\n s_add_u32 s61, s61, {WS_SC}\n s_mov_b32 s60, 0\n s_mov_b64 exec, 0xff")
    a("v_not_b32 v30, s54")
    a("L_rs:")
    a(f"buffer_load_dword v30, v29, s[20:23], s61 offen sc1\n s_add_u32 s60, s60, 1\n s_cmp_gt_u32 s60, {SPIN}\n s_cbranch_scc1 L_rs1")
    a(f"s_waitcnt vmcnt({PIPE})\n v_cmp_ne_u32 vcc, s54, v30\n s_cbranch_vccnz L_rs")
    a("L_rs1:"); fs(6)
    stamp(12)
    a("s_mov_b64 vcc, -1")
    a("L_ra:")
    a("s_mov_b64 exec, vcc")
    NR = 9 if R72 else 18
    for i in range(NR):
        if R72: a(f"buffer_load_dwordx4 v[{100+4*i}:{103+4*i}], v31, s[20:23], s{44+(i>>1)} offen offset:{2048*(i&1)} sc1")
        else:   a(f"buffer_load_dwordx4 v[{100+4*i}:{103+4*i}], v2, s[20:23], s{44+(i>>2)} offen offset:{1024*(i&3)} sc1")
    a("s_mov_b64 exec, -1")
    for i in range(NR):
        a(f"s_waitcnt vmcnt({NR - 1 - i})")
        a(f"{MF} v[52:55], v[8:11], v[{100+4*i}:{103+4*i}], {'0' if i == 0 else 'v[52:55]'}")
        chk4(99, 100 + 4*i, i == 0)
    spin_end(99, "L_ra"); fs(7)
    stamp(7)
    for i in range(4): a(f"v_add_f32_dpp v{52+i}, v{52+i}, v{52+i} row_ror:8 {DPP}")
    if R72:
        for i in range(4): a(f"v_add_f32_dpp v{52+i}, v{52+i}, v{52+i} row_ror:4 {DPP}")
    a("v_cvt_pk_bf16_f32 v52, v52, v53\n v_cvt_pk_bf16_f32 v53, v54, v55")
    a(f"s_mov_b64 exec, {0x000f000f if R72 else 0x00ff00ff:#x}\n buffer_store_dwordx2 v[52:53], v28, s[36:39], s58 offen")
    if not EPE: a(f"s_cmp_eq_u32 s7, 0\n s_cbranch_scc0 L_rend\n s_mov_b32 exec_lo, -1\n v_mov_b32 v54, s54\n v_lshlrev_b32 v55, 2, v0\n s_mov_b32 s82, {WS_EP}\n buffer_store_dword v54, v55, s[20:23], s82 offen sc1")
    a("L_rend:"); fs(8)
    if probe >= 0:
        if probe == 99: a("s_memrealtime s[86:87]")
        a("s_memrealtime s[88:89]\n s_waitcnt lgkmcnt(0)\n s_sub_u32 s86, s86, s84")
        a("L_probe:")
        a("s_memrealtime s[90:91]\n s_waitcnt lgkmcnt(0)\n s_sub_u32 s90, s90, s88\n s_cmp_lt_u32 s90, s86\n s_cbranch_scc1 L_probe")
    stamp(8); flush(); dump()
    a("s_endpgm")
    emit_stubs()
    a("L_fin:")
    if DIRTY:
        a(f"s_mov_b64 exec, -1\n s_lshl_b32 s74, s2, 2\n s_add_u32 s74, s74, s3\n s_lshl_b32 s74, s74, 12\n s_add_u32 s74, s74, 0x400000\n s_mov_b32 s22, 0x1000000")
        for i in range(DIRTY): a(f"buffer_store_dwordx4 v[8:11], v2, s[20:23], s74 offen offset:{1024*i} {DFL}")
    dump()
    a("s_endpgm")
    pend[:] = base_pend
    if AL: a(".p2align 12")
    a("L_F:")
    a("s_barrier")
    def sigld():
        if FS: a("buffer_load_dword v88, v207, s[20:23], 0 offen sc1")
        else:  a("buffer_load_dword v88, v207, s[20:23], 0 offen sc1\n buffer_load_dword v89, v207, s[20:23], 0 offen offset:512 sc1")
    for n in range(nl, 28):
        if n == 27 - SP:
            if PW: a("buffer_load_dwordx4 v[56:59], v2, s[20:23], s52 offen sc1")
            if FS: a("s_mov_b64 exec, 0xff")
            sigld()
            if FS: a("s_mov_b64 exec, -1")
        if n < 27: late(n)
    for i in range(8): a(f"v_mov_b32 v{36+i}, 0")
    a("v_mov_b32 v60, s54\n v_mov_b32 v61, s54\n v_mov_b32 v62, s54\n v_mov_b32 v63, s54")
    a("s_mul_i32 s48, s51, 3\n s_add_u32 s48, s48, s3" if CNT == 1 else "s_sub_u32 s48, s3, s51\n s_add_u32 s48, s48, 2")
    a(f"s_lshl_b32 s64, s4, 7\n s_add_u32 s64, s64, {WS_CT}\n v_mov_b32 v66, 1\n v_mov_b32 v67, 0")
    a(f"s_mov_b32 s66, 0xaaaaaaaa\n s_mov_b32 s67, 0xaaaaaaaa\n v_mov_b32 v64, {f2u(1/576):#x}\n v_mov_b32 v65, {f2u(-2 * 0.7978845608028654 * 1.4426950408889634):#x}")
    a(f"s_waitcnt vmcnt({11 - FS + PW})\n s_barrier")
    for n in range(18): trread(("a", 4*n), 4, 5, n)
    def bloads(par):
        lab = a.label("L_fb")
        a(f"s_cmp_eq_u32 s3, 0\n s_cbranch_scc0 {lab}")
        for p in par: a(f"buffer_load_dwordx4 v[{36+4*p}:{39+4*p}], v2, s[20:23], s65 offen offset:{1024*p} sc1")
        a(f"{lab}:")
        for p in par:
            for hf in range(2): a(f"buffer_load_dwordx4 v[{20+8*hf+4*p}:{23+8*hf+4*p}], v2, s[20:23], s63 offen offset:{2048*hf+1024*p} sc1")
    def sigstep():
        l1, l2 = a.label("L_fs"), a.label("L_fs")
        a("v_cmp_eq_u32 s[40:41], s54, v88\n v_cmp_eq_u32 s[42:43], s54, v89")
        a(f"s_andn2_b64 exec, s[40:41], s[44:45]\n s_cbranch_execz {l1}")
        bloads((0,))
        a(f"{l1}:\n s_andn2_b64 exec, s[42:43], s[46:47]\n s_cbranch_execz {l2}")
        bloads((1,))
        a(f"{l2}:\n s_mov_b64 exec, -1\n s_mov_b64 s[44:45], s[40:41]\n s_mov_b64 s[46:47], s[42:43]")
    def dfrag(j):
        b, off = (248 + (j & 3), (j >> 2) * 16384) if j < 8 else (252, 0)
        a(f"ds_read_b64_tr_b16 v[{100+4*j}:{101+4*j}], v{b} offset:{off}\n ds_read_b64_tr_b16 v[{102+4*j}:{103+4*j}], v{b} offset:{off+512}")
    if FS:
        a(f"s_mov_b32 s44, 0\n s_mov_b32 s60, 0\n s_mov_b64 exec, 0xff\n s_waitcnt vmcnt({SP})")
        stamp(7)
        a("s_branch L_gs1")
        a("L_gs:")
        sigld()
        a(f"s_add_u32 s60, s60, 1\n s_cmp_gt_u32 s60, {SPIN}\n s_cbranch_scc1 L_fall\n s_waitcnt vmcnt({FP})")
        a("L_gs1:")
        a("v_cmp_eq_u32 vcc, s54, v88\n s_andn2_b32 s46, vcc_lo, s44\n s_cbranch_scc0 L_gs\n s_mov_b32 s44, vcc_lo")
        a("s_bitreplicate_b64_b32 s[46:47], s46\n s_bitreplicate_b64_b32 s[46:47], s46\n s_bitreplicate_b64_b32 s[46:47], s46")
        a("s_bitreplicate_b64_b32 exec, s46\n s_cbranch_execz L_gs2")
        bloads((0,))
        a("L_gs2:\n s_bitreplicate_b64_b32 exec, s47\n s_cbranch_execz L_gs3")
        bloads((1,))
        a("L_gs3:\n s_mov_b64 exec, 0xff\n s_cmp_eq_u32 s44, 0xff\n s_cbranch_scc0 L_gs\n s_mov_b64 exec, -1\n s_branch L_fs9")
    a(f"s_mov_b64 s[44:45], 0\n s_mov_b64 s[46:47], 0\n s_mov_b32 s60, 0\n s_waitcnt vmcnt({SP})")
    if not FS: stamp(7)
    a("s_branch L_fs1")
    a("L_fs:")
    sigld()
    a(f"s_add_u32 s60, s60, 1\n s_cmp_gt_u32 s60, {SPIN}\n s_cbranch_scc1 L_fall\n s_waitcnt vmcnt(0)")
    a("L_fs1:")
    sigstep()
    a("s_and_b64 s[40:41], s[40:41], s[42:43]\n s_cmp_eq_u64 s[40:41], -1\n s_cbranch_scc0 L_fs")
    a("L_fs9:")
    stamp(12)
    fs(0)
    a("L_fdn:")
    a("s_cmp_eq_u32 s48, 3\n s_cbranch_scc0 L_fna\n s_mov_b64 exec, 1\n buffer_atomic_add v66, v67, s[20:23], s64 offen sc0 sc1\n s_mov_b64 exec, -1")
    a("s_waitcnt vmcnt(1)\n s_branch L_fchk")
    a("L_fall:")
    a("s_mov_b64 exec, -1")
    bloads((0, 1)); a("s_branch L_fdn")
    a("L_fa:")
    a("s_mov_b64 exec, vcc"); bloads((0, 1)); a("s_mov_b64 exec, -1")
    a("L_fna:")
    a("s_waitcnt vmcnt(0)")
    a("L_fchk:"); fs(1)
    HD = 68
    for k, (d, r, sel, cin) in enumerate(((HD+4, 36, 184, 176), (HD, 20, 184, 172), (HD+4, 40, 184, 0), (HD, 24, 184, 0), (HD, 28, 188, 0), (HD, 32, 188, 0))):
        cc = f"v[{cin}:{cin+3}]" if cin else f"v[{d}:{d+3}]"
        a(f"{MF} v[{d}:{d+3}], v[{sel}:{sel+3}], v[{r}:{r+3}], {cc}")
        chk4(99, r, k == 0)
    a(f"v_cvt_pk_bf16_f32 v82, v{HD+4}, v{HD+5}\n v_cvt_pk_bf16_f32 v83, v{HD+6}, v{HD+7}")
    spin_end(99, "L_fa")
    stamp(8)
    a(f"v_cvt_pk_bf16_f32 v80, v{HD}, v{HD+1}\n v_cvt_pk_bf16_f32 v81, v{HD+2}, v{HD+3}")
    a(f"s_cmp_eq_u32 s3, 0\n ds_write_b64 v192, v[80:81]\n s_cbranch_scc0 L_fw8\n ds_write_b64 v192, v[82:83] offset:{8*IMG_T}")
    a("L_fw8:")
    a(f"v_add_f32 v86, v{HD}, v{HD+1}\n v_mul_f32 v87, v{HD}, v{HD}\n v_fmac_f32 v87, v{HD+1}, v{HD+1}")
    for i in range(2, 5): a(f"v_add_f32 v86, v86, v{HD+i}\n v_fmac_f32 v87, v{HD+i}, v{HD+i}")
    a("s_waitcnt lgkmcnt(0)\n s_barrier")
    fs(2)
    q = LQ()
    def hread(t): q.issue(t, f"ds_read_b128 v[{20+4*t}:{23+4*t}], v194 offset:{t*IMG_T}")
    for t in range(LA): hread(t)
    dp = lambda ctl: [f"v_add_f32_dpp v{r}, v{r}, v{r} {ctl} {DPP}" for r in (86, 87)]
    for i in range(5, 8): a(f"v_add_f32 v86, v86, v{HD+i}\n v_fmac_f32 v87, v{HD+i}, v{HD+i}")
    for x in dp("quad_perm:[1,0,3,2]") + dp("row_ror:8"): a(x)
    q.issue("W", "ds_write_b64 v193, v[86:87]")
    side = {5: dp("quad_perm:[1,0,3,2]"), 6: dp("quad_perm:[2,3,0,1]"), 7: dp("row_half_mirror"), 8: dp("row_mirror")}
    xld = "buffer_load_dwordx4 v[56:59], v2, s[20:23], s52 offen sc1"
    for t in range(9):
        h = 20 + 4 * t
        if t in q.ops: q.wait(t)
        if t == 0: fs(3)
        a(f"{MF} v[8:11], v[{h}:{h+3}], a[{4*t}:{4*t+3}], {'0' if t == 0 else 'v[8:11]'}")
        if t + LA < 9: hread(t + LA)
        a(f"{MF} v[12:15], v[{h}:{h+3}], a[{36+4*t}:{39+4*t}], {'0' if t == 0 else 'v[12:15]'}")
        if t == 2:
            q.wait("W"); a("s_barrier"); q.issue("S", "ds_read_b64 v[86:87], v195")
        if t == 5: q.wait("S")
        for x in side.get(t, []): a(x)
    def dprep():
        for k in range(3): a(f"ds_read_b64 v[{80+2*k}:{81+2*k}], v{180+k}")
        for j in range(9): dfrag(j)
    def dprep2():
        a("s_waitcnt lgkmcnt(15)")
        for i in range(6): a(f"v_lshlrev_b32 v{HD+2*i}, 16, v{80+i}\n v_and_b32 v{HD+1+2*i}, s78, v{80+i}")
    fs(4)
    a("s_cmp_eq_u32 s53, 1\n s_cbranch_scc1 L_frx")
    a("v_cndmask_b32 v11, v86, v87, s[66:67]\n v_cvt_pk_bf16_f32 v10, v9, v13\n v_min_u32 v8, -2, v8\n v_min_u32 v9, -2, v12\n v_min_u32 v10, -2, v10\n v_min_u32 v11, -2, v11")
    near_store("buffer_store_dwordx4 v[8:11], v2, s[20:23], s52 offen", "s49")
    dprep(); dprep2()
    if EPE:
        a(f"s_lshl_b32 s82, s2, 2\n s_add_u32 s82, s82, s3\n s_cmp_eq_u32 s82, 3\n s_cbranch_scc0 L_fact\n s_mov_b32 s82, {WS_EP}\n s_mov_b64 exec, 0xff\n buffer_store_dwordx4 v[60:63], v2, s[20:23], s82 offen sc1\n s_mov_b64 exec, -1")
    a("s_branch L_fact")
    a("L_frx:")
    a(xld); dprep(); a(xld); dprep2()
    a("s_branch L_frx2")
    a("L_frx1:")
    a(xld)
    a("L_frx2:")
    a(f"s_waitcnt vmcnt({XP})")
    def lastsig():
        a("s_cmp_eq_u32 s82, 16\n s_cbranch_scc0 L_fnc\n buffer_store_dwordx4 v[60:63], v205, s[20:23], s61 offen sc1\nL_fnc:")
    chk4(99, 56, True); spin_end(99, "L_frx1")
    fs(5)
    if XP == 1: a("v_readfirstlane_b32 s82, v66")
    if CNT == 2: lastsig()
    c1 = -2 * 0.7978845608028654 * 1.4426950408889634
    a(f"v_add_f32_dpp v86, v59, v86 quad_perm:[0,0,2,2] {DPP}\n v_add_f32_dpp v87, v59, v87 quad_perm:[1,1,3,3] {DPP}")
    a("v_lshlrev_b32 v10, 16, v58\n v_and_b32 v11, s78, v58")
    a(f"v_mul_f32 v86, {f2u(1/576):#x}, v86\n v_fmaak_f32 v87, v87, v64, {f2u(1e-5):#x}")
    a("v_add_f32 v9, v9, v10\n v_fma_f32 v87, -v86, v86, v87\n v_add_f32 v8, v8, v56")
    a(f"v_max_f32 v87, {f2u(1e-5):#x}, v87\n v_rsq_f32 v87, v87")
    a("v_fma_f32 v8, -v86, v9, v8\n v_add_f32 v13, v13, v11\n v_mul_f32 v8, v8, v87\n v_add_f32 v12, v12, v57")
    a(f"v_mul_f32 v9, v8, v8\n v_fma_f32 v12, -v86, v13, v12\n v_fmamk_f32 v9, v9, {f2u(c1 * 0.044715):#x}, v65\n v_mul_f32 v12, v12, v87\n v_mul_f32 v9, v9, v8")
    a("v_exp_f32 v9, v9\n v_mul_f32 v8, v8, v12\n v_add_f32 v9, 1.0, v9\n v_rcp_f32 v9, v9\n v_mul_f32 v8, v8, v9")
    a("v_cvt_pk_bf16_f32 v8, v8, v8\n ds_write_b16 v196, v8")
    fs(6)
    if XP > 1: a("s_waitcnt vmcnt(1)\n v_readfirstlane_b32 s82, v66")
    if CNT == 3: lastsig()
    a("s_waitcnt lgkmcnt(0)")
    a("L_fact:")
    a("s_barrier")
    stamp(9); fs(7)
    for e in range(4): a(f"ds_read_b128 v[{20+4*e}:{23+4*e}], v{197+e}")
    for e in range(4):
        a(f"s_waitcnt lgkmcnt({3 - e})")
        for acc in (2, 0, 1):
            if acc == 2 and e > 0: continue
            w = 100 + 4 * (4 * acc + e)
            a(f"{MF} v[{HD+4*acc}:{HD+3+4*acc}], v[{w}:{w+3}], v[{20+4*e}:{23+4*e}], v[{HD+4*acc}:{HD+3+4*acc}]")
    a(f"v_cvt_pk_bf16_f32 v84, v{HD+8}, v{HD+9}\n v_cvt_pk_bf16_f32 v85, v{HD+10}, v{HD+11}\n v_min_u32 v84, -2, v84\n v_min_u32 v85, -2, v85")
    a("s_mov_b32 exec_lo, 0x11111111\n s_mov_b32 exec_hi, 0x11111111")
    a("buffer_store_dwordx2 v[84:85], v204, s[20:23], s62 offen sc1\n s_mov_b64 exec, -1")
    for i in range(4): a(f"v_cvt_pk_bf16_f32 v{80+i}, v{HD+2*i}, v{HD+1+2*i}")
    for i in range(4): a(f"v_min_u32 v{80+i}, -2, v{80+i}")
    a("buffer_store_dwordx4 v[80:83], v203, s[20:23], s62 offen sc1")
    if CLX:
        a("s_cmp_eq_u32 s53, 1\n s_cbranch_scc0 L_ncx\n buffer_store_dwordx4 v[56:59], v2, s[20:23], s52 offen sc1\nL_ncx:")
    stamp(10); fs(8); flush(); dump()
    a("s_endpgm")
    emit_stubs()

    a("L_end:")
    if not SAN:
        from asmlib import Ins
        for i, it in enumerate(a.items):
            if isinstance(it, Ins) and it.op == "v_min_u32" and it.ops[1] == "-2":
                a.items[i] = Ins(f"v_mov_b32 {it.ops[0]}, {it.ops[2]}") if it.ops[0] != it.ops[2] else None
        a.items = [x for x in a.items if x is not None]
    body = a.finish().replace("CODE_REST", "L_end-L_pc")
    return f"""{HEADER}; @launch grid=(256,1,1) block=(256,1,1) lds={LDS_BYTES}
.amdgcn_target "amdgcn-amd-amdhsa--gfx950"
.text
.globl {KN}
.p2align 8
.type {KN},@function
{KN}:
{body}
    s_endpgm
.section .rodata,"a"
.p2align 6
.amdhsa_kernel {KN}
  .amdhsa_next_free_vgpr 512
  .amdhsa_next_free_sgpr 102
  .amdhsa_accum_offset 256
  .amdhsa_group_segment_fixed_size 0
  .amdhsa_kernarg_size 96
  .amdhsa_user_sgpr_count 2
  .amdhsa_user_sgpr_kernarg_segment_ptr 1
  .amdhsa_system_sgpr_workgroup_id_x 1
.end_amdhsa_kernel
"""

if __name__ == "__main__":
    out = sys.argv[1]
    kw = {}
    for x in sys.argv[2:]:
        k, v = x.split("=")
        kw[k] = int(v) if v.lstrip("-").isdigit() else v
    open(out, "w").write(gen(**kw))
```
